```python
import torch

def _softmax(x, axis=-1):
    return torch.softmax(x, dim=axis)

def _gelu(x):
    return torch.nn.functional.gelu(x, approximate='tanh')

def _silu(x):
    return torch.nn.functional.silu(x)

def _sigmoid(x):
    return torch.sigmoid(x)

def _layernorm(x, axis=-1, eps=1e-05):
    m = x.mean(dim=axis, keepdim=True)
    v = x.var(dim=axis, keepdim=True, unbiased=False)
    return (x - m) / torch.sqrt(v + eps)

def _scatter_add(tgt, idx, src, axis=0):
    return tgt.clone().index_add_(axis, idx, src)

def _segment_sum(src, seg, n):
    out = torch.zeros((n,) + src.shape[1:], dtype=src.dtype)
    return out.index_add_(0, seg, src)

def _pad(x, pw):
    flat = tuple((v for pair in reversed(pw) for v in pair))
    return torch.nn.functional.pad(x, flat)
kernel_name = 'adaLN_cond__mha_block_cached__swiglu_ffn__prompt'

def setup_inputs():

    _w = lambda a: (lambda t: t.to(torch.bfloat16) if t.is_floating_point() else t)(torch.as_tensor(a))

    def _A_setup():
        B, Sq, D = (1, 2048, 512)
        H, Sk, Dh = (32, 2048, 128)
        return {'x': _w((lambda *s: torch.randn(*s, dtype=torch.bfloat16) * 0.1)(B, Sq, D)), 'k_cache': _w((lambda *s: torch.randn(*s, dtype=torch.bfloat16) * 0.8)(B, H, Sk, Dh)), 'v_cache': _w((lambda *s: torch.randn(*s, dtype=torch.bfloat16) * 1.6)(B, H, Sk, Dh)), 'wq': _w((lambda *s: torch.randn(*s, dtype=torch.bfloat16) * 0.8)(D, H * Dh) * D ** (-0.5)), 'wo': _w((lambda *s: torch.randn(*s, dtype=torch.bfloat16) * 1.6)(H * Dh, D) * (H * Dh) ** (-0.5))}
    _A_in = _A_setup()

    def _B_setup():
        B, S, D, F = (1, 2048, 512, 1792)
        return {'x': _w((lambda *s: torch.randn(*s, dtype=torch.bfloat16) * 0.1)(B, S, D)), 'w_gate': _w((lambda *s: torch.randn(*s, dtype=torch.bfloat16) * 0.1)(D, F)), 'w_up': _w((lambda *s: torch.randn(*s, dtype=torch.bfloat16) * 0.1)(D, F)), 'w_down': _w((lambda *s: torch.randn(*s, dtype=torch.bfloat16) * 0.1)(F, D))}
    _B_in = _B_setup()
    return {'A_x': _A_in['x'], 'A_k_cache': _A_in['k_cache'], 'A_v_cache': _A_in['v_cache'], 'A_wq': _A_in['wq'], 'A_wo': _A_in['wo'], 'B_x': _B_in['x'], 'B_w_gate': _B_in['w_gate'], 'B_w_up': _B_in['w_up'], 'B_w_down': _B_in['w_down'], 'c': _w((lambda *s: torch.randn(*s, dtype=torch.bfloat16) * 0.8)(1, 512) * 8.0), 'w_mod': _w((lambda *s: torch.randn(*s, dtype=torch.bfloat16) * 0.8)(512, 6 * 512) * 512 ** (-0.5) * 8.0)}

def reference(A_x, A_k_cache, A_v_cache, A_wq, A_wo, B_x, B_w_gate, B_w_up, B_w_down, c, w_mod):

    def _A_ref(x, k_cache, v_cache, wq, wo):
        B, Sq, D = x.shape
        H, Dh = (32, 128)
        q = (lambda x, *d: x.permute(*d))((x @ wq).reshape(B, Sq, H, Dh), 0, 2, 1, 3)
        scores = torch.einsum('bhqd,bhkd->bhqk', q, k_cache) * Dh ** (-0.5)
        p = _softmax(scores, axis=-1)
        o = torch.einsum('bhqk,bhkd->bhqd', p, v_cache)
        return (lambda x, *d: x.permute(*d))(o, 0, 2, 1, 3).reshape(B, Sq, H * Dh) @ wo

    def _B_ref(x, w_gate, w_up, w_down):
        g = _silu(x @ w_gate)
        u = x @ w_up
        return g * u @ w_down
    x = A_x
    mod = (_silu(c) @ w_mod).reshape(c.shape[0], 6, 1, -1)
    sa, ca, ga, sb, cb, gb = (mod[:, 0].clone(), mod[:, 1].clone(), mod[:, 2].clone(), mod[:, 3].clone(), mod[:, 4].clone(), mod[:, 5].clone())
    h = _layernorm(x, axis=-1) * (1 + ca) + sa
    x = x + ga * _A_ref(h, A_k_cache, A_v_cache, A_wq, A_wo)
    h = _layernorm(x, axis=-1) * (1 + cb) + sb
    x = x + gb * _B_ref(h, B_w_gate, B_w_up, B_w_down)
    return x
```

```python
class Asm:
    def __init__(self):
        self.lines = []
        self.vm = []
        self.lg = []
        self.uid = 0
    def __call__(self, s):
        for ln in s.strip('\n').split('\n'):
            ln = ln.strip()
            if ln: self.lines.append('  ' + ln)
    def label(self, l): self.lines.append(l + ':')
    def c(self, s): self.lines.append('  ; ' + s)
    def raw(self, s): self.lines.append(s)
    def newlabel(self, p='L'):
        self.uid += 1
        return f'{p}_{self.uid}'
    def vmem(self, s, tag=None):
        if len(self.vm) >= 62:
            self('s_waitcnt vmcnt(56)'); self.vm = self.vm[len(self.vm)-56:]
        self(s); self.vm.append(tag)
    def lds(self, s, tag=None):
        self(s); self.lg.append(tag)
    def _cnt(self, q, tags):
        if not isinstance(tags, (list, set)): tags = [tags]
        idx = -1
        for i, t in enumerate(q):
            if t in tags: idx = i
        return idx
    def wait_vm(self, tags):
        i = self._cnt(self.vm, tags)
        if i < 0: return
        n = len(self.vm) - 1 - i
        self(f's_waitcnt vmcnt({min(n,63)})')
        self.vm = self.vm[i+1:] if n <= 63 else self.vm[len(self.vm)-63:]
    def wait_lg(self, tags):
        i = self._cnt(self.lg, tags)
        if i < 0: return
        n = len(self.lg) - 1 - i
        self(f's_waitcnt lgkmcnt({min(n,15)})')
        self.lg = self.lg[i+1:] if n <= 15 else self.lg[len(self.lg)-15:]
    def wait_all(self):
        self('s_waitcnt vmcnt(0) lgkmcnt(0)'); self.vm = []; self.lg = []
    def wait_vm0(self):
        self('s_waitcnt vmcnt(0)'); self.vm = []
    def wait_lg0(self):
        self('s_waitcnt lgkmcnt(0)'); self.lg = []
    def nop(self, n):
        while n > 0:
            k = min(n, 16); self(f's_nop {k-1}'); n -= k
    def srd(self, d, ptr, off, size):
        if off == 0:
            self(f's_mov_b32 s{d}, s{ptr}'); self(f's_mov_b32 s{d+1}, s{ptr+1}')
        elif isinstance(off, int):
            self(f's_add_u32 s{d}, s{ptr}, {off}'); self(f's_addc_u32 s{d+1}, s{ptr+1}, 0')
        else:
            self(f's_add_u32 s{d}, s{ptr}, {off}'); self(f's_addc_u32 s{d+1}, s{ptr+1}, 0')
        self(f's_mov_b32 s{d+2}, {size}'); self(f's_mov_b32 s{d+3}, 0x00020000')
    def text(self): return '\n'.join(self.lines) + '\n'

def vr(a, n=1): return f'v{a}' if n == 1 else f'v[{a}:{a+n-1}]'
def ar(a, n=1): return f'a{a}' if n == 1 else f'a[{a}:{a+n-1}]'
def sr(a, n=1): return f's{a}' if n == 1 else f's[{a}:{a+n-1}]'

def kernel_desc(name, vgpr, sgpr, accum):
    return f'''.p2align 6
.amdhsa_kernel {name}
  .amdhsa_next_free_vgpr {vgpr}
  .amdhsa_next_free_sgpr {sgpr}
  .amdhsa_accum_offset {accum}
  .amdhsa_group_segment_fixed_size 0
  .amdhsa_kernarg_size 112
  .amdhsa_user_sgpr_count 2
  .amdhsa_user_sgpr_kernarg_segment_ptr 1
  .amdhsa_system_sgpr_workgroup_id_x 1
.end_amdhsa_kernel
'''

def kernel_head(name):
    return f'''.text
.globl {name}
.p2align 8
.type {name},@function
{name}:
'''
```

```python
import sys
from asmlib import *

WS_MODP = 0
WS_XN   = 0x10000
WS_O    = 0x400000
WS_X1   = 0x1400000
WS_ACT  = 0x1800000
WS_STAMP= 0x2000000
KA_X, KA_K, KA_V, KA_WQ, KA_WO, KA_BX, KA_WG, KA_WU, KA_WD, KA_C, KA_WMOD, KA_OUT, KA_DBG, KA_WS = [8*i for i in range(14)]
LOG2E = 1.4426950408889634

def f2u(x):
    import struct
    return struct.unpack('<I', struct.pack('<f', x))[0]

def round_bf16(a, x, t):
    a(f'v_cvt_pk_bf16_f32 v{t}, v{x}, v{x}')
    a(f'v_and_b32 v{x}, 0xffff0000, v{t}')

def xhalf_sum(a, x, t):
    a(f'v_mov_b32 v{t}, v{x}')
    a('s_nop 1')
    a(f'v_permlane32_swap_b32 v{t}, v{x}')
    a('s_nop 1')
    a(f'v_add_f32 v{x}, v{x}, v{t}')

def gen_ka():
    a = Asm()
    a.raw(kernel_head('ka_kernel'))
    a('s_cmp_ge_u32 s2, 256')
    a('s_cbranch_scc1 KA_END')
    a(f's_load_dwordx2 s[4:5], s[0:1], {KA_WS}')
    a('s_cmp_ge_u32 s2, 192')
    a('s_cbranch_scc1 KA_LN')
    a(f's_load_dwordx2 s[6:7], s[0:1], {KA_C}')
    a(f's_load_dwordx2 s[8:9], s[0:1], {KA_WMOD}')
    a('s_mul_i32 s24, s2, 1366')
    a('s_lshr_b32 s24, s24, 16')
    a('s_mul_i32 s25, s24, 48')
    a('s_sub_u32 s25, s2, s25')
    a('v_and_b32 v1, 7, v0')
    a('v_lshlrev_b32 v1, 4, v1')
    a('v_lshrrev_b32 v2, 3, v0')
    a('v_mul_u32_u24 v3, 24576, v2')
    a('v_add_u32 v3, v3, v1')
    a('v_add_u32 v4, 6144, v3')
    a('v_add_u32 v5, 12288, v3')
    a('v_add_u32 v6, 18432, v3')
    a('v_lshlrev_b32 v7, 3, v2')
    a(f's_mul_i32 s26, s24, {128*6144}')
    a('s_lshl_b32 s27, s25, 7')
    a('s_add_u32 s26, s26, s27')
    a('s_lshl_b32 s28, s24, 8')
    a('s_waitcnt lgkmcnt(0)')
    a.srd(12, 6, 0, 1024)
    a.srd(16, 8, 0, 3145728)
    a.srd(20, 4, WS_MODP, 49152)
    a('buffer_load_dwordx2 v[8:9], v7, s[12:15], s28 offen')
    for i in range(4):
        a(f'buffer_load_dwordx4 v[{12+4*i}:{15+4*i}], v{3+i}, s[16:19], s26 offen')
    a('s_waitcnt vmcnt(4)')
    a('v_lshlrev_b32 v28, 16, v8'); a('v_and_b32 v29, 0xffff0000, v8')
    a('v_lshlrev_b32 v30, 16, v9'); a('v_and_b32 v31, 0xffff0000, v9')
    for i in range(4):
        a(f'v_mul_f32 v{32+i}, {f2u(-LOG2E)}, v{28+i}')
    for i in range(4):
        a(f'v_exp_f32 v{32+i}, v{32+i}')
    a('s_nop 0')
    for i in range(4):
        a(f'v_add_f32 v{32+i}, 1.0, v{32+i}')
    for i in range(4):
        a(f'v_rcp_f32 v{32+i}, v{32+i}')
    a('s_nop 0')
    for i in range(4):
        a(f'v_mul_f32 v{28+i}, v{28+i}, v{32+i}')
    for i in range(4):
        round_bf16(a, 28+i, 36)
    a('s_waitcnt vmcnt(0)')
    for i in range(4):
        for j in range(4):
            w = 12+4*i+j
            a(f'v_lshlrev_b32 v32, 16, v{w}')
            a(f'v_and_b32 v33, 0xffff0000, v{w}')
            if i == 0:
                a(f'v_mul_f32 v{40+2*j}, v32, v28'); a(f'v_mul_f32 v{41+2*j}, v33, v28')
            else:
                a(f'v_fmac_f32 v{40+2*j}, v32, v{28+i}'); a(f'v_fmac_f32 v{41+2*j}, v33, v{28+i}')
    a('v_lshlrev_b32 v3, 8, v2')
    a('v_lshlrev_b32 v1, 1, v1')
    a('v_add_u32 v3, v3, v1')
    a('ds_write_b128 v3, v[40:43]')
    a('ds_write_b128 v3, v[44:47] offset:16')
    a('s_waitcnt lgkmcnt(0)')
    a('s_barrier')
    a('v_cmp_gt_u32 vcc, 64, v0')
    a('s_and_saveexec_b64 s[30:31], vcc')
    a('s_cbranch_execz KA_END')
    a('v_lshlrev_b32 v3, 2, v0')
    for r in range(32):
        a(f'ds_read_b32 v{8+r}, v3 offset:{256*r}')
    a('s_waitcnt lgkmcnt(0)')
    n = 32
    while n > 1:
        for r in range(n//2):
            a(f'v_add_f32 v{8+r}, v{8+r}, v{8+r+n//2}')
        n //= 2
    a('s_mul_i32 s26, s24, 12288')
    a('s_lshl_b32 s27, s25, 8')
    a('s_add_u32 s26, s26, s27')
    a('buffer_store_dword v8, v3, s[20:23], s26 offen')
    a('s_waitcnt vmcnt(0)')
    a('s_endpgm')
    a.label('KA_LN')
    a(f's_load_dwordx2 s[6:7], s[0:1], {KA_X}')
    a('s_sub_u32 s24, s2, 192')
    a('v_lshrrev_b32 v1, 6, v0')
    a('v_and_b32 v2, 63, v0')
    a('v_and_b32 v3, 31, v2')
    a('v_lshrrev_b32 v4, 5, v2')
    a('v_lshlrev_b32 v5, 10, v3')
    a('v_lshlrev_b32 v6, 4, v4')
    a('v_add_u32 v5, v5, v6')
    a('v_lshlrev_b32 v6, 8, v1')
    a('v_add_u32 v5, v5, v6')
    a('s_lshl_b32 s25, s24, 15')
    a('s_waitcnt lgkmcnt(0)')
    a.srd(12, 6, 0, 2097152)
    a.srd(16, 4, WS_XN, 2097152)
    for s in range(8):
        a(f'buffer_load_dwordx4 v[{8+4*s}:{11+4*s}], v5, s[12:15], s25 offen offset:{32*s}')
    a('s_waitcnt vmcnt(0)')
    for r in range(32):
        a(f'v_lshlrev_b32 v{64+2*r}, 16, v{8+r}')
        a(f'v_and_b32 v{65+2*r}, 0xffff0000, v{8+r}')
    a('v_add_f32 v40, v64, v65')
    a('v_add_f32 v41, v66, v67')
    for r in range(4, 64, 2):
        a(f'v_add_f32 v40, v40, v{64+r}')
        a(f'v_add_f32 v41, v41, v{65+r}')
    a('v_add_f32 v40, v40, v41')
    xhalf_sum(a, 40, 41)
    a('v_lshlrev_b32 v42, 7, v1')
    a('v_lshlrev_b32 v43, 2, v3')
    a('v_add_u32 v42, v42, v43')
    a('ds_write_b32 v42, v40')
    a('s_waitcnt lgkmcnt(0)')
    a('s_barrier')
    for w in range(4):
        a(f'ds_read_b32 v{44+w}, v43 offset:{128*w}')
    a('s_waitcnt lgkmcnt(0)')
    a('v_add_f32 v44, v44, v45'); a('v_add_f32 v46, v46, v47'); a('v_add_f32 v44, v44, v46')
    a(f'v_mul_f32 v44, {f2u(1/512)}, v44')
    a('v_sub_f32 v48, v64, v44'); a('v_mul_f32 v40, v48, v48')
    a('v_sub_f32 v49, v65, v44'); a('v_mul_f32 v41, v49, v49')
    for r in range(2, 64, 2):
        a(f'v_sub_f32 v48, v{64+r}, v44'); a('v_fmac_f32 v40, v48, v48')
        a(f'v_sub_f32 v49, v{65+r}, v44'); a('v_fmac_f32 v41, v49, v49')
    a('v_add_f32 v40, v40, v41')
    xhalf_sum(a, 40, 41)
    a('s_barrier')
    a('ds_write_b32 v42, v40 offset:512')
    a('s_waitcnt lgkmcnt(0)')
    a('s_barrier')
    for w in range(4):
        a(f'ds_read_b32 v{48+w}, v43 offset:{512+128*w}')
    a('s_waitcnt lgkmcnt(0)')
    a('v_add_f32 v48, v48, v49'); a('v_add_f32 v50, v50, v51'); a('v_add_f32 v48, v48, v50')
    a(f'v_mul_f32 v48, {f2u(1/512)}, v48')
    round_bf16(a, 48, 49)
    a(f'v_add_f32 v48, {f2u(1e-5)}, v48')
    round_bf16(a, 48, 49)
    a('v_sqrt_f32 v48, v48')
    a('s_nop 0')
    round_bf16(a, 48, 49)
    a('v_rcp_f32 v48, v48')
    round_bf16(a, 44, 49)
    for r in range(32):
        a(f'v_sub_f32 v50, v{64+2*r}, v44')
        a(f'v_sub_f32 v51, v{65+2*r}, v44')
        a('v_cvt_pk_bf16_f32 v52, v50, v51')
        a('v_lshlrev_b32 v50, 16, v52')
        a('v_and_b32 v51, 0xffff0000, v52')
        a('v_mul_f32 v50, v50, v48')
        a('v_mul_f32 v51, v51, v48')
        a(f'v_cvt_pk_bf16_f32 v{8+r}, v50, v51')
    a('v_lshlrev_b32 v5, 13, v1')
    a('v_lshlrev_b32 v6, 4, v2')
    a('v_add_u32 v5, v5, v6')
    for s in range(8):
        if s == 4: a('v_add_u32 v5, 4096, v5')
        a(f'buffer_store_dwordx4 v[{8+4*s}:{11+4*s}], v5, s[16:19], s25 offen offset:{1024*(s%4)}')
    a('s_waitcnt vmcnt(0)')
    a.label('KA_END')
    a('s_endpgm')
    return a.text(), kernel_desc('ka_kernel', 128, 40, 128), 'ka_kernel grid=(256,1,1) block=(256,1,1) lds=8192'
```

```python
from asmlib import *
from gen import *

OFFSET = 96.0
THR = 2.0**64

S   = [0, 32]
NEGM = 64
P   = [96, 112]
T   = 128
KAD = 224
VAD = 232
VOK = 236
VOV = 240
LT  = [241, 242]
LR  = [243, 244]
LANE = 245
TMP = 246
def OA(q, dt): return (q*4+dt)*16
def QF(q, s): return 128 + (q*8+s)*4
def KF(s): return 192 + 4*s
def VF(t, dt): return 224 + (t*4+dt)*4

S_W=3; S_H=36; S_QB=37; S_RT=38; S_KOFF=39; S_VOFF=40; S_M0=41; S_CNT=42; S_T=43; S_THR=44; S_RET=46
SRD_K=12; SRD_V=16; SRD_WQ=20; SRD_XN=24; SRD_O=28; SRD_MP=32
VBASE = 65536
GSBASE = 131072

def mfma(d, a_, b, c):
    return f'v_mfma_f32_32x32x16_bf16 {d}, {a_}, {b}, {c}'

def softmax_ops(p):
    pairs = []
    for q in range(2):
        for pr in range(8):
            t0 = T + 2*((q*8+pr) % 4); t1 = t0+1
            r = S[p] + q*16 + 2*pr
            e0 = f'v_exp_f32 v{t0}, v{r}'
            e1 = f'v_exp_f32 v{t1}, v{r+1}'
            if pr == 0:
                adds = [f'v_add_f32 v{LT[q]}, v{t0}, v{t1}']
            else:
                adds = [f'v_add_f32 v{LT[q]}, v{LT[q]}, v{t0}', f'v_add_f32 v{LT[q]}, v{LT[q]}, v{t1}']
            cvt = f'v_cvt_pk_bf16_f32 v{P[p]+q*8+pr}, v{t0}, v{t1}'
            pairs.append((e0, e1, adds, cvt))
    return pairs

EXP_GAP = list(range(16)) + [16,16,17,18,19,19,20,21,22,22,23,24,25,25,26,27]
VRD_GAP = [0,0,1,2,3,3,4,5,6,6,7,8,9,9,10,11]
KRD_GAP = [17,18,19,20,21,22,23,24]
DMA_GAP = [18,21,24,27]

def k_read(s, sub):
    slot = (sub >> 1) & 3
    return f'ds_read_b128 {ar(KF(s),4)}, v{KAD+s} offset:{slot*16384 + (sub&1)*8192}'
def v_read(t, dt, u, sub):
    slot = (sub >> 1) & 3
    return f'ds_read_b64_tr_b16 {ar(VF(t,dt)+2*u,2)}, v{VAD+dt} offset:{slot*16384 + (sub&1)*8192 + (16*t+8*u)*256}'

def dma_kv(a, which, tile, i):
    slot = tile & 3
    out = []
    if i == 0:
        base = (0 if which == 'K' else VBASE) + slot*16384
        out.append(f's_add_u32 m0, s{S_M0}, {base}')
    return out

def gen_iter(a, j, do_qk=True, do_pv=True, do_kread=True, do_vread=True, do_sm=True,
             barrier=None, dmaK=None, dmaV=None, lsum_prev=True, stubs=None, cfg=None):
    p = j & 1
    gaps = [[] for _ in range(32)]
    mf = []
    for s in range(8):
        for q in range(2):
            d = vr(S[1-p]+q*16, 16)
            c = vr(NEGM+q*16, 16) if s == 0 else d
            mf.append(mfma(d, ar(KF(s),4), ar(QF(q,s),4), c) if do_qk else None)
    for t in range(2):
        for dt in range(4):
            for q in range(2):
                d = ar(OA(q,dt),16)
                mf.append(mfma(d, ar(VF(t,dt),4), vr(P[1-p]+q*8+t*4,4), d) if do_pv else None)
    if lsum_prev:
        gaps[0].append(f'v_add_f32 v{LR[0]}, v{LR[0]}, v{LT[0]}')
        gaps[0].append(f'v_add_f32 v{LR[1]}, v{LR[1]}, v{LT[1]}')
    if do_sm:
        prs = softmax_ops(p)
        for k, (e0, e1, adds, cvt) in enumerate(prs):
            g0 = EXP_GAP[2*k]; g1 = EXP_GAP[2*k+1]
            gaps[g0].append(e0); gaps[g1].append(e1)
        for k, (e0, e1, adds, cvt) in enumerate(prs):
            g1 = EXP_GAP[2*k+1]
            gaps[g1+1].extend(adds)
            gaps[g1+1].append(cvt)
    if do_vread:
        k = 0
        for t in range(2):
            for dt in range(4):
                for u in range(2):
                    gaps[VRD_GAP[k]].append(v_read(t, dt, u, j-1)); k += 1
    if do_kread:
        for s in range(8):
            gaps[KRD_GAP[s]].append(k_read(s, j+2))
    for which, tile in (('K', dmaK), ('V', dmaV)):
        if tile is None: continue
        slot = tile & 3
        base = (0 if which == 'K' else VBASE) + slot*16384
        srd = SRD_K if which == 'K' else SRD_V
        soff = S_KOFF if which == 'K' else S_VOFF
        gaps[DMA_GAP[0]-1].append(f's_add_u32 m0, s{S_M0}, {base}')
        for i in range(4):
            vo = VOK+i if which == 'K' else VOV
            gaps[DMA_GAP[i]].append(f'buffer_load_dwordx4 v{vo}, s[{srd}:{srd+3}], s{soff} offen offset:{1024*i} lds')
        gaps[DMA_GAP[3]].append(f's_add_u32 s{soff}, s{soff}, 16384')
    if do_sm:
        gaps[30].append(f'v_max_f32 v{TMP}, v{LT[0]}, v{LT[1]}')
        gaps[31].append(f'v_cmp_lt_f32 vcc, s{S_THR}, v{TMP}')
    for g in range(32):
        if g == 0:
            a('s_waitcnt lgkmcnt(0)')
        if g == 16:
            if barrier is not None:
                a(f's_waitcnt vmcnt({barrier}) lgkmcnt(0)')
                a('s_barrier')
            else:
                a('s_waitcnt lgkmcnt(0)')
        if mf[g] is not None: a(mf[g])
        for x in gaps[g]: a(x)
    if do_sm:
        st = a.newlabel('RSTUB'); bk = a.newlabel('RBACK')
        a(f's_cbranch_vccnz {st}')
        a.label(bk)
        stubs.append((st, bk, p))

def gen_rare(a, p):
    a.label(f'RARE_{p}')
    a.nop(20)
    m = TMP+1; t2 = TMP+2; dl = TMP+3; f = TMP+4; x = TMP+5
    for q in range(2):
        sc = S[p]+q*16; sn = S[1-p]+q*16
        a(f'v_max3_f32 v{m}, v{sc}, v{sc+1}, v{sc+2}')
        for r in range(3, 15, 2):
            a(f'v_max3_f32 v{m}, v{m}, v{sc+r}, v{sc+r+1}')
        a(f'v_max_f32 v{m}, v{m}, v{sc+15}')
        a(f'v_mov_b32 v{t2}, v{m}')
        a('s_nop 1')
        a(f'v_permlane32_swap_b32 v{t2}, v{m}')
        a('s_nop 1')
        a(f'v_max_f32 v{m}, v{m}, v{t2}')
        a(f'v_add_f32 v{dl}, {f2u(OFFSET)}, v{m}')
        a(f'v_max_f32 v{dl}, 0, v{dl}')
        a(f'v_sub_f32 v{f}, 0, v{dl}')
        a(f'v_exp_f32 v{f}, v{f}')
        a('s_nop 0')
        for dt in range(4):
            for r in range(16):
                ra = OA(q,dt)+r
                a(f'v_accvgpr_read_b32 v{x}, a{ra}')
                a(f'v_mul_f32 v{x}, v{x}, v{f}')
                a(f'v_accvgpr_write_b32 a{ra}, v{x}')
        a(f'v_mul_f32 v{LR[q]}, v{LR[q]}, v{f}')
        for r in range(16):
            a(f'v_sub_f32 v{NEGM+q*16+r}, v{NEGM+q*16+r}, v{dl}')
            a(f'v_sub_f32 v{sn+r}, v{sn+r}, v{dl}')
            a(f'v_sub_f32 v{sc+r}, v{sc+r}, v{dl}')
        for pr in range(8):
            a(f'v_exp_f32 v{T}, v{sc+2*pr}')
            a(f'v_exp_f32 v{T+1}, v{sc+2*pr+1}')
            a('s_nop 0')
            if pr == 0:
                a(f'v_add_f32 v{LT[q]}, v{T}, v{T+1}')
            else:
                a(f'v_add_f32 v{LT[q]}, v{LT[q]}, v{T}')
                a(f'v_add_f32 v{LT[q]}, v{LT[q]}, v{T+1}')
            a(f'v_cvt_pk_bf16_f32 v{P[p]+q*8+pr}, v{T}, v{T+1}')
    a('s_nop 1')
    a(f's_setpc_b64 s[{S_RET}:{S_RET+1}]')

def gen_kb(stamp=False):
    a = Asm()
    a.raw(kernel_head('kb_kernel'))
    a('s_cmp_ge_u32 s2, 256')
    a('s_cbranch_scc1 KB_END')
    a(f's_load_dwordx2 s[4:5], s[0:1], {KA_WS}')
    a(f's_load_dwordx2 s[6:7], s[0:1], {KA_K}')
    a(f's_load_dwordx2 s[8:9], s[0:1], {KA_V}')
    a(f's_load_dwordx2 s[10:11], s[0:1], {KA_WQ}')
    nst = [0]
    def st():
        if stamp:
            a(f's_memtime s[{64+2*nst[0]}:{65+2*nst[0]}]'); a(f's_memrealtime s[{76+2*nst[0]}:{77+2*nst[0]}]'); nst[0] += 1
    if stamp:
        a('s_memrealtime s[60:61]')
    st()
    a(f's_and_b32 s{S_H}, s2, 31')
    a(f's_lshr_b32 s{S_QB}, s2, 5')
    a('v_lshrrev_b32 v1, 6, v0')
    a(f'v_and_b32 v{LANE}, 63, v0')
    a('s_nop 0')
    a(f'v_readfirstlane_b32 s{S_W}, v1')
    a('s_nop 3')
    a(f's_lshl_b32 s{S_RT}, s{S_QB}, 3')
    a(f's_lshl_b32 s{S_T}, s{S_W}, 1')
    a(f's_add_u32 s{S_RT}, s{S_RT}, s{S_T}')
    a(f's_lshl_b32 s{S_M0}, s{S_W}, 12')
    a(f's_mov_b32 s{S_KOFF}, s{S_M0}')
    a(f's_mov_b32 s{S_VOFF}, s{S_M0}')
    a(f's_mov_b32 s{S_THR}, {f2u(THR)}')
    a('s_waitcnt lgkmcnt(0)')
    a(f's_lshl_b32 s{S_T}, s{S_H}, 19')
    a.srd(SRD_K, 6, f's{S_T}', 524288)
    a.srd(SRD_V, 8, f's{S_T}', 524288)
    a.srd(SRD_WQ, 10, 0, 4194304)
    a.srd(SRD_XN, 4, WS_XN, 2097152)
    a.srd(SRD_O, 4, WS_O, 16777216)
    a.srd(SRD_MP, 4, WS_MODP, 49152)
    L = LANE
    vg, vhf, vch, vrr, vc, vt, vu = 200, 201, 202, 203, 204, 205, 206
    a(f'v_lshrrev_b32 v{vg}, 4, v{L}')
    a(f'v_lshrrev_b32 v{vhf}, 5, v{L}')
    a(f'v_and_b32 v{vch}, 1, v{vg}')
    a(f'v_bfe_u32 v{vrr}, v{L}, 2, 2')
    a(f'v_and_b32 v{vc}, 3, v{L}')
    a(f'v_and_b32 v{vt}, 15, v{L}')
    a(f'v_lshlrev_b32 v{vu}, 2, v{vg}')
    a(f'v_xor_b32 v{vu}, v{vt}, v{vu}')
    a(f'v_lshlrev_b32 v{vu}, 4, v{vu}')
    a(f'v_lshlrev_b32 v{VOV}, 8, v{vg}')
    a(f'v_add_u32 v{VOV}, v{VOV}, v{vu}')
    WOFF = 222
    a(f'v_lshlrev_b32 v{WOFF}, 13, v{vg}')
    a(f'v_add_u32 v{WOFF}, v{WOFF}, v{vu}')
    for i in range(4):
        a(f'v_add_u32 v{vu}, {4*i}, v{vg}')
        a(f'v_xor_b32 v{vu}, v{vt}, v{vu}')
        a(f'v_lshlrev_b32 v{vu}, 4, v{vu}')
        a(f'v_lshlrev_b32 v{VOK+i}, 8, v{vg}')
        a(f'v_add_u32 v{VOK+i}, v{VOK+i}, v{vu}')
    a(f'v_and_b32 v{vt}, 31, v{L}')
    for s in range(8):
        a(f'v_add_u32 v{vu}, {2*s}, v{vhf}')
        a(f'v_and_b32 v{KAD+s}, 15, v{vt}')
        a(f'v_xor_b32 v{vu}, v{vu}, v{KAD+s}')
        a(f'v_lshlrev_b32 v{vu}, 4, v{vu}')
        a(f'v_lshlrev_b32 v{KAD+s}, 8, v{vt}')
        a(f'v_add_u32 v{KAD+s}, v{KAD+s}, v{vu}')
    WAD = 216
    for dt in range(4):
        a(f'v_xor_b32 v{vt}, {dt}, v{vrr}')
        a(f'v_lshlrev_b32 v{vt}, 2, v{vt}')
        a(f'v_lshlrev_b32 v{vu}, 1, v{vch}')
        a(f'v_add_u32 v{vt}, v{vt}, v{vu}')
        a(f'v_lshrrev_b32 v{vu}, 1, v{vc}')
        a(f'v_add_u32 v{vu}, v{vt}, v{vu}')
        a(f'v_lshlrev_b32 v{vu}, 4, v{vu}')
        a(f'v_and_b32 v207, 1, v{vc}')
        a(f'v_lshlrev_b32 v207, 3, v207')
        a(f'v_add_u32 v{vu}, v{vu}, v207')
        a(f'v_lshlrev_b32 v207, 2, v{vhf}')
        a(f'v_add_u32 v207, v207, v{vrr}')
        a(f'v_lshlrev_b32 v207, 8, v207')
        a(f'v_add_u32 v{vu}, v{vu}, v207')
        a(f'v_add_u32 v{VAD+dt}, {VBASE}, v{vu}')
        a(f'v_and_b32 v{vu}, 1, v{vc}')
        a(f'v_add_u32 v{vu}, v{vt}, v{vu}')
        a(f'v_lshlrev_b32 v{vu}, 4, v{vu}')
        a(f'v_lshrrev_b32 v207, 1, v{vc}')
        a(f'v_lshlrev_b32 v207, 3, v207')
        a(f'v_add_u32 v{vu}, v{vu}, v207')
        a(f'v_lshlrev_b32 v207, 3, v{vhf}')
        a(f'v_add_u32 v207, v207, v{vrr}')
        a(f'v_lshlrev_b32 v207, 8, v207')
        a(f'v_add_u32 v{WAD+dt}, v{vu}, v207')
    GSA = 220; XOFF = 221
    a(f'v_lshlrev_b32 v{GSA}, 5, v{vhf}')
    a(f'v_add_u32 v{GSA}, {GSBASE}, v{GSA}')
    a(f'v_lshlrev_b32 v{XOFF}, 4, v{L}')
    a('v_lshlrev_b32 v223, 3, v0')
    for kq in range(4):
        a(f's_mov_b32 s{S_T}, {kq*12288}')
        a.vmem(f'buffer_load_dwordx2 v[{160+2*kq}:{161+2*kq}], v223, s[{SRD_MP}:{SRD_MP+3}], s{S_T} offen', 'mod')
        a.vmem(f'buffer_load_dwordx2 v[{168+2*kq}:{169+2*kq}], v223, s[{SRD_MP}:{SRD_MP+3}], s{S_T} offen offset:2048', 'mod')
    S_WS = 45
    def w_dma(m):
        a(f's_lshl_b32 s{S_T}, s{S_W}, 10')
        a(f's_add_u32 m0, s{S_T}, {m*4096}')
        a(f's_lshl_b32 s{S_WS}, s{S_W}, 15')
        a(f's_add_u32 s{S_WS}, s{S_WS}, {m*131072}')
        a(f's_lshl_b32 s{S_T}, s{S_H}, 8')
        a(f's_add_u32 s{S_WS}, s{S_WS}, s{S_T}')
        a.vmem(f'buffer_load_dwordx4 v{WOFF}, s[{SRD_WQ}:{SRD_WQ+3}], s{S_WS} offen lds', ('W', m//8))
    RING = 20
    S_XO = 48
    a(f's_lshl_b32 s{S_XO}, s{S_RT}, 15')
    a(f's_add_u32 s{S_XO+1}, s{S_XO}, 32768')
    def xn_load(s):
        for q in range(2):
            r = 8*(s % RING) + 4*q
            a(f's_add_u32 s{S_T}, s{S_XO+q}, {(s//4)*4096}')
            a.vmem(f'buffer_load_dwordx4 v[{r}:{r+3}], v{XOFF}, s[{SRD_XN}:{SRD_XN+3}], s{S_T} offen offset:{(s%4)*1024}', ('X', s))
    for m in range(8): w_dma(m)
    for s in range(8): xn_load(s)
    for m in range(8, 16): w_dma(m)
    for s in range(8, 12): xn_load(s)
    for m in range(16, 24): w_dma(m)
    a.wait_vm('mod')
    for c_ in range(2):
        a(f'v_add_f32 v{160+c_}, v{160+c_}, v{162+c_}'); a(f'v_add_f32 v{164+c_}, v{164+c_}, v{166+c_}')
        a(f'v_add_f32 v{160+c_}, v{160+c_}, v{164+c_}')
        a(f'v_add_f32 v{168+c_}, v{168+c_}, v{170+c_}'); a(f'v_add_f32 v{172+c_}, v{172+c_}, v{174+c_}')
        a(f'v_add_f32 v{168+c_}, v{168+c_}, v{172+c_}')
        round_bf16(a, 160+c_, 176)
        round_bf16(a, 168+c_, 176)
        a(f'v_add_f32 v{168+c_}, 1.0, v{168+c_}')
        round_bf16(a, 168+c_, 176)
    a(f'v_add_u32 v223, {GSBASE}, v223')
    a.lds('ds_write_b64 v223, v[168:169]')
    a.lds('ds_write_b64 v223, v[160:161] offset:2048')
    for m in range(24, 32): w_dma(m)
    for s in range(12, RING): xn_load(s)
    GSR = [160, 176]
    HF = [192, 200]
    TT = 208
    WF = [192, 208]
    def gs_read(s):
        b = GSR[s&1]
        a.lds(f'ds_read_b128 v[{b}:{b+3}], v{GSA} offset:{s*64}', ('G', s))
        a.lds(f'ds_read_b128 v[{b+4}:{b+7}], v{GSA} offset:{s*64+16}', ('G', s))
        a.lds(f'ds_read_b128 v[{b+8}:{b+11}], v{GSA} offset:{s*64+2048}', ('G', s))
        a.lds(f'ds_read_b128 v[{b+12}:{b+15}], v{GSA} offset:{s*64+2048+16}', ('G', s))
    def w_read_ops(s):
        ops = []
        for dt in range(4):
            for u in range(2):
                r = WF[s&1] + dt*4 + 2*u
                ops.append(f'ds_read_b64_tr_b16 {ar(r,2)}, v{WAD+dt} offset:{(s%16)*4096 + 1024*u}')
        return ops
    def modulate_ops(s):
        ops = []
        b = GSR[s&1]
        for q in range(2):
            for k in range(4):
                x = 8*(s % RING) + 4*q + k
                t0 = TT + 2*((q*4+k) % 4); t1 = t0+1
                ops.append(f'v_lshlrev_b32 v{t0}, 16, v{x}')
                ops.append(f'v_and_b32 v{t1}, 0xffff0000, v{x}')
                ops.append(f'v_fma_f32 v{t0}, v{t0}, v{b+2*k}, v{b+8+2*k}')
                ops.append(f'v_fma_f32 v{t1}, v{t1}, v{b+2*k+1}, v{b+8+2*k+1}')
                ops.append(f'v_cvt_pk_bf16_f32 v{HF[s&1]+4*q+k}, v{t0}, v{t1}')
        return ops
    a.wait_vm([('W', 0), ('X', 0)])
    a.wait_lg0()
    a('s_barrier')
    gs_read(0); gs_read(1)
    for op in w_read_ops(0): a.lds(op, ('Wf', 0))
    a.wait_lg(('G', 0))
    for op in modulate_ops(0): a(op)
    def kv_dma(which, tile):
        slot = tile & 3
        base = (0 if which == 'K' else VBASE) + slot*16384
        srd = SRD_K if which == 'K' else SRD_V
        soff = S_KOFF if which == 'K' else S_VOFF
        a(f's_add_u32 m0, s{S_M0}, {base}')
        a('s_nop 0')
        for i in range(4):
            vo = VOK+i if which == 'K' else VOV
            a.vmem(f'buffer_load_dwordx4 v{vo}, s[{srd}:{srd+3}], s{soff} offen offset:{1024*i} lds', (which, tile))
        a(f's_add_u32 s{soff}, s{soff}, 16384')
    for s in range(32):
        if s in (7, 15, 23, 31):
            if s < 31: a.wait_vm(('W', (s+1)//8))
            a.wait_lg0()
            a('s_barrier')
            if s == 7: kv_dma('K', 0); kv_dma('K', 1)
            if s == 15: kv_dma('K', 2); kv_dma('K', 3)
            if s == 23: kv_dma('V', 0); kv_dma('V', 1)
            if s == 31: kv_dma('V', 2)
        else:
            a.wait_lg(('Wf', s))
        if s == 15:
            for dt in range(4): a(f'v_add_u32 v{WAD+dt}, 65536, v{WAD+dt}')
        if s+2 < 32: gs_read(s+2)
        if s+1 < 32:
            a.wait_vm(('X', s+1))
            a.wait_lg(('G', s+1))
            wr = w_read_ops(s+1)
            md = modulate_ops(s+1)
        else:
            wr, md = [], []
        mfs = []
        for dt in range(4):
            for q in range(2):
                d = ar(OA(q,dt),16)
                mfs.append(mfma(d, ar(WF[s&1]+dt*4,4), vr(HF[s&1]+4*q,4), '0' if s == 0 else d))
        a('s_nop 1')
        for g in range(8):
            a(mfs[g])
            if wr: a.lds(wr[g], ('Wf', s+1))
            for op in md[5*g:5*g+5]: a(op)
        if s+RING-1 < 32 and s >= 1:
            xn_load(s-1+RING)
    st()
    a.nop(16)
    cs = 128**-0.5 * LOG2E
    a(f's_mov_b32 s{S_T}, {f2u(cs)}')
    for q in range(2):
        for dt in range(4):
            for t in range(2):
                for k in range(8):
                    a(f'v_accvgpr_read_b32 v{k}, a{OA(q,dt)+8*t+k}')
                for k in range(8):
                    a(f'v_mul_f32 v{k}, s{S_T}, v{k}')
                for k in range(4):
                    a(f'v_cvt_pk_bf16_f32 v{8+k}, v{2*k}, v{2*k+1}')
                for k in range(4):
                    a(f'v_accvgpr_write_b32 a{QF(q,2*dt+t)+k}, v{8+k}')
    for r in range(128): a(f'v_accvgpr_write_b32 a{r}, 0')
    a(f'v_mov_b32 v{LR[0]}, 0'); a(f'v_mov_b32 v{LR[1]}, 0')
    a.wait_vm(('V', 1))
    a('s_barrier')
    for s in range(8): a(k_read(s, 0))
    a('s_waitcnt lgkmcnt(0)')
    for s in range(8):
        for q in range(2):
            d = vr(S[0]+q*16, 16)
            a(mfma(d, ar(KF(s),4), ar(QF(q,s),4), '0' if s == 0 else d))
    for s in range(8): a(k_read(s, 1))
    a.nop(16)
    m = TMP+1; t2 = TMP+2
    for q in range(2):
        sc = S[0]+q*16
        a(f'v_max3_f32 v{m}, v{sc}, v{sc+1}, v{sc+2}')
        for r in range(3, 15, 2):
            a(f'v_max3_f32 v{m}, v{m}, v{sc+r}, v{sc+r+1}')
        a(f'v_max_f32 v{m}, v{m}, v{sc+15}')
        a(f'v_mov_b32 v{t2}, v{m}')
        a('s_nop 1')
        a(f'v_permlane32_swap_b32 v{t2}, v{m}')
        a('s_nop 1')
        a(f'v_max_f32 v{m}, v{m}, v{t2}')
        a(f'v_add_f32 v{m}, {f2u(OFFSET)}, v{m}')
        for r in range(16):
            a(f'v_sub_f32 v{NEGM+q*16+r}, 0, v{m}')
            a(f'v_sub_f32 v{sc+r}, v{sc+r}, v{m}')
    stubs = []
    st()
    gen_iter(a, 0, do_pv=False, do_vread=False, barrier=63, dmaK=4, lsum_prev=False, stubs=stubs)
    a(f's_mov_b32 s{S_CNT}, 7')
    a.label('KB_LOOP')
    for jj in range(1, 9):
        j = jj
        T_ = j//2
        if j % 2 == 0:
            gen_iter(a, j, barrier=16, dmaK=T_+4, stubs=stubs)
        else:
            gen_iter(a, j, dmaV=T_+3, stubs=stubs)
    a(f's_sub_u32 s{S_CNT}, s{S_CNT}, 1')
    a(f's_cmp_lg_u32 s{S_CNT}, 0')
    a('s_cbranch_scc1 KB_LOOP')
    gen_iter(a, 57, dmaV=31, stubs=stubs)
    gen_iter(a, 58, barrier=8, stubs=stubs)
    gen_iter(a, 59, stubs=stubs)
    gen_iter(a, 60, barrier=0, stubs=stubs)
    gen_iter(a, 61, stubs=stubs)
    gen_iter(a, 62, do_kread=False, stubs=stubs)
    gen_iter(a, 63, do_qk=False, do_kread=False, stubs=stubs)
    a(f'v_add_f32 v{LR[0]}, v{LR[0]}, v{LT[0]}')
    a(f'v_add_f32 v{LR[1]}, v{LR[1]}, v{LT[1]}')
    for t in range(2):
        for dt in range(4):
            for u in range(2):
                a(v_read(t, dt, u, 63))
    a('s_waitcnt lgkmcnt(0)')
    for t in range(2):
        for dt in range(4):
            for q in range(2):
                d = ar(OA(q,dt),16)
                a(mfma(d, ar(VF(t,dt),4), vr(P[1]+q*8+t*4,4), d))
    st()
    for q in range(2):
        xhalf_sum(a, LR[q], TMP)
        a(f'v_rcp_f32 v{LR[q]}, v{LR[q]}')
    a.nop(16)
    a(f's_lshl_b32 s{S_T}, s{S_RT}, 18')
    a(f's_lshl_b32 s{S_WS}, s{S_H}, 13')
    a(f's_add_u32 s{S_XO}, s{S_T}, s{S_WS}')
    a(f's_add_u32 s{S_XO+1}, s{S_XO}, {256*1024}')
    cnt = 0
    for q in range(2):
        for dt in range(4):
            for t in range(2):
                b = 16*(cnt % 4); cnt += 1
                for k in range(8):
                    a(f'v_accvgpr_read_b32 v{b+k}, a{OA(q,dt)+8*t+k}')
                for k in range(8):
                    a(f'v_mul_f32 v{b+k}, v{b+k}, v{LR[q]}')
                for k in range(4):
                    a(f'v_cvt_pk_bf16_f32 v{b+8+k}, v{b+2*k}, v{b+2*k+1}')
                ks = 2*dt+t
                a(f's_add_u32 s{S_T}, s{S_XO+q}, {(ks//4)*4096}')
                a(f'buffer_store_dwordx4 v[{b+8}:{b+11}], v{XOFF}, s[{SRD_O}:{SRD_O+3}], s{S_T} offen offset:{(ks%4)*1024}')
    if stamp:
        a('s_waitcnt vmcnt(0)')
        st()
        a('s_memrealtime s[62:63]')
        a('s_waitcnt lgkmcnt(0)')
        a.srd(52, 4, WS_STAMP, 131072)
        a('v_mov_b32 v0, s60'); a('v_mov_b32 v1, s62')
        for k in range(nst[0]):
            a(f'v_mov_b32 v{2+k}, s{64+2*k}')
            a(f'v_mov_b32 v{8+k}, s{76+2*k}')
        a(f's_lshl_b32 s{S_T}, s2, 8'); a(f's_lshl_b32 s{S_WS}, s{S_W}, 6'); a(f's_add_u32 s{S_T}, s{S_T}, s{S_WS}')
        a('v_mov_b32 v20, 0')
        a('s_mov_b64 exec, 1')
        a(f'buffer_store_dwordx4 v[0:3], v20, s[52:55], s{S_T} offen')
        a(f'buffer_store_dwordx4 v[4:7], v20, s[52:55], s{S_T} offen offset:16')
        a(f'buffer_store_dwordx4 v[8:11], v20, s[52:55], s{S_T} offen offset:32')
        a(f'buffer_store_dwordx4 v[12:15], v20, s[52:55], s{S_T} offen offset:48')
    a('s_waitcnt vmcnt(0)')
    a.label('KB_END')
    a('s_endpgm')
    for st, bk, p in stubs:
        a.label(st)
        a(f's_call_b64 s[{S_RET}:{S_RET+1}], RARE_{p}')
        a(f's_branch {bk}')
    gen_rare(a, 0); gen_rare(a, 1)
    return a.text(), kernel_desc('kb_kernel', 512, 96, 256), 'kb_kernel grid=(256,1,1) block=(256,1,1) lds=135168'
```

```python
from asmlib import *
from gen import *

def mfma(d, a_, b, c):
    return f'v_mfma_f32_32x32x16_bf16 {d}, {a_}, {b}, {c}'

def stamp_begin(a, stamp):
    if stamp:
        a('s_memtime s[64:65]'); a('s_memrealtime s[76:77]')
def stamp_end(a, stamp, wreg, region):
    if stamp:
        a('s_waitcnt vmcnt(0)')
        a('s_memtime s[66:67]'); a('s_memrealtime s[78:79]')
        a('s_waitcnt lgkmcnt(0)')
        a.srd(52, 4, WS_STAMP + region*131072, 131072)
        a('v_mov_b32 v0, s76'); a('v_mov_b32 v1, s78'); a('v_mov_b32 v2, s64'); a('v_mov_b32 v3, s66')
        a(f's_lshl_b32 s43, s2, 8'); a(f's_lshl_b32 s44, s{wreg}, 6'); a('s_add_u32 s43, s43, s44')
        a('v_mov_b32 v20, 0')
        a('s_mov_b64 exec, 1')
        a('buffer_store_dwordx4 v[0:3], v20, s[52:55], s43 offen')

def gen_proj(mode, stamp=False, DEPTH=13):
    name = 'kc_kernel' if mode == 'C' else 'ke_kernel'
    N = name.upper()
    NKT = 256 if mode == 'C' else 112
    NK = NKT // 4
    wsB = WS_O if mode == 'C' else WS_ACT
    szB = 64*NKT*1024
    kaW = KA_WO if mode == 'C' else KA_WD
    szW = NKT*16*1024
    modbase = 1024 if mode == 'C' else 2560
    S_W=3; S_RB=36; S_CB=37; S_T=38; S_AO=39; S_B0=40; S_B1=41; S_M0=42; S_T2=45
    SRD_W=12; SRD_B=16; SRD_MP=20; SRD_X=24; SRD_O=28
    BR = 0
    ACC = 128
    AF = [192, 200]
    AAD = 208
    VOA = 210; VOB = 211; LOFF = 212; LANE = 213
    GT = 131072
    a = Asm()
    a.raw(kernel_head(name))
    a('s_cmp_ge_u32 s2, 256'); a(f's_cbranch_scc1 {N}_END')
    a(f's_load_dwordx2 s[4:5], s[0:1], {KA_WS}')
    a(f's_load_dwordx2 s[6:7], s[0:1], {kaW}')
    a(f's_load_dwordx2 s[8:9], s[0:1], {KA_X if mode == "C" else KA_OUT}')
    stamp_begin(a, stamp)
    a('s_and_b32 s33, s2, 7'); a('s_lshr_b32 s34, s2, 3')
    a(f's_and_b32 s{S_RB}, s34, 3'); a('s_lshl_b32 s33, s33, 2'); a(f's_add_u32 s{S_RB}, s{S_RB}, s33')
    a(f's_lshr_b32 s{S_CB}, s34, 2')
    a('v_lshrrev_b32 v1, 6, v0'); a(f'v_and_b32 v{LANE}, 63, v0'); a('s_nop 0')
    a(f'v_readfirstlane_b32 s{S_W}, v1')
    a('s_waitcnt lgkmcnt(0)')
    a.srd(SRD_W, 6, 0, szW)
    a.srd(SRD_B, 4, wsB, szB)
    a.srd(SRD_MP, 4, WS_MODP, 49152)
    if mode == 'C':
        a.srd(SRD_X, 8, 0, 2097152)
        a.srd(SRD_O, 4, WS_X1, 2097152)
    else:
        a.srd(SRD_X, 4, WS_X1, 2097152)
        a.srd(SRD_O, 8, 0, 2097152)
    L = LANE
    a(f'v_lshrrev_b32 v2, 3, v{L}'); a('v_lshlrev_b32 v2, 10, v2')
    a(f'v_bfe_u32 v3, v{L}, 4, 1'); a('v_lshlrev_b32 v3, 2, v3')
    a(f'v_and_b32 v4, 7, v{L}'); a('v_xor_b32 v3, v3, v4'); a('v_lshlrev_b32 v3, 4, v3')
    a(f'v_add_u32 v{VOA}, v2, v3'); a(f'v_add_u32 v{VOB}, 7168, v{VOA}')
    a(f'v_lshlrev_b32 v{LOFF}, 4, v{L}')
    a(f'v_lshrrev_b32 v2, 5, v{L}')
    a(f'v_bfe_u32 v3, v{L}, 4, 1')
    a(f'v_bfe_u32 v4, v{L}, 2, 2')
    a(f'v_and_b32 v5, 3, v{L}')
    a('v_lshlrev_b32 v6, 2, v2'); a('v_add_u32 v6, v6, v4'); a('v_lshlrev_b32 v6, 7, v6')
    a('v_and_b32 v7, 1, v5'); a('v_lshlrev_b32 v7, 3, v7'); a('v_add_u32 v6, v6, v7')
    a('v_lshrrev_b32 v7, 1, v5'); a('v_lshlrev_b32 v8, 1, v3'); a('v_add_u32 v7, v7, v8')
    a('v_lshrrev_b32 v8, 1, v4')
    a(f's_lshl_b32 s{S_M0}, s{S_W}, 15')
    for mt in range(2):
        a(f'v_xor_b32 v9, {mt}, v8'); a('v_lshlrev_b32 v9, 2, v9'); a('v_add_u32 v9, v9, v7'); a('v_lshlrev_b32 v9, 4, v9')
        a(f'v_add_u32 v{AAD+mt}, v6, v9'); a(f'v_add_u32 v{AAD+mt}, s{S_M0}, v{AAD+mt}')
    a(f's_mul_i32 s{S_AO}, s{S_W}, {NK*16384}'); a(f's_lshl_b32 s{S_T}, s{S_CB}, 7'); a(f's_add_u32 s{S_AO}, s{S_AO}, s{S_T}')
    a(f's_mul_i32 s{S_B0}, s{S_RB}, {2*NKT*1024}'); a(f's_mul_i32 s{S_T}, s{S_W}, {NK*1024}'); a(f's_add_u32 s{S_B0}, s{S_B0}, s{S_T}')
    a(f's_add_u32 s{S_B1}, s{S_B0}, {NKT*1024}')
    a(f's_cmp_lg_u32 s{S_W}, 0'); a(f's_cbranch_scc1 {N}_NOGT')
    a(f'v_lshlrev_b32 v2, 2, v{L}')
    a(f's_lshl_b32 s{S_T}, s{S_CB}, 8'); a(f's_add_u32 s{S_T}, s{S_T}, {modbase*4}')
    for kq in range(4):
        a(f's_add_u32 s{S_T2}, s{S_T}, {kq*12288}')
        a(f'buffer_load_dword v{4+kq}, v2, s[{SRD_MP}:{SRD_MP+3}], s{S_T2} offen')
    a('s_waitcnt vmcnt(0)')
    a('v_add_f32 v4, v4, v5'); a('v_add_f32 v6, v6, v7'); a('v_add_f32 v4, v4, v6')
    round_bf16(a, 4, 5)
    a(f'v_add_u32 v2, {GT}, v2')
    a('ds_write_b32 v2, v4')
    a.label(f'{N}_NOGT')
    def issue(k):
        slot = k % 16
        a(f's_add_u32 m0, s{S_M0}, {slot*2048}')
        r = BR + 8*slot
        a(f's_add_u32 s{S_T}, s{S_B0}, {(k//4)*4096}')
        a.vmem(f'buffer_load_dwordx4 v{VOA}, s[{SRD_W}:{SRD_W+3}], s{S_AO} offen lds', k)
        a.vmem(f'buffer_load_dwordx4 v{VOB}, s[{SRD_W}:{SRD_W+3}], s{S_AO} offen offset:1024 lds', k)
        a.vmem(f'buffer_load_dwordx4 v[{r}:{r+3}], v{LOFF}, s[{SRD_B}:{SRD_B+3}], s{S_T} offen offset:{(k%4)*1024}', k)
        a(f's_add_u32 s{S_T}, s{S_B1}, {(k//4)*4096}')
        a(f's_add_u32 s{S_AO}, s{S_AO}, 16384')
        a.vmem(f'buffer_load_dwordx4 v[{r+4}:{r+7}], v{LOFF}, s[{SRD_B}:{SRD_B+3}], s{S_T} offen offset:{(k%4)*1024}', k)
    def areads(k):
        slot = k % 16
        for mt in range(2):
            for u in range(2):
                r = AF[k&1] + mt*4 + 2*u
                a.lds(f'ds_read_b64_tr_b16 {vr(r,2)}, v{AAD+mt} offset:{slot*2048 + u*1024}', ('A', k))
    for k in range(min(DEPTH, NK)): issue(k)
    a.wait_vm(0); areads(0)
    for k in range(NK):
        if k+1 < NK:
            a.wait_vm(k+1); areads(k+1)
        if k+DEPTH < NK: issue(k+DEPTH)
        a.wait_lg(('A', k))
        r = BR + 8*(k % 16)
        for mt in range(2):
            for nt in range(2):
                d = vr(ACC+(mt*2+nt)*16, 16)
                a(mfma(d, vr(AF[k&1]+mt*4,4), vr(r+4*nt,4), '0' if k == 0 else d))
    a(f's_lshr_b32 s46, s{S_W}, 1'); a(f's_and_b32 s47, s{S_W}, 1')
    a(f's_lshl_b32 s48, s{S_RB}, 1'); a('s_add_u32 s48, s48, s47')
    a(f's_lshl_b32 s49, s{S_CB}, 2'); a('s_lshl_b32 s50, s46, 1'); a('s_add_u32 s49, s49, s50')
    a('s_lshl_b32 s50, s48, 5'); a('s_add_u32 s50, s50, s49'); a('s_lshl_b32 s50, s50, 10')
    a(f'v_and_b32 v2, 31, v{L}'); a('v_lshlrev_b32 v2, 10, v2')
    a(f'v_lshrrev_b32 v3, 5, v{L}')
    a(f'v_lshlrev_b32 v4, {3 if mode == "C" else 4}, v3'); a('v_add_u32 v2, v2, v4')
    a('s_lshl_b32 s51, s48, 15'); a('s_lshl_b32 s33, s49, 5'); a('s_add_u32 s51, s51, s33')
    XR = 0
    if mode == 'C':
        for g in range(4):
            a(f'buffer_load_dwordx2 v[{8+2*g}:{9+2*g}], v2, s[{SRD_X}:{SRD_X+3}], s51 offen offset:{16*g}')
    else:
        for t in range(2):
            a(f'buffer_load_dwordx4 v[{8+4*t}:{11+4*t}], v{LOFF}, s[{SRD_X}:{SRD_X+3}], s50 offen offset:{1024*t}')
    a.nop(12)
    a('s_waitcnt lgkmcnt(0)')
    a('s_barrier')
    a(f's_lshl_b32 s33, s{S_W}, 14')
    a(f'v_add_u32 v5, s33, v{LOFF}')
    for tile in range(4):
        for r4 in range(4):
            r = ACC + tile*16 + r4*4
            a(f'ds_write_b128 v5, v[{r}:{r+3}] offset:{(tile*4+r4)*1024}')
    a('s_waitcnt lgkmcnt(0)')
    a('s_barrier')
    a(f's_lshl_b32 s33, s{S_W}, 12')
    a(f'v_add_u32 v5, s33, v{LOFF}')
    for wv in range(4):
        for r4 in range(4):
            r = 32 + wv*16 + r4*4
            a(f'ds_read_b128 v[{r}:{r+3}], v5 offset:{wv*16384 + r4*1024}')
    a('v_lshlrev_b32 v6, 4, v3'); a('s_lshl_b32 s33, s46, 7'); a(f's_add_u32 s33, s33, {GT}'); a('v_add_u32 v6, s33, v6')
    for g in range(4):
        a(f'ds_read_b128 v[{16+4*g}:{19+4*g}], v6 offset:{32*g}')
    a('s_waitcnt lgkmcnt(0)')
    for r in range(16):
        a(f'v_add_f32 v{32+r}, v{32+r}, v{48+r}'); a(f'v_add_f32 v{64+r}, v{64+r}, v{80+r}')
    for r in range(16):
        a(f'v_add_f32 v{32+r}, v{32+r}, v{64+r}')
    for r in range(0, 16, 2):
        a(f'v_cvt_pk_bf16_f32 v100, v{32+r}, v{33+r}')
        a(f'v_lshlrev_b32 v{32+r}, 16, v100'); a(f'v_and_b32 v{33+r}, 0xffff0000, v100')
        a(f'v_mul_f32 v{32+r}, v{32+r}, v{16+r}'); a(f'v_mul_f32 v{33+r}, v{33+r}, v{17+r}')
        a(f'v_cvt_pk_bf16_f32 v100, v{32+r}, v{33+r}')
        a(f'v_lshlrev_b32 v{32+r}, 16, v100'); a(f'v_and_b32 v{33+r}, 0xffff0000, v100')
    a('s_waitcnt vmcnt(0)')
    for k in range(8):
        a(f'v_lshlrev_b32 v101, 16, v{8+k}'); a(f'v_and_b32 v102, 0xffff0000, v{8+k}')
        a(f'v_add_f32 v{32+2*k}, v{32+2*k}, v101'); a(f'v_add_f32 v{33+2*k}, v{33+2*k}, v102')
        a(f'v_cvt_pk_bf16_f32 v{104+k}, v{32+2*k}, v{33+2*k}')
    if mode == 'C':
        for t in range(2):
            a(f'buffer_store_dwordx4 v[{104+4*t}:{107+4*t}], v{LOFF}, s[{SRD_O}:{SRD_O+3}], s50 offen offset:{1024*t}')
    else:
        a('s_nop 1')
        for gp in range(2):
            b = 104+4*gp
            a(f'v_permlane32_swap_b32 v{b}, v{b+2}')
            a(f'v_permlane32_swap_b32 v{b+1}, v{b+3}')
        a('s_nop 1')
        for gp in range(2):
            b = 104+4*gp
            a(f'buffer_store_dwordx4 v[{b}:{b+3}], v2, s[{SRD_O}:{SRD_O+3}], s51 offen offset:{32*gp}')
    stamp_end(a, stamp, S_W, 1 if mode == 'C' else 3)
    a('s_waitcnt vmcnt(0)')
    a.label(f'{N}_END')
    a('s_endpgm')
    return a.text(), kernel_desc(name, 256, 96, 256), f'{name} grid=(256,1,1) block=(256,1,1) lds=131328'

def gen_kd(stamp=False):
    name = 'kd_kernel'; N = 'KD'
    S_W=3; S_RB=36; S_FG=37; S_T=38; S_RT=39; S_T2=40; S_GO=41; S_M0=42; S_XO=45
    SRD_G=12; SRD_U=16; SRD_X=20; SRD_MP=24; SRD_O=28
    XR = 0
    GSR = [128, 144]
    HF = [160, 164]
    TT = 168
    WAD = [176, 180]
    GSA = 184; WOFF = 185; LOFF = 186; LANE = 187
    MR = 188; RS = 189
    def ACC(mt): return mt*16
    WF = [128, 160]
    GSBASE = 131072
    a = Asm()
    a.raw(kernel_head(name))
    a('s_cmp_ge_u32 s2, 224'); a(f's_cbranch_scc1 {N}_END')
    a(f's_load_dwordx2 s[4:5], s[0:1], {KA_WS}')
    a(f's_load_dwordx2 s[6:7], s[0:1], {KA_WG}')
    a(f's_load_dwordx2 s[8:9], s[0:1], {KA_WU}')
    stamp_begin(a, stamp)
    a('s_and_b32 s33, s2, 7'); a('s_lshr_b32 s34, s2, 3')
    a(f's_and_b32 s{S_RB}, s34, 1'); a('s_lshl_b32 s33, s33, 1'); a(f's_add_u32 s{S_RB}, s{S_RB}, s33')
    a(f's_lshr_b32 s{S_FG}, s34, 1')
    a('v_lshrrev_b32 v1, 6, v0'); a(f'v_and_b32 v{LANE}, 63, v0'); a('s_nop 0')
    a(f'v_readfirstlane_b32 s{S_W}, v1')
    a('v_lshlrev_b32 v190, 3, v0')
    a('s_waitcnt lgkmcnt(0)')
    a.srd(SRD_G, 6, 0, 512*3584); a.srd(SRD_U, 8, 0, 512*3584)
    a.srd(SRD_X, 4, WS_X1, 2097152); a.srd(SRD_MP, 4, WS_MODP, 49152); a.srd(SRD_O, 4, WS_ACT, 64*112*1024)
    L = LANE
    a(f's_lshl_b32 s{S_RT}, s{S_RB}, 2'); a(f's_add_u32 s{S_RT}, s{S_RT}, s{S_W}')
    a(f'v_lshlrev_b32 v{LOFF}, 4, v{L}')
    for kq in range(4):
        a(f's_mov_b32 s{S_T}, {kq*12288 + 1536*4}')
        a.vmem(f'buffer_load_dwordx2 v[{128+2*kq}:{129+2*kq}], v190, s[{SRD_MP}:{SRD_MP+3}], s{S_T} offen', 'mod')
        a.vmem(f'buffer_load_dwordx2 v[{136+2*kq}:{137+2*kq}], v190, s[{SRD_MP}:{SRD_MP+3}], s{S_T} offen offset:2048', 'mod')
    a(f's_lshl_b32 s{S_XO}, s{S_RT}, 15')
    for s in range(32):
        if s % 4 == 0: a(f's_add_u32 s{S_T}, s{S_XO}, {(s//4)*4096}')
        a.vmem(f'buffer_load_dwordx4 v[{4*s}:{4*s+3}], v{LOFF}, s[{SRD_X}:{SRD_X+3}], s{S_T} offen offset:{(s%4)*1024}', 'X')
    vg, vhf, vch, vrr, vc, vt, vu, vw = 160, 161, 162, 163, 164, 165, 166, 167
    a(f'v_lshrrev_b32 v{vg}, 4, v{L}'); a(f'v_lshrrev_b32 v{vhf}, 5, v{L}'); a(f'v_and_b32 v{vch}, 1, v{vg}')
    a(f'v_bfe_u32 v{vrr}, v{L}, 2, 2'); a(f'v_and_b32 v{vc}, 3, v{L}')
    a(f'v_and_b32 v{vt}, 15, v{L}'); a(f'v_lshlrev_b32 v{vu}, 2, v{vg}'); a(f'v_xor_b32 v{vu}, v{vt}, v{vu}'); a(f'v_lshlrev_b32 v{vu}, 4, v{vu}')
    a(f'v_mul_u32_u24 v{WOFF}, 3584, v{vg}'); a(f'v_add_u32 v{WOFF}, v{WOFF}, v{vu}')
    for dt in range(4):
        a(f'v_xor_b32 v{vt}, {dt}, v{vrr}'); a(f'v_lshlrev_b32 v{vt}, 2, v{vt}')
        a(f'v_lshlrev_b32 v{vu}, 1, v{vch}'); a(f'v_add_u32 v{vt}, v{vt}, v{vu}')
        a(f'v_lshrrev_b32 v{vu}, 1, v{vc}'); a(f'v_add_u32 v{vu}, v{vt}, v{vu}'); a(f'v_lshlrev_b32 v{vu}, 4, v{vu}')
        a(f'v_and_b32 v{vw}, 1, v{vc}'); a(f'v_lshlrev_b32 v{vw}, 3, v{vw}'); a(f'v_add_u32 v{vu}, v{vu}, v{vw}')
        a(f'v_lshlrev_b32 v{vw}, 2, v{vhf}'); a(f'v_add_u32 v{vw}, v{vw}, v{vrr}'); a(f'v_lshlrev_b32 v{vw}, 8, v{vw}')
        a(f'v_add_u32 v{WAD[0]+dt}, v{vu}, v{vw}')
        a(f'v_add_u32 v{WAD[1]+dt}, 65536, v{WAD[0]+dt}')
    a(f'v_lshlrev_b32 v{GSA}, 4, v{vhf}'); a(f'v_add_u32 v{GSA}, {GSBASE}, v{GSA}')
    a(f's_lshl_b32 s{S_GO}, s{S_FG}, 8'); a(f's_mul_i32 s{S_T}, s{S_W}, {4*3584}'); a(f's_add_u32 s{S_GO}, s{S_GO}, s{S_T}')
    a(f's_lshl_b32 s{S_M0}, s{S_W}, 10')
    def w_dma(c):
        slot = c % 4
        for gu in range(2):
            srd = SRD_G if gu == 0 else SRD_U
            for m in range(4):
                a(f's_add_u32 m0, s{S_M0}, {slot*32768 + gu*16384 + m*4096}')
                a(f's_add_u32 s{S_T}, s{S_GO}, {(c*64 + m*16)*3584}')
                a.vmem(f'buffer_load_dwordx4 v{WOFF}, s[{srd}:{srd+3}], s{S_T} offen lds', ('W', c))
    w_dma(0); w_dma(1)
    a.wait_vm('mod')
    for c_ in range(2):
        a(f'v_add_f32 v{128+c_}, v{128+c_}, v{130+c_}'); a(f'v_add_f32 v{132+c_}, v{132+c_}, v{134+c_}')
        a(f'v_add_f32 v{128+c_}, v{128+c_}, v{132+c_}')
        a(f'v_add_f32 v{136+c_}, v{136+c_}, v{138+c_}'); a(f'v_add_f32 v{140+c_}, v{140+c_}, v{142+c_}')
        a(f'v_add_f32 v{136+c_}, v{136+c_}, v{140+c_}')
        round_bf16(a, 128+c_, 144); round_bf16(a, 136+c_, 144)
        a(f'v_add_f32 v{136+c_}, 1.0, v{136+c_}'); round_bf16(a, 136+c_, 144)
    a(f'v_add_u32 v190, {GSBASE}, v190')
    a.lds('ds_write_b64 v190, v[136:137]'); a.lds('ds_write_b64 v190, v[128:129] offset:2048')
    w_dma(2)
    a.wait_vm('X')
    w_dma(3)
    a('v_mov_b32 v168, 0'); a('v_mov_b32 v169, 0'); a('v_mov_b32 v170, 0'); a('v_mov_b32 v171, 0')
    a('v_mov_b32 v172, 0x3f803f80')
    for r in range(0, 128, 2):
        a(f'v_dot2_f32_bf16 v168, v{r}, v172, v168'); a(f'v_dot2_f32_bf16 v170, v{r}, v{r}, v170')
        a(f'v_dot2_f32_bf16 v169, v{r+1}, v172, v169'); a(f'v_dot2_f32_bf16 v171, v{r+1}, v{r+1}, v171')
    a('s_nop 2')
    a('v_add_f32 v168, v168, v169'); a('v_add_f32 v170, v170, v171')
    xhalf_sum(a, 168, 169); xhalf_sum(a, 170, 171)
    a(f'v_mul_f32 v168, {f2u(1/512)}, v168')
    a(f'v_mul_f32 v170, {f2u(1/512)}, v170')
    a('v_fma_f32 v170, -v168, v168, v170')
    a('v_max_f32 v170, 0, v170')
    round_bf16(a, 170, 169)
    a(f'v_add_f32 v170, {f2u(1e-5)}, v170'); round_bf16(a, 170, 169)
    a('v_sqrt_f32 v170, v170'); a('s_nop 0'); round_bf16(a, 170, 169)
    a(f'v_rcp_f32 v{RS}, v170')
    round_bf16(a, 168, 169)
    a(f'v_mul_f32 v{MR}, v168, v{RS}'); a(f'v_sub_f32 v{MR}, 0, v{MR}')
    def gs_read(s):
        b = GSR[s&1]
        a.lds(f'ds_read_b128 v[{b}:{b+3}], v{GSA} offset:{s*64}', ('G', s))
        a.lds(f'ds_read_b128 v[{b+4}:{b+7}], v{GSA} offset:{s*64+32}', ('G', s))
        a.lds(f'ds_read_b128 v[{b+8}:{b+11}], v{GSA} offset:{s*64+2048}', ('G', s))
        a.lds(f'ds_read_b128 v[{b+12}:{b+15}], v{GSA} offset:{s*64+2048+32}', ('G', s))
    def w_read_ops(s):
        ops = []
        c = s//4; slot = c % 4
        for gu in range(2):
            for dt in range(4):
                for u in range(2):
                    off = slot*32768 + gu*16384 + (s%4)*4096 + u*2048
                    r = WF[s&1] + (gu*4+dt)*4 + 2*u
                    ops.append(f'ds_read_b64_tr_b16 {ar(r,2)}, v{WAD[off>>16]+dt} offset:{off & 65535}')
        return ops
    def modulate_ops(s):
        ops = []; b = GSR[s&1]
        for k in range(4):
            x = 4*s+k; t0 = TT + 2*(k % 4); t1 = t0+1
            ops += [f'v_lshlrev_b32 v{t0}, 16, v{x}', f'v_and_b32 v{t1}, 0xffff0000, v{x}',
                    f'v_fma_f32 v{t0}, v{t0}, v{RS}, v{MR}', f'v_fma_f32 v{t1}, v{t1}, v{RS}, v{MR}',
                    f'v_fma_f32 v{t0}, v{t0}, v{b+2*k}, v{b+8+2*k}', f'v_fma_f32 v{t1}, v{t1}, v{b+2*k+1}, v{b+8+2*k+1}',
                    f'v_cvt_pk_bf16_f32 v{HF[s&1]+k}, v{t0}, v{t1}']
        return ops
    a.wait_vm(('W', 0)); a.wait_lg0(); a('s_barrier')
    gs_read(0); gs_read(1)
    for op in w_read_ops(0): a.lds(op, ('Wf', 0))
    a.wait_lg(('G', 0))
    for op in modulate_ops(0): a(op)
    for s in range(32):
        if s % 4 == 3 and s < 31:
            c = (s+1)//4
            a.wait_vm(('W', c)); a.wait_lg0(); a('s_barrier')
            if c+3 < 8: w_dma(c+3)
        else:
            a.wait_lg(('Wf', s))
        if s+2 < 32: gs_read(s+2)
        if s+1 < 32:
            a.wait_lg(('G', s+1))
            wr = w_read_ops(s+1); md = modulate_ops(s+1)
        else: wr, md = [], []
        a('s_nop 1')
        for g in range(8):
            d = ar(ACC(g), 16)
            a(mfma(d, ar(WF[s&1]+g*4,4), vr(HF[s&1],4), '0' if s == 0 else d))
            for op in wr[2*g:2*g+2]: a.lds(op, ('Wf', s+1))
            lo = (28*g)//8; hi = (28*(g+1))//8
            for op in md[lo:hi]: a(op)
    a.nop(16)
    a(f's_mul_i32 s{S_XO}, s{S_RT}, {112*1024}'); a(f's_lshl_b32 s{S_T}, s{S_FG}, 13'); a(f's_add_u32 s{S_XO}, s{S_XO}, s{S_T}')
    a(f's_mov_b32 s{S_T2}, {f2u(-LOG2E)}')
    cnt = 0
    for mt in range(4):
        for t in range(2):
            b = 32*(cnt % 2); cnt += 1
            G = b; U = b+8; E = b+16; O_ = b+24
            for k in range(8): a(f'v_accvgpr_read_b32 v{G+k}, a{ACC(mt)+8*t+k}')
            for k in range(8): a(f'v_accvgpr_read_b32 v{U+k}, a{ACC(4+mt)+8*t+k}')
            for k in range(0, 8, 2):
                a(f'v_cvt_pk_bf16_f32 v{E}, v{G+k}, v{G+k+1}'); a(f'v_cvt_pk_bf16_f32 v{E+1}, v{U+k}, v{U+k+1}')
                a(f'v_lshlrev_b32 v{G+k}, 16, v{E}'); a(f'v_and_b32 v{G+k+1}, 0xffff0000, v{E}')
                a(f'v_lshlrev_b32 v{U+k}, 16, v{E+1}'); a(f'v_and_b32 v{U+k+1}, 0xffff0000, v{E+1}')
            for k in range(8): a(f'v_mul_f32 v{E+k}, s{S_T2}, v{G+k}')
            for k in range(8): a(f'v_exp_f32 v{E+k}, v{E+k}')
            for k in range(8): a(f'v_add_f32 v{E+k}, 1.0, v{E+k}')
            for k in range(8): a(f'v_rcp_f32 v{E+k}, v{E+k}')
            for k in range(8): a(f'v_mul_f32 v{G+k}, v{G+k}, v{E+k}')
            for k in range(0, 8, 2):
                a(f'v_cvt_pk_bf16_f32 v{E}, v{G+k}, v{G+k+1}')
                a(f'v_lshlrev_b32 v{G+k}, 16, v{E}'); a(f'v_and_b32 v{G+k+1}, 0xffff0000, v{E}')
            for k in range(8): a(f'v_mul_f32 v{G+k}, v{G+k}, v{U+k}')
            for k in range(4): a(f'v_cvt_pk_bf16_f32 v{O_+k}, v{G+2*k}, v{G+2*k+1}')
            ks = 2*mt+t
            a(f's_add_u32 s{S_T}, s{S_XO}, {(ks//4)*4096}')
            a(f'buffer_store_dwordx4 v[{O_}:{O_+3}], v{LOFF}, s[{SRD_O}:{SRD_O+3}], s{S_T} offen offset:{(ks%4)*1024}')
    stamp_end(a, stamp, S_W, 2)
    a('s_waitcnt vmcnt(0)')
    a.label(f'{N}_END')
    a('s_endpgm')
    return a.text(), kernel_desc(name, 512, 96, 256), f'{name} grid=(224,1,1) block=(256,1,1) lds=135168'
```

```python
import sys
from gen import *
HEAD = open('adaLN_cond__mha_block_cached__swiglu_ffn__prompt.s.ref').read().split('; Override launch')[0] if __import__('os').path.exists('adaLN_cond__mha_block_cached__swiglu_ffn__prompt.s.ref') else ''
def assemble(parts, path):
    s = HEAD
    for t, d, l in parts: s += f'; @launch kernel={l}\n'
    s += '.amdgcn_target "amdgcn-amd-amdhsa--gfx950"\n'
    for t, d, l in parts: s += t
    s += '.section .rodata,"a"\n'
    for t, d, l in parts: s += d
    open(path, 'w').write(s)
if __name__ == '__main__':
    import gen_b, gen_t
    stamp = len(sys.argv) > 2 and sys.argv[2] == 'stamp'
    parts = [gen_ka(), gen_b.gen_kb(stamp=stamp), gen_t.gen_proj('C', stamp=stamp), gen_t.gen_kd(stamp=stamp), gen_t.gen_proj('E', stamp=stamp)]
    assemble(parts, sys.argv[1] if len(sys.argv) > 1 else 'full.s')
```

```python
import sys
from gen import *
HEAD = open('adaLN_cond__mha_block_cached__swiglu_ffn__prompt.s.ref').read().split('; Override launch')[0] if __import__('os').path.exists('adaLN_cond__mha_block_cached__swiglu_ffn__prompt.s.ref') else ''
def assemble(parts, path):
    s = HEAD
    for t, d, l in parts: s += f'; @launch kernel={l}\n'
    s += '.amdgcn_target "amdgcn-amd-amdhsa--gfx950"\n'
    for t, d, l in parts: s += t
    s += '.section .rodata,"a"\n'
    for t, d, l in parts: s += d
    open(path, 'w').write(s)
if __name__ == '__main__':
    import gen_b, gen_t
    stamp = len(sys.argv) > 2 and sys.argv[2] == 'stamp'
    osc = sys.argv[3] if len(sys.argv) > 3 else ''
    if osc == '-': osc = ''
    for kv in sys.argv[4:]:
        k, v = kv.split('='); gen_b.CFG[k] = eval(v)
    parts = [gen_ka(stamp=stamp), gen_b.gen_kb(stamp=stamp, OSC=osc), gen_t.gen_proj('C', stamp=stamp), gen_t.gen_kd(stamp=stamp), gen_t.gen_proj('E', stamp=stamp)]
    assemble(parts, sys.argv[1] if len(sys.argv) > 1 else 'full.s')
```

```python
import sys
from asmlib import *

WS_MODP = 0
WS_XN   = 0x10000
WS_O    = 0x400000
WS_X1   = 0x1400000
WS_ACT  = 0x1800000
WS_ST2  = 0x1700000
WS_STAMP= 0x2000000
KA_X, KA_K, KA_V, KA_WQ, KA_WO, KA_BX, KA_WG, KA_WU, KA_WD, KA_C, KA_WMOD, KA_OUT, KA_DBG, KA_WS = [8*i for i in range(14)]
LOG2E = 1.4426950408889634

def f2u(x):
    import struct
    return struct.unpack('<I', struct.pack('<f', x))[0]

def round_bf16(a, x, t):
    a(f'v_cvt_pk_bf16_f32 v{t}, v{x}, v{x}')
    a(f'v_and_b32 v{x}, 0xffff0000, v{t}')

def xhalf_sum(a, x, t):
    a(f'v_mov_b32 v{t}, v{x}')
    a('s_nop 1')
    a(f'v_permlane32_swap_b32 v{t}, v{x}')
    a('s_nop 1')
    a(f'v_add_f32 v{x}, v{x}, v{t}')

def wave_allreduce_add(a, x, t):
    for r in (8, 4, 2, 1):
        a('s_nop 1')
        a(f'v_add_f32_dpp v{x}, v{x}, v{x} row_ror:{r} row_mask:0xf bank_mask:0xf')
    a(f'v_mov_b32 v{t}, v{x}'); a('s_nop 1')
    a(f'v_permlane16_swap_b32 v{t}, v{x}'); a('s_nop 1')
    a(f'v_add_f32 v{x}, v{x}, v{t}')
    a(f'v_mov_b32 v{t}, v{x}'); a('s_nop 1')
    a(f'v_permlane32_swap_b32 v{t}, v{x}'); a('s_nop 1')
    a(f'v_add_f32 v{x}, v{x}, v{t}')

def gen_ka(stamp=False, SC='sc1', PF=True):
    a = Asm()
    a.raw(kernel_head('ka_kernel'))
    a('s_cmp_ge_u32 s2, 256')
    a('s_cbranch_scc1 KA_END')
    a(f's_load_dwordx2 s[4:5], s[0:1], {KA_WS}')
    a(f's_load_dwordx2 s[6:7], s[0:1], {KA_C}')
    a(f's_load_dwordx2 s[8:9], s[0:1], {KA_WMOD}')
    a(f's_load_dwordx2 s[10:11], s[0:1], {KA_X}')
    a(f's_load_dwordx2 s[50:51], s[0:1], {KA_WQ}')
    a(f's_load_dwordx2 s[52:53], s[0:1], {KA_K}')
    a(f's_load_dwordx2 s[54:55], s[0:1], {KA_V}')
    if stamp: a('s_memrealtime s[40:41]')
    a('v_lshrrev_b32 v1, 6, v0'); a('v_and_b32 v2, 63, v0')
    a('s_nop 0'); a('v_readfirstlane_b32 s3, v1')
    a('v_lshlrev_b32 v3, 4, v2')
    a('s_waitcnt lgkmcnt(0)')
    a.srd(28, 10, 0, 2097152)
    a.srd(32, 4, WS_XN, 2097152)
    a('s_lshl_b32 s24, s2, 3'); a('s_lshl_b32 s25, s3, 1'); a('s_add_u32 s24, s24, s25'); a('s_lshl_b32 s24, s24, 10')
    a('buffer_load_dwordx4 v[8:11], v3, s[28:31], s24 offen')
    a('buffer_load_dwordx4 v[12:15], v3, s[28:31], s24 offen offset:1024')
    a('s_cmp_ge_u32 s2, 192'); a('s_cbranch_scc1 KA_NOMOD1')
    a('s_mul_i32 s26, s2, 1366'); a('s_lshr_b32 s26, s26, 16')
    a('s_mul_i32 s27, s26, 48'); a('s_sub_u32 s27, s2, s27')
    a('v_and_b32 v4, 7, v0'); a('v_lshlrev_b32 v4, 4, v4')
    a('v_lshrrev_b32 v5, 3, v0')
    a('v_mul_u32_u24 v6, 24576, v5'); a('v_add_u32 v6, v6, v4')
    a('v_add_u32 v7, 6144, v6'); a('v_add_u32 v60, 12288, v6'); a('v_add_u32 v61, 18432, v6')
    a('v_lshlrev_b32 v62, 3, v5')
    a(f's_mul_i32 s36, s26, {128*6144}'); a('s_lshl_b32 s37, s27, 7'); a('s_add_u32 s36, s36, s37')
    a('s_lshl_b32 s37, s26, 8')
    a.srd(12, 6, 0, 1024); a.srd(16, 8, 0, 3145728); a.srd(20, 4, WS_MODP, 49152)
    a('buffer_load_dwordx2 v[16:17], v62, s[12:15], s37 offen')
    for i, r in enumerate([6, 7, 60, 61]):
        a(f'buffer_load_dwordx4 v[{20+4*i}:{23+4*i}], v{r}, s[16:19], s36 offen')
    a.label('KA_NOMOD1')
    if PF:
        a.srd(56, 50, 0, 4194304)
        a('s_and_b32 s38, s2, 7'); a('s_lshr_b32 s39, s2, 3'); a('s_and_b32 s44, s39, 3'); a('s_lshl_b32 s44, s44, 3'); a('s_add_u32 s38, s38, s44')
        a('s_lshr_b32 s39, s39, 2')
        a('v_lshrrev_b32 v63, 4, v2'); a('v_lshlrev_b32 v63, 13, v63'); a('v_and_b32 v64, 15, v2'); a('v_lshlrev_b32 v64, 4, v64'); a('v_add_u32 v63, v63, v64')
        a('s_lshl_b32 s44, s39, 6'); a('s_lshl_b32 s45, s3, 4'); a('s_add_u32 s44, s44, s45'); a('s_lshl_b32 s44, s44, 13'); a('s_lshl_b32 s45, s38, 8'); a('s_add_u32 s44, s44, s45')
        for i in range(4):
            a(f'buffer_load_dwordx4 v[{68+4*i}:{71+4*i}], v63, s[56:59], s44 offen'); a('s_add_u32 s44, s44, 32768')
        a('s_lshl_b32 s45, s38, 19')
        a.srd(56, 52, 's45', 524288)
        a('s_lshl_b32 s44, s39, 13'); a('s_lshl_b32 s46, s3, 11'); a('s_add_u32 s44, s44, s46')
        a('buffer_load_dwordx4 v[84:87], v3, s[56:59], s44 offen'); a('buffer_load_dwordx4 v[88:91], v3, s[56:59], s44 offen offset:1024')
        a.srd(56, 54, 's45', 524288)
        a('s_mul_i32 s44, s39, 6144'); a('s_mul_i32 s46, s3, 1536'); a('s_add_u32 s44, s44, s46')
        a('buffer_load_dwordx4 v[92:95], v3, s[56:59], s44 offen'); a('buffer_load_dwordx4 v[96:99], v3, s[56:59], s44 offen offset:512')
    npf = 8 if PF else 0
    a('s_cmp_ge_u32 s2, 192'); a('s_cbranch_scc1 KA_W1')
    a(f's_waitcnt vmcnt({5+npf})'); a('s_branch KA_W2')
    a.label('KA_W1'); a(f's_waitcnt vmcnt({npf})')
    a.label('KA_W2')
    for r in range(2):
        src = 8+4*r; X = 100+8*r
        for k in range(4):
            a(f'v_lshlrev_b32 v{X+2*k}, 16, v{src+k}'); a(f'v_and_b32 v{X+2*k+1}, 0xffff0000, v{src+k}')
        m = 116+r; t = 118
        a(f'v_add_f32 v{m}, v{X}, v{X+1}')
        for k in range(2, 8): a(f'v_add_f32 v{m}, v{m}, v{X+k}')
    for r in range(2): wave_allreduce_add(a, 116+r, 118)
    for r in range(2):
        X = 100+8*r; m = 116+r; v = 120+r
        a(f'v_mul_f32 v{m}, {f2u(1/512)}, v{m}')
        a(f'v_sub_f32 v118, v{X}, v{m}'); a(f'v_mul_f32 v{v}, v118, v118')
        for k in range(1, 8):
            a(f'v_sub_f32 v118, v{X+k}, v{m}'); a(f'v_fmac_f32 v{v}, v118, v118')
    for r in range(2): wave_allreduce_add(a, 120+r, 118)
    for r in range(2):
        X = 100+8*r; m = 116+r; v = 120+r
        a(f'v_mul_f32 v{v}, {f2u(1/512)}, v{v}')
        round_bf16(a, v, 118)
        a(f'v_add_f32 v{v}, {f2u(1e-5)}, v{v}'); round_bf16(a, v, 118)
        a(f'v_sqrt_f32 v{v}, v{v}'); a('s_nop 0'); round_bf16(a, v, 118)
        a(f'v_rcp_f32 v{v}, v{v}'); round_bf16(a, m, 118)
        for k in range(4):
            a(f'v_sub_f32 v118, v{X+2*k}, v{m}'); a(f'v_sub_f32 v119, v{X+2*k+1}, v{m}')
            a('v_cvt_pk_bf16_f32 v122, v118, v119')
            a('v_lshlrev_b32 v118, 16, v122'); a('v_and_b32 v119, 0xffff0000, v122')
            a(f'v_mul_f32 v118, v118, v{v}'); a(f'v_mul_f32 v119, v119, v{v}')
            a(f'v_cvt_pk_bf16_f32 v{8+4*r+k}, v118, v119')
    a('v_lshlrev_b32 v118, 7, v2'); a('s_lshl_b32 s44, s3, 5'); a('s_add_u32 s44, s44, 8192'); a('v_add_u32 v118, s44, v118')
    a('ds_write_b128 v118, v[8:11]'); a('ds_write_b128 v118, v[12:15] offset:16')
    a('s_cmp_ge_u32 s2, 192'); a('s_cbranch_scc1 KA_NOMOD2')
    a(f's_waitcnt vmcnt({npf})')
    a('v_lshlrev_b32 v64, 16, v16'); a('v_and_b32 v65, 0xffff0000, v16'); a('v_lshlrev_b32 v66, 16, v17'); a('v_and_b32 v67, 0xffff0000, v17')
    for i in range(4): a(f'v_mul_f32 v{36+i}, {f2u(-LOG2E)}, v{64+i}')
    for i in range(4): a(f'v_exp_f32 v{36+i}, v{36+i}')
    a('s_nop 0')
    for i in range(4): a(f'v_add_f32 v{36+i}, 1.0, v{36+i}')
    for i in range(4): a(f'v_rcp_f32 v{36+i}, v{36+i}')
    a('s_nop 0')
    for i in range(4): a(f'v_mul_f32 v{64+i}, v{64+i}, v{36+i}')
    for i in range(4): round_bf16(a, 64+i, 40)
    for i in range(4):
        for j in range(4):
            w = 20+4*i+j
            a(f'v_lshlrev_b32 v36, 16, v{w}'); a(f'v_and_b32 v37, 0xffff0000, v{w}')
            if i == 0:
                a(f'v_mul_f32 v{42+2*j}, v36, v64'); a(f'v_mul_f32 v{43+2*j}, v37, v64')
            else:
                a(f'v_fmac_f32 v{42+2*j}, v36, v{64+i}'); a(f'v_fmac_f32 v{43+2*j}, v37, v{64+i}')
    a('v_lshlrev_b32 v36, 8, v5'); a('v_lshlrev_b32 v37, 1, v4'); a('v_add_u32 v36, v36, v37')
    a('ds_write_b64 v36, v[42:43]'); a('ds_write_b64 v36, v[44:45] offset:8'); a('ds_write_b64 v36, v[46:47] offset:16'); a('ds_write_b64 v36, v[48:49] offset:24')
    a.label('KA_NOMOD2')
    a('s_waitcnt lgkmcnt(0)')
    a('s_barrier')
    a('v_lshlrev_b32 v118, 4, v0'); a('v_add_u32 v119, 8192, v118')
    a('ds_read_b128 v[8:11], v119'); a('ds_read_b128 v[12:15], v119 offset:4096')
    a('v_lshrrev_b32 v119, 3, v0'); a('v_lshlrev_b32 v119, 9, v119'); a('v_and_b32 v120, 7, v0'); a('v_lshlrev_b32 v120, 4, v120'); a('v_add_u32 v119, v119, v120')
    a('s_lshr_b32 s44, s2, 2'); a('s_lshl_b32 s44, s44, 15'); a('s_and_b32 s45, s2, 3'); a('s_lshl_b32 s45, s45, 7'); a('s_add_u32 s44, s44, s45')
    a('s_add_u32 s45, s44, 16384')
    a('s_waitcnt lgkmcnt(0)')
    a(f'buffer_store_dwordx4 v[8:11], v119, s[32:35], s44 offen {SC}')
    a(f'buffer_store_dwordx4 v[12:15], v119, s[32:35], s45 offen {SC}')
    a('s_cmp_ge_u32 s2, 192'); a('s_cbranch_scc1 KA_FIN')
    a('v_cmp_gt_u32 vcc, 64, v0')
    a('s_and_saveexec_b64 s[46:47], vcc')
    a('s_cbranch_execz KA_FIN')
    a('v_lshlrev_b32 v3, 2, v0')
    for r in range(32): a(f'ds_read_b32 v{20+r}, v3 offset:{256*r}')
    a('s_waitcnt lgkmcnt(0)')
    n = 32
    while n > 1:
        for r in range(n//2): a(f'v_add_f32 v{20+r}, v{20+r}, v{20+r+n//2}')
        n //= 2
    a('s_mul_i32 s36, s26, 12288'); a('s_lshl_b32 s37, s27, 8'); a('s_add_u32 s36, s36, s37')
    a(f'buffer_store_dword v20, v3, s[20:23], s36 offen {SC}')
    a.label('KA_FIN')
    if stamp:
        a('s_mov_b64 exec, -1')
        a('s_waitcnt vmcnt(0)')
        a('s_memrealtime s[42:43]')
        a('s_waitcnt lgkmcnt(0)')
        a.srd(44, 4, WS_STAMP + 4*131072, 131072)
        a('v_mov_b32 v0, s40'); a('v_mov_b32 v1, s42'); a('v_mov_b32 v20, 0')
        a('s_lshl_b32 s48, s2, 8')
        a('s_mov_b64 exec, 1')
        a('buffer_store_dwordx2 v[0:1], v20, s[44:47], s48 offen')
    a('s_waitcnt vmcnt(0)')
    a.label('KA_END')
    a('s_endpgm')
    return a.text(), kernel_desc('ka_kernel', 128, 64, 128), 'ka_kernel grid=(256,1,1) block=(256,1,1) lds=16384'
```

```python
from asmlib import *
from gen import *

CFG = dict(nodma=False, nobar=False, stagger=False, budget=24, backlog=3, pre_x=14, pre_w=16, qp_slots=(0,2,4,6), verbose=False,
  vrd=[0,1,1,2,3,3,4,5,5,6,7,7,8,9,9,10], krd=[17,18,19,21,22,23,25,26], dma=[17,20,24,28], pfgap=12)
OFFSET = 96.0
THR = 2.0**64

S   = [0, 32]
NEGM = 64
P   = [96, 112]
T   = 128
KAD = 224
VAD = 232
VOK = 236
VOV = 240
LT  = [241, 242]
LR  = [243, 244]
LANE = 245
TMP = 246
def OA(q, dt): return (q*4+dt)*16
def QF(q, s): return 128 + (q*8+s)*4
def KF(s): return 192 + 4*s
def VF(t, dt): return 224 + (t*4+dt)*4

S_W=3; S_H=36; S_QB=37; S_RT=38; S_KOFF=39; S_VOFF=40; S_M0=41; S_CNT=42; S_T=43; S_THR=44; S_RET=46
S_PF=50; S_PFM=51
SRD_K=12; SRD_V=16; SRD_WQ=20; SRD_XN=24; SRD_O=28; SRD_MP=32
VBASE = 65536
GSBASE = 131072

def mfma(d, a_, b, c):
    return f'v_mfma_f32_32x32x16_bf16 {d}, {a_}, {b}, {c}'

def softmax_ops(p):
    pairs = []
    for q in range(2):
        for pr in range(8):
            t0 = T + 2*((q*8+pr) % 4); t1 = t0+1
            r = S[p] + q*16 + 2*pr
            e0 = f'v_exp_f32 v{t0}, v{r}'
            e1 = f'v_exp_f32 v{t1}, v{r+1}'
            if pr == 0:
                adds = [f'v_add_f32 v{LT[q]}, v{t0}, v{t1}']
            else:
                adds = [f'v_add_f32 v{LT[q]}, v{LT[q]}, v{t0}', f'v_add_f32 v{LT[q]}, v{LT[q]}, v{t1}']
            cvt = f'v_cvt_pk_bf16_f32 v{P[p]+q*8+pr}, v{t0}, v{t1}'
            pairs.append((e0, e1, adds, cvt))
    return pairs

EXP_GAP = list(range(16)) + [16,16,17,18,19,19,20,21,22,22,23,24,25,25,26,27]
VRD_GAP = [0,0,1,2,3,3,4,5,6,6,7,8,9,9,10,11]
KRD_GAP = [17,18,19,20,21,22,23,24]
DMA_GAP = [17,20,24,28]

def k_read(s, sub):
    slot = (sub >> 1) & 3
    return f'ds_read_b128 {ar(KF(s),4)}, v{KAD+s} offset:{slot*16384 + (sub&1)*8192}'
def v_read(t, dt, u, sub):
    slot = (sub >> 1) & 3
    return f'ds_read_b64_tr_b16 {ar(VF(t,dt)+2*u,2)}, v{VAD+dt} offset:{slot*16384 + (sub&1)*8192 + (16*t+8*u)*256}'

def dma_kv(a, which, tile, i):
    slot = tile & 3
    out = []
    if i == 0:
        base = (0 if which == 'K' else VBASE) + slot*16384
        out.append(f's_add_u32 m0, s{S_M0}, {base}')
    return out

def gen_iter(a, j, do_qk=True, do_pv=True, do_kread=True, do_vread=True, do_sm=True,
             barrier=None, dmaK=None, dmaV=None, lsum_prev=True, stubs=None, cfg=None, pf=False, wshift=0, pv_zero=False):
    p = j & 1
    B = CFG['budget']
    mem = [[] for _ in range(33)]
    val = [[] for _ in range(33)]
    cost = [0]*33
    mf = []
    for s in range(8):
        for q in range(2):
            d = vr(S[1-p]+q*16, 16)
            c = vr(NEGM+q*16, 16) if s == 0 else d
            mf.append(mfma(d, ar(KF(s),4), ar(QF(q,s),4), c) if do_qk else None)
    for t in range(2):
        for dt in range(4):
            for q in range(2):
                d = ar(OA(q,dt),16)
                mf.append(mfma(d, ar(VF(t,dt),4), vr(P[1-p]+q*8+t*4,4), '0' if (pv_zero and t == 0) else d) if do_pv else None)
    cost[15] += 4; cost[31] += 8
    if barrier is not None: cost[15] += 4
    if do_vread:
        k = 0
        for t in range(2):
            for dt in range(4):
                for u in range(2):
                    g = CFG['vrd'][k]; mem[g].append(v_read(t, dt, u, j-1)); cost[g] += 4; k += 1
    if do_kread:
        for s in range(8):
            g = CFG['krd'][s]; mem[g].append(k_read(s, j+2)); cost[g] += 4
    for which, tile in (('K', dmaK), ('V', dmaV)):
        if tile is None or CFG['nodma']: continue
        slot = tile & 3
        base = (0 if which == 'K' else VBASE) + slot*16384
        srd = SRD_K if which == 'K' else SRD_V
        soff = S_KOFF if which == 'K' else S_VOFF
        DG = [g + wshift for g in CFG['dma']]
        mem[DG[0]-1].append(f's_add_u32 m0, s{S_M0}, {base}'); cost[DG[0]-1] += 2
        for i in range(4):
            vo = VOK+i if which == 'K' else VOV
            mem[DG[i]].insert(0, f'buffer_load_dwordx4 v{vo}, s[{srd}:{srd+3}], s{soff} offen offset:{1024*i} lds'); cost[DG[i]] += 15
        mem[DG[3]].append(f's_add_u32 s{soff}, s{soff}, 16384'); cost[DG[3]] += 2
    if pf and not CFG['nodma']:
        g = CFG['pfgap']+wshift
        mem[g-1].append(f's_mov_b32 m0, s{S_PFM}'); cost[g-1] += 2
        mem[g].insert(0, f'buffer_load_dwordx4 v221, s[56:59], s{S_PF} offen lds'); cost[g] += 15
        mem[g].append(f's_add_u32 s{S_PF}, s{S_PF}, 0x100000'); cost[g] += 2
    if lsum_prev:
        val[0].append(f'v_add_f32 v{LR[0]}, v{LR[0]}, v{LT[0]}'); val[0].append(f'v_add_f32 v{LR[1]}, v{LR[1]}, v{LT[1]}'); cost[0] += 8
    if do_sm:
        prs = softmax_ops(p)
        exps = []
        for k, (e0, e1, adds, cvt) in enumerate(prs): exps += [(k, 0, e0), (k, 1, e1)]
        post = []
        ei = 0
        inflight = 0
        g = 0
        done_pairs = 0
        pair_gap = {}
        def can_exp():
            if ei >= len(exps): return False
            k, h, txt = exps[ei]
            if h == 0 and k >= 4 and any(pp[2] == k-4 for pp in post): return False
            return cost[g] + 8 <= B
        def put_exp():
            nonlocal ei
            k, h, txt = exps[ei]
            val[g].append(txt); cost[g] += 8; ei += 1
            if h == 1:
                e0, e1, adds, cvt = prs[k]
                for x in adds: post.append((g+1, x, k))
                post.append((g+1, cvt, k))
        while (ei < len(exps) or post) :
            assert g < 31, ('softmax does not fit', cost)
            nready = sum(1 for pp in post if pp[0] <= g)
            if nready <= CFG['backlog'] and can_exp(): put_exp()
            while True:
                rem = B - cost[g]
                if post and post[0][0] <= g and rem >= 4:
                    val[g].append(post.pop(0)[1]); cost[g] += 4
                elif can_exp(): put_exp()
                else: break
            g += 1
        last = g-1
        gchk = max(last+1, 29)
        assert gchk <= 30
        val[gchk].append(f'v_max_f32 v{TMP}, v{LT[0]}, v{LT[1]}')
        val[31].append(f'v_cmp_lt_f32 vcc, s{S_THR}, v{TMP}')
        if CFG.get('verbose'): print('iter', j, 'costs', cost[:32], 'last', last)
    for g in range(32):
        if g == 0:
            a('s_waitcnt lgkmcnt(0)')
        if g == 16:
            if barrier is not None:
                a(f's_waitcnt vmcnt({barrier}) lgkmcnt(0)')
                if not CFG['nobar']: a('s_barrier')
            else:
                a('s_waitcnt lgkmcnt(0)')
        if mf[g] is not None: a(mf[g])
        for x in mem[g]: a(x)
        for x in val[g]: a(x)
    if do_sm:
        st = a.newlabel('RSTUB'); bk = a.newlabel('RBACK')
        a(f's_cbranch_vccnz {st}')
        a.label(bk)
        stubs.append((st, bk, p))

def gen_rare(a, p):
    a.label(f'RARE_{p}')
    a.nop(20)
    m = TMP+1; t2 = TMP+2; dl = TMP+3; f = TMP+4; x = TMP+5
    for q in range(2):
        sc = S[p]+q*16; sn = S[1-p]+q*16
        a(f'v_max3_f32 v{m}, v{sc}, v{sc+1}, v{sc+2}')
        for r in range(3, 15, 2):
            a(f'v_max3_f32 v{m}, v{m}, v{sc+r}, v{sc+r+1}')
        a(f'v_max_f32 v{m}, v{m}, v{sc+15}')
        a(f'v_mov_b32 v{t2}, v{m}')
        a('s_nop 1')
        a(f'v_permlane32_swap_b32 v{t2}, v{m}')
        a('s_nop 1')
        a(f'v_max_f32 v{m}, v{m}, v{t2}')
        a(f'v_add_f32 v{dl}, {f2u(OFFSET)}, v{m}')
        a(f'v_max_f32 v{dl}, 0, v{dl}')
        a(f'v_sub_f32 v{f}, 0, v{dl}')
        a(f'v_exp_f32 v{f}, v{f}')
        a('s_nop 0')
        for dt in range(4):
            for r in range(16):
                ra = OA(q,dt)+r
                a(f'v_accvgpr_read_b32 v{x}, a{ra}')
                a(f'v_mul_f32 v{x}, v{x}, v{f}')
                a(f'v_accvgpr_write_b32 a{ra}, v{x}')
        a(f'v_mul_f32 v{LR[q]}, v{LR[q]}, v{f}')
        for r in range(16):
            a(f'v_sub_f32 v{NEGM+q*16+r}, v{NEGM+q*16+r}, v{dl}')
            a(f'v_sub_f32 v{sn+r}, v{sn+r}, v{dl}')
            a(f'v_sub_f32 v{sc+r}, v{sc+r}, v{dl}')
        for pr in range(8):
            a(f'v_exp_f32 v{T}, v{sc+2*pr}')
            a(f'v_exp_f32 v{T+1}, v{sc+2*pr+1}')
            a('s_nop 0')
            if pr == 0:
                a(f'v_add_f32 v{LT[q]}, v{T}, v{T+1}')
            else:
                a(f'v_add_f32 v{LT[q]}, v{LT[q]}, v{T}')
                a(f'v_add_f32 v{LT[q]}, v{LT[q]}, v{T+1}')
            a(f'v_cvt_pk_bf16_f32 v{P[p]+q*8+pr}, v{T}, v{T+1}')
    a('s_nop 1')
    a(f's_setpc_b64 s[{S_RET}:{S_RET+1}]')

def gen_kb(stamp=False, PF=True, OSC=''):
    a = Asm()
    a.raw(kernel_head('kb_kernel'))
    a('s_cmp_ge_u32 s2, 256')
    a('s_cbranch_scc1 KB_END')
    a(f's_load_dwordx2 s[4:5], s[0:1], {KA_WS}')
    a(f's_load_dwordx2 s[6:7], s[0:1], {KA_K}')
    a(f's_load_dwordx2 s[8:9], s[0:1], {KA_V}')
    a(f's_load_dwordx2 s[10:11], s[0:1], {KA_WQ}')
    nst = [0]
    def st():
        if stamp:
            a(f's_memtime s[{64+2*nst[0]}:{65+2*nst[0]}]'); a(f's_memrealtime s[{76+2*nst[0]}:{77+2*nst[0]}]'); nst[0] += 1
    if stamp:
        a('s_memrealtime s[60:61]')
    st()
    a(f's_and_b32 s{S_H}, s2, 31')
    a(f's_lshr_b32 s{S_QB}, s2, 5')
    a('v_lshrrev_b32 v1, 6, v0')
    a(f'v_and_b32 v{LANE}, 63, v0')
    a('s_nop 0')
    a(f'v_readfirstlane_b32 s{S_W}, v1')
    a('s_nop 3')
    a(f's_lshl_b32 s{S_RT}, s{S_QB}, 3')
    a(f's_lshl_b32 s{S_T}, s{S_W}, 1')
    a(f's_add_u32 s{S_RT}, s{S_RT}, s{S_T}')
    a(f's_lshl_b32 s{S_M0}, s{S_W}, 12')
    a(f's_mov_b32 s{S_KOFF}, s{S_M0}')
    a(f's_mov_b32 s{S_VOFF}, s{S_M0}')
    a(f's_mov_b32 s{S_THR}, {f2u(THR)}')
    if PF:
        a(f's_load_dwordx2 s[56:57], s[0:1], {KA_WO}')
        a(f's_load_dwordx2 s[90:91], s[0:1], {KA_WG}')
        a(f's_load_dwordx2 s[92:93], s[0:1], {KA_WU}')
        a(f's_load_dwordx2 s[94:95], s[0:1], {KA_WD}')
        a('s_mov_b32 s58, 4194304'); a('s_mov_b32 s59, 0x00020000')
        a('s_mov_b32 s96, 1835008'); a('s_mov_b32 s97, 1835008'); a('s_mov_b32 s98, 1835008')
        a(f's_lshl_b32 s{S_PF}, s2, 12'); a(f's_lshl_b32 s{S_PFM}, s{S_W}, 10'); a(f's_add_u32 s{S_PF}, s{S_PF}, s{S_PFM}')
        a(f's_add_u32 s{S_PFM}, s{S_PFM}, 135168')
    a('s_waitcnt lgkmcnt(0)')
    a(f's_lshl_b32 s{S_T}, s{S_H}, 19')
    a.srd(SRD_K, 6, f's{S_T}', 524288)
    a.srd(SRD_V, 8, f's{S_T}', 524288)
    a.srd(SRD_WQ, 10, 0, 4194304)
    a.srd(SRD_XN, 4, WS_XN, 2097152)
    a.srd(SRD_O, 4, WS_O, 16777216)
    a.srd(SRD_MP, 4, WS_MODP, 49152)
    L = LANE
    vg, vhf, vch, vrr, vc, vt, vu = 200, 201, 202, 203, 204, 205, 206
    a(f'v_lshrrev_b32 v{vg}, 4, v{L}')
    a(f'v_lshrrev_b32 v{vhf}, 5, v{L}')
    a(f'v_and_b32 v{vch}, 1, v{vg}')
    a(f'v_bfe_u32 v{vrr}, v{L}, 2, 2')
    a(f'v_and_b32 v{vc}, 3, v{L}')
    a(f'v_and_b32 v{vt}, 15, v{L}')
    a(f'v_lshlrev_b32 v{vu}, 2, v{vg}')
    a(f'v_xor_b32 v{vu}, v{vt}, v{vu}')
    a(f'v_lshlrev_b32 v{vu}, 4, v{vu}')
    a(f'v_lshlrev_b32 v{VOV}, 8, v{vg}')
    a(f'v_add_u32 v{VOV}, v{VOV}, v{vu}')
    WOFF = 222
    a(f'v_lshlrev_b32 v{WOFF}, 13, v{vg}')
    a(f'v_add_u32 v{WOFF}, v{WOFF}, v{vu}')
    for i in range(4):
        a(f'v_add_u32 v{vu}, {4*i}, v{vg}')
        a(f'v_xor_b32 v{vu}, v{vt}, v{vu}')
        a(f'v_lshlrev_b32 v{vu}, 4, v{vu}')
        a(f'v_lshlrev_b32 v{VOK+i}, 8, v{vg}')
        a(f'v_add_u32 v{VOK+i}, v{VOK+i}, v{vu}')
    a(f'v_and_b32 v{vt}, 31, v{L}')
    for s in range(8):
        a(f'v_add_u32 v{vu}, {2*s}, v{vhf}')
        a(f'v_and_b32 v{KAD+s}, 15, v{vt}')
        a(f'v_xor_b32 v{vu}, v{vu}, v{KAD+s}')
        a(f'v_lshlrev_b32 v{vu}, 4, v{vu}')
        a(f'v_lshlrev_b32 v{KAD+s}, 8, v{vt}')
        a(f'v_add_u32 v{KAD+s}, v{KAD+s}, v{vu}')
    WAD = 216
    for dt in range(4):
        a(f'v_xor_b32 v{vt}, {dt}, v{vrr}')
        a(f'v_lshlrev_b32 v{vt}, 2, v{vt}')
        a(f'v_lshlrev_b32 v{vu}, 1, v{vch}')
        a(f'v_add_u32 v{vt}, v{vt}, v{vu}')
        a(f'v_lshrrev_b32 v{vu}, 1, v{vc}')
        a(f'v_add_u32 v{vu}, v{vt}, v{vu}')
        a(f'v_lshlrev_b32 v{vu}, 4, v{vu}')
        a(f'v_and_b32 v207, 1, v{vc}')
        a(f'v_lshlrev_b32 v207, 3, v207')
        a(f'v_add_u32 v{vu}, v{vu}, v207')
        a(f'v_lshlrev_b32 v207, 2, v{vhf}')
        a(f'v_add_u32 v207, v207, v{vrr}')
        a(f'v_lshlrev_b32 v207, 8, v207')
        a(f'v_add_u32 v{vu}, v{vu}, v207')
        a(f'v_add_u32 v{VAD+dt}, {VBASE}, v{vu}')
        a(f'v_and_b32 v{vu}, 1, v{vc}')
        a(f'v_add_u32 v{vu}, v{vt}, v{vu}')
        a(f'v_lshlrev_b32 v{vu}, 4, v{vu}')
        a(f'v_lshrrev_b32 v207, 1, v{vc}')
        a(f'v_lshlrev_b32 v207, 3, v207')
        a(f'v_add_u32 v{vu}, v{vu}, v207')
        a(f'v_lshlrev_b32 v207, 3, v{vhf}')
        a(f'v_add_u32 v207, v207, v{vrr}')
        a(f'v_lshlrev_b32 v207, 8, v207')
        a(f'v_add_u32 v{WAD+dt}, v{vu}, v207')
    GSA = 220; XOFF = 221
    a(f'v_lshlrev_b32 v{GSA}, 5, v{vhf}')
    a(f'v_add_u32 v{GSA}, {GSBASE}, v{GSA}')
    a(f'v_lshlrev_b32 v{XOFF}, 4, v{L}')
    a('v_lshlrev_b32 v223, 3, v0')
    for kq in range(4):
        a(f's_mov_b32 s{S_T}, {kq*12288}')
        a.vmem(f'buffer_load_dwordx2 v[{160+2*kq}:{161+2*kq}], v223, s[{SRD_MP}:{SRD_MP+3}], s{S_T} offen', 'mod')
        a.vmem(f'buffer_load_dwordx2 v[{168+2*kq}:{169+2*kq}], v223, s[{SRD_MP}:{SRD_MP+3}], s{S_T} offen offset:2048', 'mod')
    S_WS = 45; S_W1K = 89; S_WB = 99
    a(f's_lshl_b32 s{S_W1K}, s{S_W}, 10')
    a(f's_lshl_b32 s{S_WB}, s{S_W}, 15'); a(f's_lshl_b32 s{S_T}, s{S_H}, 8'); a(f's_add_u32 s{S_WB}, s{S_WB}, s{S_T}')
    RING = 20
    S_XO = 48
    a(f's_lshl_b32 s{S_XO}, s{S_RT}, 15')
    a(f's_add_u32 s{S_XO+1}, s{S_XO}, 32768')
    def w_ops(m):
        return ([f's_add_u32 m0, s{S_W1K}, {m*4096}', f's_add_u32 s{S_T}, s{S_WB}, {m*131072}'],
                f'buffer_load_dwordx4 v{WOFF}, s[{SRD_WQ}:{SRD_WQ+3}], s{S_T} offen lds')
    def x_ops(s, q):
        r = 8*(s % RING) + 4*q
        return ([f's_add_u32 s{S_T}, s{S_XO+q}, {(s//4)*4096}'],
                f'buffer_load_dwordx4 v[{r}:{r+3}], v{XOFF}, s[{SRD_XN}:{SRD_XN+3}], s{S_T} offen offset:{(s%4)*1024}')
    def kv_ops(which, tile, i):
        base = (0 if which == 'K' else VBASE) + (tile & 3)*16384
        srd = SRD_K if which == 'K' else SRD_V
        vo = VOK+i if which == 'K' else VOV
        return ([f's_add_u32 m0, s{S_M0}, {base}', f's_add_u32 s{S_T}, s{S_M0}, {tile*16384}'],
                f'buffer_load_dwordx4 v{vo}, s[{srd}:{srd+3}], s{S_T} offen offset:{1024*i} lds')
    def emit_item(ops, tag):
        for x in ops[0]: a(x)
        a.vmem(ops[1], tag)
    PRE_X = CFG['pre_x']; PRE_W = CFG['pre_w']
    for m in range(4): emit_item(w_ops(m), ('W', m))
    for s in range(PRE_X):
        for q in range(2): emit_item(x_ops(s, q), ('X', s))
    for m in range(4, PRE_W): emit_item(w_ops(m), ('W', m))
    a.wait_vm('mod')
    for c_ in range(2):
        a(f'v_add_f32 v{160+c_}, v{160+c_}, v{162+c_}'); a(f'v_add_f32 v{164+c_}, v{164+c_}, v{166+c_}')
        a(f'v_add_f32 v{160+c_}, v{160+c_}, v{164+c_}')
        a(f'v_add_f32 v{168+c_}, v{168+c_}, v{170+c_}'); a(f'v_add_f32 v{172+c_}, v{172+c_}, v{174+c_}')
        a(f'v_add_f32 v{168+c_}, v{168+c_}, v{172+c_}')
        round_bf16(a, 160+c_, 176)
        round_bf16(a, 168+c_, 176)
        a(f'v_add_f32 v{168+c_}, 1.0, v{168+c_}')
        round_bf16(a, 168+c_, 176)
    a(f'v_add_u32 v223, {GSBASE}, v223')
    a.lds('ds_write_b64 v223, v[168:169]')
    a.lds('ds_write_b64 v223, v[160:161] offset:2048')
    GSR = [160, 176]
    HF = [192, 200]
    TT = 208
    WF = [192, 208]
    def gs_read_ops(s):
        b = GSR[s&1]
        return [f'ds_read_b128 v[{b}:{b+3}], v{GSA} offset:{s*64}', f'ds_read_b128 v[{b+4}:{b+7}], v{GSA} offset:{s*64+16}',
                f'ds_read_b128 v[{b+8}:{b+11}], v{GSA} offset:{s*64+2048}', f'ds_read_b128 v[{b+12}:{b+15}], v{GSA} offset:{s*64+2048+16}']
    def w_read_ops(s):
        ops = []
        for dt in range(4):
            for u in range(2):
                r = WF[s&1] + dt*4 + 2*u
                ops.append(f'ds_read_b64_tr_b16 {ar(r,2)}, v{WAD+dt} offset:{(s%16)*4096 + 1024*u}')
        return ops
    def modulate_ops(s):
        ops = []
        b = GSR[s&1]
        for q in range(2):
            for k in range(4):
                x = 8*(s % RING) + 4*q + k
                t0 = TT + 2*((q*4+k) % 4); t1 = t0+1
                ops.append(f'v_lshlrev_b32 v{t0}, 16, v{x}')
                ops.append(f'v_and_b32 v{t1}, 0xffff0000, v{x}')
                ops.append(f'v_fma_f32 v{t0}, v{t0}, v{b+2*k}, v{b+8+2*k}')
                ops.append(f'v_fma_f32 v{t1}, v{t1}, v{b+2*k+1}, v{b+8+2*k+1}')
                ops.append(f'v_cvt_pk_bf16_f32 v{HF[s&1]+4*q+k}, v{t0}, v{t1}')
        return ops
    BARS = [3, 7, 15, 23, 31]
    def w_need(m):
        prev = -1
        for b in BARS:
            if m <= b: return prev
            prev = b
    Q = []
    for m in range(PRE_W, 32): Q.append((w_need(m)-0.5, -1, ('W', m), w_ops(m)))
    for s in range(PRE_X, 32):
        for q in range(2): Q.append((s-1, s-RING, ('X', s), x_ops(s, q)))
    for which, tile, av in (('K',0,7),('K',1,7),('K',2,15),('K',3,15),('V',0,23),('V',1,23),('V',2,31)):
        for i in range(4): Q.append((100, av, (which, tile), kv_ops(which, tile, i)))
    Q.sort(key=lambda x: x[0])
    def pop_q(s):
        for i, it in enumerate(Q):
            if it[1] <= s: return Q.pop(i)
        return None
    a.wait_vm([('W', 3), ('X', 0)])
    a.wait_lg0()
    a('s_barrier')
    if stamp: st()
    for op in gs_read_ops(0): a.lds(op, ('G', 0))
    for op in gs_read_ops(1): a.lds(op, ('G', 1))
    for op in w_read_ops(0): a.lds(op, ('Wf', 0))
    a.wait_lg(('G', 0))
    for op in modulate_ops(0): a(op)
    for s in range(32):
        if s in BARS:
            nb = BARS[BARS.index(s)+1] if s < 31 else None
            if nb is not None:
                assert not any(it[2] == ('W', nb) for it in Q), (s, nb)
                a.wait_vm(('W', nb))
            a.wait_lg0()
            a('s_barrier')
        else:
            a.wait_lg(('Wf', s))
        if s == 15:
            for dt in range(4): a(f'v_add_u32 v{WAD+dt}, 65536, v{WAD+dt}')
        if s+1 < 32:
            assert not any(it[2] == ('X', s+1) for it in Q), s
            a.wait_vm(('X', s+1))
            a.wait_lg(('G', s+1))
            wr = w_read_ops(s+1)
            md = modulate_ops(s+1)
        else:
            wr, md = [], []
        gr = gs_read_ops(s+2) if s+2 < 32 else []
        mfs = []
        for dt in range(4):
            for q in range(2):
                d = ar(OA(q,dt),16)
                mfs.append(mfma(d, ar(WF[s&1]+dt*4,4), vr(HF[s&1]+4*q,4), '0' if s == 0 else d))
        if s+2 >= 32: a('s_nop 1')
        vg_ = CFG['qp_slots']
        for g in range(8):
            it = pop_q(s) if g in vg_ else None
            if it:
                for x in it[3][0]: a(x)
            a(mfs[g])
            if it: a.vmem(it[3][1], it[2])
            if g < 4:
                for op in wr[2*g:2*g+2]: a.lds(op, ('Wf', s+1))
            elif g < 6:
                for op in gr[2*(g-4):2*(g-4)+2]: a.lds(op, ('G', s+2))
            for op in md[5*g:5*g+5]: a(op)
    while Q:
        it = Q.pop(0); emit_item(it[3], it[2])
    a(f's_add_u32 s{S_KOFF}, s{S_M0}, {4*16384}')
    a(f's_add_u32 s{S_VOFF}, s{S_M0}, {3*16384}')
    st()
    a.nop(16)
    cs = 128**-0.5 * LOG2E
    a(f's_mov_b32 s{S_T}, {f2u(cs)}')
    for q in range(2):
        for dt in range(4):
            for t in range(2):
                for k in range(8):
                    a(f'v_accvgpr_read_b32 v{k}, a{OA(q,dt)+8*t+k}')
                for k in range(8):
                    a(f'v_mul_f32 v{k}, s{S_T}, v{k}')
                for k in range(4):
                    a(f'v_cvt_pk_bf16_f32 v{8+k}, v{2*k}, v{2*k+1}')
                for k in range(4):
                    a(f'v_accvgpr_write_b32 a{QF(q,2*dt+t)+k}, v{8+k}')
    for r in range(128): a(f'v_accvgpr_write_b32 a{r}, 0')
    a(f'v_mov_b32 v{LR[0]}, 0'); a(f'v_mov_b32 v{LR[1]}, 0')
    a.wait_vm(('V', 1))
    a('s_barrier')
    for s in range(8): a(k_read(s, 0))
    a('s_waitcnt lgkmcnt(0)')
    for s in range(8):
        for q in range(2):
            d = vr(S[0]+q*16, 16)
            a(mfma(d, ar(KF(s),4), ar(QF(q,s),4), '0' if s == 0 else d))
    for s in range(8): a(k_read(s, 1))
    a.nop(16)
    m = TMP+1; t2 = TMP+2
    for q in range(2):
        sc = S[0]+q*16
        a(f'v_max3_f32 v{m}, v{sc}, v{sc+1}, v{sc+2}')
        for r in range(3, 15, 2):
            a(f'v_max3_f32 v{m}, v{m}, v{sc+r}, v{sc+r+1}')
        a(f'v_max_f32 v{m}, v{m}, v{sc+15}')
        a(f'v_mov_b32 v{t2}, v{m}')
        a('s_nop 1')
        a(f'v_permlane32_swap_b32 v{t2}, v{m}')
        a('s_nop 1')
        a(f'v_max_f32 v{m}, v{m}, v{t2}')
        a(f'v_add_f32 v{m}, {f2u(OFFSET)}, v{m}')
        for r in range(16):
            a(f'v_sub_f32 v{NEGM+q*16+r}, 0, v{m}')
            a(f'v_sub_f32 v{sc+r}, v{sc+r}, v{m}')
    stubs = []
    st()
    gen_iter(a, 0, do_pv=False, do_vread=False, barrier=63, dmaK=4, lsum_prev=False, stubs=stubs)
    a(f's_mov_b32 s{S_CNT}, 7')
    nver = 4 if CFG['stagger'] else 1
    if nver > 1:
        for w in range(1, 4):
            a(f's_cmp_eq_u32 s{S_W}, {w}'); a(f's_cbranch_scc1 KB_LOOP{w}')
    for w in range(nver):
        a.raw('.p2align 6')
        a.label(f'KB_LOOP{w}')
        for jj in range(1, 9):
            j = jj
            T_ = j//2
            if j % 2 == 0:
                gen_iter(a, j, barrier=18 if PF else 16, dmaK=T_+4, stubs=stubs, wshift=w)
            else:
                gen_iter(a, j, dmaV=T_+3, stubs=stubs, pf=PF, wshift=w)
        if PF:
            a(f's_sub_u32 s{S_PF}, s{S_PF}, 0x400000')
            a('s_mov_b32 s56, s90'); a('s_mov_b32 s57, s91'); a('s_mov_b32 s90, s92'); a('s_mov_b32 s91, s93')
            a('s_mov_b32 s92, s94'); a('s_mov_b32 s93, s95')
            a('s_mov_b32 s58, s96'); a('s_mov_b32 s96, s97'); a('s_mov_b32 s97, s98'); a('s_mov_b32 s98, 0')
        a(f's_sub_u32 s{S_CNT}, s{S_CNT}, 1')
        a(f's_cmp_lg_u32 s{S_CNT}, 0')
        a(f's_cbranch_scc1 KB_LOOP{w}')
        if w < nver-1: a('s_branch KB_TAIL')
    a.label('KB_TAIL')
    gen_iter(a, 57, dmaV=31, stubs=stubs)
    gen_iter(a, 58, barrier=8, stubs=stubs)
    gen_iter(a, 59, stubs=stubs)
    gen_iter(a, 60, barrier=0, stubs=stubs)
    gen_iter(a, 61, stubs=stubs)
    gen_iter(a, 62, do_kread=False, stubs=stubs)
    gen_iter(a, 63, do_qk=False, do_kread=False, stubs=stubs)
    a(f'v_add_f32 v{LR[0]}, v{LR[0]}, v{LT[0]}')
    a(f'v_add_f32 v{LR[1]}, v{LR[1]}, v{LT[1]}')
    for t in range(2):
        for dt in range(4):
            for u in range(2):
                a(v_read(t, dt, u, 63))
    a('s_waitcnt lgkmcnt(0)')
    for t in range(2):
        for dt in range(4):
            for q in range(2):
                d = ar(OA(q,dt),16)
                a(mfma(d, ar(VF(t,dt),4), vr(P[1]+q*8+t*4,4), d))
    st()
    for q in range(2):
        xhalf_sum(a, LR[q], TMP)
        a(f'v_rcp_f32 v{LR[q]}, v{LR[q]}')
    a.nop(16)
    a(f's_lshl_b32 s{S_T}, s{S_RT}, 18')
    a(f's_lshl_b32 s{S_WS}, s{S_H}, 13')
    a(f's_add_u32 s{S_XO}, s{S_T}, s{S_WS}')
    a(f's_add_u32 s{S_XO+1}, s{S_XO}, {256*1024}')
    cnt = 0
    for q in range(2):
        for dt in range(4):
            for t in range(2):
                b = 16*(cnt % 4); cnt += 1
                for k in range(8):
                    a(f'v_accvgpr_read_b32 v{b+k}, a{OA(q,dt)+8*t+k}')
                for k in range(8):
                    a(f'v_mul_f32 v{b+k}, v{b+k}, v{LR[q]}')
                for k in range(4):
                    a(f'v_cvt_pk_bf16_f32 v{b+8+k}, v{b+2*k}, v{b+2*k+1}')
                ks = 2*dt+t
                a(f's_add_u32 s{S_T}, s{S_XO+q}, {(ks//4)*4096}')
                a(f'buffer_store_dwordx4 v[{b+8}:{b+11}], v{XOFF}, s[{SRD_O}:{SRD_O+3}], s{S_T} offen offset:{(ks%4)*1024} {OSC}')
    if stamp:
        a('s_waitcnt vmcnt(0)')
        st()
        a('s_memrealtime s[62:63]')
        a('s_waitcnt lgkmcnt(0)')
        a.srd(52, 4, WS_STAMP, 131072)
        a('v_mov_b32 v0, s60'); a('v_mov_b32 v1, s62')
        for k in range(nst[0]):
            a(f'v_mov_b32 v{2+k}, s{64+2*k}')
            a(f'v_mov_b32 v{8+k}, s{76+2*k}')
        a(f's_lshl_b32 s{S_T}, s2, 8'); a(f's_lshl_b32 s{S_WS}, s{S_W}, 6'); a(f's_add_u32 s{S_T}, s{S_T}, s{S_WS}')
        a('v_mov_b32 v20, 0')
        a('s_mov_b64 exec, 1')
        a(f'buffer_store_dwordx4 v[0:3], v20, s[52:55], s{S_T} offen')
        a(f'buffer_store_dwordx4 v[4:7], v20, s[52:55], s{S_T} offen offset:16')
        a(f'buffer_store_dwordx4 v[8:11], v20, s[52:55], s{S_T} offen offset:32')
        a(f'buffer_store_dwordx4 v[12:15], v20, s[52:55], s{S_T} offen offset:48')
    a('s_waitcnt vmcnt(0)')
    a.label('KB_END')
    a('s_endpgm')
    for st, bk, p in stubs:
        a.label(st)
        a(f's_call_b64 s[{S_RET}:{S_RET+1}], RARE_{p}')
        a(f's_branch {bk}')
    gen_rare(a, 0); gen_rare(a, 1)
    return a.text(), kernel_desc('kb_kernel', 512, 100, 256), 'kb_kernel grid=(256,1,1) block=(256,1,1) lds=139264'
```

```python
from asmlib import *
from gen import *

TCFG = {}
def mfma(d, a_, b, c):
    return f'v_mfma_f32_32x32x16_bf16 {d}, {a_}, {b}, {c}'

class Stamper:
    def __init__(self, a, stamp):
        self.a = a; self.on = stamp; self.n = 0
    def begin(self):
        if self.on:
            self.a('s_memrealtime s[76:77]'); self.mark()
    def mark(self):
        if self.on:
            self.a(f's_memtime s[{60+2*self.n}:{61+2*self.n}]'); self.n += 1
            assert self.n <= 8
    def end(self, wreg, region):
        a = self.a
        if self.on:
            a('s_waitcnt vmcnt(0)')
            self.mark()
            a('s_memrealtime s[78:79]')
            a('s_waitcnt lgkmcnt(0)')
            a.srd(52, 4, WS_STAMP + region*131072, 131072)
            a('v_mov_b32 v0, s76'); a('v_mov_b32 v1, s78'); a(f'v_mov_b32 v2, {self.n}'); a('v_mov_b32 v3, 0')
            for k in range(8):
                a(f'v_mov_b32 v{4+k}, s{60+2*min(k, self.n-1)}')
            a(f's_lshl_b32 s43, s2, 8'); a(f's_lshl_b32 s44, s{wreg}, 6'); a('s_add_u32 s43, s43, s44')
            a('v_mov_b32 v20, 0')
            a('s_mov_b64 exec, 1')
            a('buffer_store_dwordx4 v[0:3], v20, s[52:55], s43 offen')
            a('buffer_store_dwordx4 v[4:7], v20, s[52:55], s43 offen offset:16')
            a('buffer_store_dwordx4 v[8:11], v20, s[52:55], s43 offen offset:32')

def gen_proj(mode, stamp=False, DEPTH=10, ROT=False, STSC=''):
    name = 'kc_kernel' if mode == 'C' else 'ke_kernel'
    N = name.upper()
    NKT = 256 if mode == 'C' else 112
    NK = NKT // 4
    wsB = WS_O if mode == 'C' else WS_ACT
    szB = 64*NKT*1024
    kaW = KA_WO if mode == 'C' else KA_WD
    szW = NKT*16*1024
    modbase = 1024 if mode == 'C' else 2560
    S_W=3; S_RB=36; S_CB=37; S_T=38; S_AO=39; S_B0=40; S_B1=41; S_M0=42; S_T2=45
    SRD_W=12; SRD_B=16; SRD_MP=20; SRD_X=24; SRD_O=28
    BR = 0
    ACC = 128
    AF = [192, 200]
    AAD = 208
    VOA = 210; VOB = 211; LOFF = 212; LANE = 213
    GT = 131072
    a = Asm()
    a.raw(kernel_head(name))
    a('s_cmp_ge_u32 s2, 256'); a(f's_cbranch_scc1 {N}_END')
    a(f's_load_dwordx2 s[4:5], s[0:1], {KA_WS}')
    a(f's_load_dwordx2 s[6:7], s[0:1], {kaW}')
    a(f's_load_dwordx2 s[8:9], s[0:1], {KA_X if mode == "C" else KA_OUT}')
    st = Stamper(a, stamp); st.begin()
    a('s_and_b32 s33, s2, 7'); a('s_lshr_b32 s34, s2, 3')
    a(f's_and_b32 s{S_RB}, s34, 3'); a('s_lshl_b32 s33, s33, 2'); a(f's_add_u32 s{S_RB}, s{S_RB}, s33')
    a(f's_lshr_b32 s{S_CB}, s34, 2')
    if TCFG.get('cbxor'): a(f's_xor_b32 s{S_CB}, s{S_CB}, {TCFG["cbxor"]}')
    a('v_lshrrev_b32 v1, 6, v0'); a(f'v_and_b32 v{LANE}, 63, v0'); a('s_nop 0')
    a(f'v_readfirstlane_b32 s{S_W}, v1')
    a('s_waitcnt lgkmcnt(0)')
    a.srd(SRD_W, 6, 0, szW)
    a.srd(SRD_B, 4, wsB, szB)
    a.srd(SRD_MP, 4, WS_MODP, 49152)
    if mode == 'C':
        a.srd(SRD_X, 8, 0, 2097152)
        a.srd(SRD_O, 4, WS_X1, 2097152)
    else:
        a.srd(SRD_X, 4, WS_X1, 2097152)
        a.srd(SRD_O, 8, 0, 2097152)
    L = LANE
    a(f'v_lshrrev_b32 v2, 3, v{L}'); a('v_lshlrev_b32 v2, 10, v2')
    a(f'v_bfe_u32 v3, v{L}, 4, 1'); a('v_lshlrev_b32 v3, 2, v3')
    a(f'v_and_b32 v4, 7, v{L}'); a('v_xor_b32 v3, v3, v4'); a('v_lshlrev_b32 v3, 4, v3')
    a(f'v_add_u32 v{VOA}, v2, v3'); a(f'v_add_u32 v{VOB}, 7168, v{VOA}')
    a(f'v_lshlrev_b32 v{LOFF}, 4, v{L}')
    WLIN = TCFG.get('wlin')
    ASTEP = 2048 if WLIN else 16384
    if WLIN:
        a(f'v_mov_b32 v{VOA}, v{LOFF}'); a(f'v_mov_b32 v{VOB}, v{LOFF}')
    a(f'v_lshrrev_b32 v2, 5, v{L}')
    a(f'v_bfe_u32 v3, v{L}, 4, 1')
    a(f'v_bfe_u32 v4, v{L}, 2, 2')
    a(f'v_and_b32 v5, 3, v{L}')
    a('v_lshlrev_b32 v6, 2, v2'); a('v_add_u32 v6, v6, v4'); a('v_lshlrev_b32 v6, 7, v6')
    a('v_and_b32 v7, 1, v5'); a('v_lshlrev_b32 v7, 3, v7'); a('v_add_u32 v6, v6, v7')
    a('v_lshrrev_b32 v7, 1, v5'); a('v_lshlrev_b32 v8, 1, v3'); a('v_add_u32 v7, v7, v8')
    a('v_lshrrev_b32 v8, 1, v4')
    a(f's_lshl_b32 s{S_M0}, s{S_W}, 15')
    for mt in range(2):
        a(f'v_xor_b32 v9, {mt}, v8'); a('v_lshlrev_b32 v9, 2, v9'); a('v_add_u32 v9, v9, v7'); a('v_lshlrev_b32 v9, 4, v9')
        a(f'v_add_u32 v{AAD+mt}, v6, v9'); a(f'v_add_u32 v{AAD+mt}, s{S_M0}, v{AAD+mt}')
    if WLIN:
        a(f's_mul_i32 s{S_AO}, s{S_W}, {NK*2048}'); a(f's_mul_i32 s{S_T}, s{S_CB}, {NKT*2048}'); a(f's_add_u32 s{S_AO}, s{S_AO}, s{S_T}')
    else:
        a(f's_mul_i32 s{S_AO}, s{S_W}, {NK*16384}'); a(f's_lshl_b32 s{S_T}, s{S_CB}, 7'); a(f's_add_u32 s{S_AO}, s{S_AO}, s{S_T}')
    a(f's_mul_i32 s{S_B0}, s{S_RB}, {2*NKT*1024}'); a(f's_mul_i32 s{S_T}, s{S_W}, {NK*1024}'); a(f's_add_u32 s{S_B0}, s{S_B0}, s{S_T}')
    a(f's_add_u32 s{S_B1}, s{S_B0}, {NKT*1024}')
    a(f's_cmp_lg_u32 s{S_W}, 0'); a(f's_cbranch_scc1 {N}_NOGT')
    a(f'v_lshlrev_b32 v2, 2, v{L}')
    a(f's_lshl_b32 s{S_T}, s{S_CB}, 8'); a(f's_add_u32 s{S_T}, s{S_T}, {modbase*4}')
    for kq in range(4):
        a(f's_add_u32 s{S_T2}, s{S_T}, {kq*12288}')
        a(f'buffer_load_dword v{4+kq}, v2, s[{SRD_MP}:{SRD_MP+3}], s{S_T2} offen')
    a('s_waitcnt vmcnt(0)')
    a('v_add_f32 v4, v4, v5'); a('v_add_f32 v6, v6, v7'); a('v_add_f32 v4, v4, v6')
    round_bf16(a, 4, 5)
    a(f'v_add_u32 v2, {GT}, v2')
    a('ds_write_b32 v2, v4')
    a.label(f'{N}_NOGT')
    BLK = 4
    NBLK = 8 if mode == 'C' else 7
    WIN = BLK*NBLK
    S_CUR=53; S_AB=54; S_BB0=55; S_BB1=56
    if ROT:
        a(f's_and_b32 s{S_CUR}, s{S_RB}, 3'); a(f's_lshl_b32 s{S_CUR}, s{S_CUR}, 1'); a(f's_add_u32 s{S_CUR}, s{S_CUR}, s{S_CB}')
        if NBLK == 8: a(f's_and_b32 s{S_CUR}, s{S_CUR}, 7')
        else:
            for _ in range(2):
                a(f's_sub_u32 s{S_T}, s{S_CUR}, {NBLK}'); a(f's_cmp_ge_u32 s{S_CUR}, {NBLK}'); a(f's_cselect_b32 s{S_CUR}, s{S_T}, s{S_CUR}')
    else:
        a(f's_mov_b32 s{S_CUR}, 0')
    def issue_ops(k):
        slot = k % 16
        pre = []
        if k % BLK == 0:
            win = k // WIN
            pre.append(f's_lshl_b32 s{S_T}, s{S_CUR}, {(11 if WLIN else 14)+2}'); pre.append(f's_add_u32 s{S_AB}, s{S_AO}, s{S_T}')
            if win: pre.append(f's_add_u32 s{S_AB}, s{S_AB}, {win*WIN*ASTEP}')
            pre.append(f's_lshl_b32 s{S_T}, s{S_CUR}, {10+2}'); pre.append(f's_add_u32 s{S_BB0}, s{S_B0}, s{S_T}')
            if win: pre.append(f's_add_u32 s{S_BB0}, s{S_BB0}, {win*WIN*1024}')
            pre.append(f's_add_u32 s{S_BB1}, s{S_BB0}, {NKT*1024}')
            pre.append(f's_add_u32 s{S_CUR}, s{S_CUR}, 1'); pre.append(f's_cmp_eq_u32 s{S_CUR}, {NBLK}'); pre.append(f's_cselect_b32 s{S_CUR}, 0, s{S_CUR}')
        pre.append(f's_add_u32 m0, s{S_M0}, {slot*2048}')
        pre.append('s_nop 0')
        r = BR + 8*slot
        g0 = [(x, False) for x in pre] + [(f'buffer_load_dwordx4 v{VOA}, s[{SRD_W}:{SRD_W+3}], s{S_AB} offen lds', True)]
        g1 = [(f'buffer_load_dwordx4 v{VOB}, s[{SRD_W}:{SRD_W+3}], s{S_AB} offen offset:1024 lds', True), (f's_add_u32 s{S_AB}, s{S_AB}, {ASTEP}', False)]
        g2 = [(f'buffer_load_dwordx4 v[{r}:{r+3}], v{LOFF}, s[{SRD_B}:{SRD_B+3}], s{S_BB0} offen offset:{(k%4)*1024}', True)]
        g3 = [(f'buffer_load_dwordx4 v[{r+4}:{r+7}], v{LOFF}, s[{SRD_B}:{SRD_B+3}], s{S_BB1} offen offset:{(k%4)*1024}', True)]
        return [g0, g1, g2, g3]
    def emit_group(g, k):
        for x, isv in g:
            if isv: a.vmem(x, k)
            else: a(x)
    def aread_ops(k):
        slot = k % 16
        ops = []
        for mt in range(2):
            for u in range(2):
                r = AF[k&1] + mt*4 + 2*u
                ops.append(f'ds_read_b64_tr_b16 {vr(r,2)}, v{AAD+mt} offset:{slot*2048 + u*1024}')
        return ops
    st.mark()
    for k in range(min(DEPTH, NK)):
        for g in issue_ops(k): emit_group(g, k)
    a.wait_vm(0); st.mark()
    for op in aread_ops(0): a.lds(op, ('A', 0))
    for k in range(NK):
        if k+1 < NK: a.wait_vm(k+1)
        a.wait_lg(('A', k))
        r = BR + 8*(k % 16)
        ar_ = aread_ops(k+1) if k+1 < NK else []
        gs = issue_ops(k+DEPTH) if k+DEPTH < NK else [[], [], [], []]
        i = 0
        for mt in range(2):
            for nt in range(2):
                d = vr(ACC+(mt*2+nt)*16, 16)
                a(mfma(d, vr(AF[k&1]+mt*4,4), vr(r+4*nt,4), '0' if k == 0 else d))
                if i < 2:
                    for op in ar_[2*i:2*i+2]: a.lds(op, ('A', k+1))
                emit_group(gs[i], k+DEPTH)
                i += 1
    st.mark()
    a(f's_lshr_b32 s46, s{S_W}, 1'); a(f's_and_b32 s47, s{S_W}, 1')
    a(f's_lshl_b32 s48, s{S_RB}, 1'); a('s_add_u32 s48, s48, s47')
    a(f's_lshl_b32 s49, s{S_CB}, 2'); a('s_lshl_b32 s50, s46, 1'); a('s_add_u32 s49, s49, s50')
    a('s_lshl_b32 s50, s48, 5'); a('s_add_u32 s50, s50, s49'); a('s_lshl_b32 s50, s50, 10')
    a(f'v_and_b32 v2, 31, v{L}'); a('v_lshlrev_b32 v2, 10, v2')
    a(f'v_lshrrev_b32 v3, 5, v{L}')
    a(f'v_lshlrev_b32 v4, {3 if mode == "C" else 4}, v3'); a('v_add_u32 v2, v2, v4')
    a('s_lshl_b32 s51, s48, 15'); a('s_lshl_b32 s33, s49, 5'); a('s_add_u32 s51, s51, s33')
    XR = 0
    if mode == 'C':
        for g in range(4):
            a(f'buffer_load_dwordx2 v[{8+2*g}:{9+2*g}], v2, s[{SRD_X}:{SRD_X+3}], s51 offen offset:{16*g}')
    else:
        for t in range(2):
            a(f'buffer_load_dwordx4 v[{8+4*t}:{11+4*t}], v{LOFF}, s[{SRD_X}:{SRD_X+3}], s50 offen offset:{1024*t}')
    a.nop(12)
    a('s_waitcnt lgkmcnt(0)')
    a('s_barrier')
    a(f's_lshl_b32 s33, s{S_W}, 14')
    a(f'v_add_u32 v5, s33, v{LOFF}')
    for tile in range(4):
        for r4 in range(4):
            r = ACC + tile*16 + r4*4
            a(f'ds_write_b128 v5, v[{r}:{r+3}] offset:{(tile*4+r4)*1024}')
    a('s_waitcnt lgkmcnt(0)')
    a('s_barrier')
    a(f's_lshl_b32 s33, s{S_W}, 12')
    a(f'v_add_u32 v5, s33, v{LOFF}')
    for wv in range(4):
        for r4 in range(4):
            r = 32 + wv*16 + r4*4
            a(f'ds_read_b128 v[{r}:{r+3}], v5 offset:{wv*16384 + r4*1024}')
    a('v_lshlrev_b32 v6, 4, v3'); a('s_lshl_b32 s33, s46, 7'); a(f's_add_u32 s33, s33, {GT}'); a('v_add_u32 v6, s33, v6')
    for g in range(4):
        a(f'ds_read_b128 v[{16+4*g}:{19+4*g}], v6 offset:{32*g}')
    a('s_waitcnt lgkmcnt(0)')
    st.mark()
    for r in range(16):
        a(f'v_add_f32 v{32+r}, v{32+r}, v{48+r}'); a(f'v_add_f32 v{64+r}, v{64+r}, v{80+r}')
    for r in range(16):
        a(f'v_add_f32 v{32+r}, v{32+r}, v{64+r}')
    for r in range(0, 16, 2):
        a(f'v_cvt_pk_bf16_f32 v100, v{32+r}, v{33+r}')
        a(f'v_lshlrev_b32 v{32+r}, 16, v100'); a(f'v_and_b32 v{33+r}, 0xffff0000, v100')
        a(f'v_mul_f32 v{32+r}, v{32+r}, v{16+r}'); a(f'v_mul_f32 v{33+r}, v{33+r}, v{17+r}')
        a(f'v_cvt_pk_bf16_f32 v100, v{32+r}, v{33+r}')
        a(f'v_lshlrev_b32 v{32+r}, 16, v100'); a(f'v_and_b32 v{33+r}, 0xffff0000, v100')
    a('s_waitcnt vmcnt(0)')
    for k in range(8):
        a(f'v_lshlrev_b32 v101, 16, v{8+k}'); a(f'v_and_b32 v102, 0xffff0000, v{8+k}')
        a(f'v_add_f32 v{32+2*k}, v{32+2*k}, v101'); a(f'v_add_f32 v{33+2*k}, v{33+2*k}, v102')
        a(f'v_cvt_pk_bf16_f32 v{104+k}, v{32+2*k}, v{33+2*k}')
    if mode == 'C':
        for t in range(2):
            a(f'buffer_store_dwordx4 v[{104+4*t}:{107+4*t}], v{LOFF}, s[{SRD_O}:{SRD_O+3}], s50 offen offset:{1024*t} {STSC}')
        a('v_mov_b32 v114, 0x3f803f80'); a('v_mov_b32 v112, 0'); a('v_mov_b32 v113, 0')
        for k in range(8):
            a(f'v_dot2_f32_bf16 v112, v{104+k}, v114, v112'); a(f'v_dot2_f32_bf16 v113, v{104+k}, v{104+k}, v113')
        a('s_nop 2')
        xhalf_sum(a, 112, 115); xhalf_sum(a, 113, 115)
        a.srd(SRD_MP, 4, WS_ST2, 262144)
        a(f'v_and_b32 v2, 31, v{L}'); a('v_lshlrev_b32 v2, 7, v2')
        a('s_lshl_b32 s33, s48, 12'); a('s_lshl_b32 s34, s49, 2'); a('s_add_u32 s33, s33, s34')
        a('s_mov_b64 exec, 0xffffffff')
        a(f'buffer_store_dwordx2 v[112:113], v2, s[{SRD_MP}:{SRD_MP+3}], s33 offen {STSC}')
        a('s_mov_b64 exec, -1')
    else:
        a('s_nop 1')
        for gp in range(2):
            b = 104+4*gp
            a(f'v_permlane32_swap_b32 v{b}, v{b+2}')
            a(f'v_permlane32_swap_b32 v{b+1}, v{b+3}')
        a('s_nop 1')
        for gp in range(2):
            b = 104+4*gp
            a(f'buffer_store_dwordx4 v[{b}:{b+3}], v2, s[{SRD_O}:{SRD_O+3}], s51 offen offset:{32*gp} {STSC}')
    st.end(S_W, 1 if mode == 'C' else 3)
    a('s_waitcnt vmcnt(0)')
    a.label(f'{N}_END')
    a('s_endpgm')
    return a.text(), kernel_desc(name, 256, 96, 256), f'{name} grid=(256,1,1) block=(256,1,1) lds=131328'

def gen_kd(stamp=False, STSC=''):
    name = 'kd_kernel'; N = 'KD'
    S_W=3; S_RB=36; S_FG=37; S_T=38; S_RT=39; S_T2=40; S_GO=41; S_M0=42; S_XO=45
    SRD_G=12; SRD_U=16; SRD_X=20; SRD_MP=24; SRD_O=28
    XR = 0
    GSR = [128, 144]
    HF = [160, 164]
    TT = 168
    WAD = [176, 180]
    GSA = 184; WOFF = 185; LOFF = 186; LANE = 187
    MR = 188; RS = 189
    def ACC(mt): return mt*16
    WF = [128, 160]
    GSBASE = 131072
    a = Asm()
    a.raw(kernel_head(name))
    a('s_cmp_ge_u32 s2, 224'); a(f's_cbranch_scc1 {N}_END')
    a(f's_load_dwordx2 s[4:5], s[0:1], {KA_WS}')
    a(f's_load_dwordx2 s[6:7], s[0:1], {KA_WG}')
    a(f's_load_dwordx2 s[8:9], s[0:1], {KA_WU}')
    st = Stamper(a, stamp); st.begin()
    a('s_and_b32 s33, s2, 7'); a('s_lshr_b32 s34, s2, 3')
    a(f's_and_b32 s{S_RB}, s34, 3'); a('s_lshr_b32 s35, s33, 1'); a('s_lshl_b32 s35, s35, 2'); a(f's_add_u32 s{S_RB}, s{S_RB}, s35')
    a(f's_lshr_b32 s{S_FG}, s34, 2'); a('s_and_b32 s35, s33, 1'); a('s_mul_i32 s35, s35, 7'); a(f's_add_u32 s{S_FG}, s{S_FG}, s35')
    a('v_lshrrev_b32 v1, 6, v0'); a(f'v_and_b32 v{LANE}, 63, v0'); a('s_nop 0')
    a(f'v_readfirstlane_b32 s{S_W}, v1')
    a('v_lshlrev_b32 v190, 3, v0')
    a('s_waitcnt lgkmcnt(0)')
    a.srd(SRD_G, 6, 0, 512*3584); a.srd(SRD_U, 8, 0, 512*3584)
    a.srd(SRD_X, 4, WS_X1, 2097152); a.srd(SRD_MP, 4, WS_MODP, 49152); a.srd(SRD_O, 4, WS_ACT, 64*112*1024)
    L = LANE
    a(f's_lshl_b32 s{S_RT}, s{S_RB}, 2'); a(f's_add_u32 s{S_RT}, s{S_RT}, s{S_W}')
    a(f'v_lshlrev_b32 v{LOFF}, 4, v{L}')
    for kq in range(4):
        a(f's_mov_b32 s{S_T}, {kq*12288 + 1536*4}')
        a.vmem(f'buffer_load_dwordx2 v[{128+2*kq}:{129+2*kq}], v190, s[{SRD_MP}:{SRD_MP+3}], s{S_T} offen', 'mod')
        a.vmem(f'buffer_load_dwordx2 v[{136+2*kq}:{137+2*kq}], v190, s[{SRD_MP}:{SRD_MP+3}], s{S_T} offen offset:2048', 'mod')
    a.srd(48, 4, WS_ST2, 262144)
    a(f'v_and_b32 v191, 31, v{L}'); a('v_lshlrev_b32 v191, 7, v191'); a(f'v_lshrrev_b32 v192, 5, v{L}'); a('v_lshlrev_b32 v192, 6, v192'); a('v_add_u32 v191, v191, v192')
    a(f's_lshl_b32 s{S_T}, s{S_RT}, 12')
    for i in range(4):
        a.vmem(f'buffer_load_dwordx4 v[{192+4*i}:{195+4*i}], v191, s[48:51], s{S_T} offen offset:{16*i}', 'st')
    a(f's_lshl_b32 s{S_XO}, s{S_RT}, 15')
    def x_load_ops(s):
        return [f's_add_u32 s{S_XO+1}, s{S_XO}, {(s//4)*4096}', None,
                f'buffer_load_dwordx4 v[{4*s}:{4*s+3}], v{LOFF}, s[{SRD_X}:{SRD_X+3}], s{S_XO+1} offen offset:{(s%4)*1024}']
    def x_load(s):
        o = x_load_ops(s); a(o[0]); a.vmem(o[2], ('X', s))
    vg, vhf, vch, vrr, vc, vt, vu, vw = 160, 161, 162, 163, 164, 165, 166, 167
    a(f'v_lshrrev_b32 v{vg}, 4, v{L}'); a(f'v_lshrrev_b32 v{vhf}, 5, v{L}'); a(f'v_and_b32 v{vch}, 1, v{vg}')
    a(f'v_bfe_u32 v{vrr}, v{L}, 2, 2'); a(f'v_and_b32 v{vc}, 3, v{L}')
    a(f'v_and_b32 v{vt}, 15, v{L}'); a(f'v_lshlrev_b32 v{vu}, 2, v{vg}'); a(f'v_xor_b32 v{vu}, v{vt}, v{vu}'); a(f'v_lshlrev_b32 v{vu}, 4, v{vu}')
    a(f'v_mul_u32_u24 v{WOFF}, 3584, v{vg}'); a(f'v_add_u32 v{WOFF}, v{WOFF}, v{vu}')
    for dt in range(4):
        a(f'v_xor_b32 v{vt}, {dt}, v{vrr}'); a(f'v_lshlrev_b32 v{vt}, 2, v{vt}')
        a(f'v_lshlrev_b32 v{vu}, 1, v{vch}'); a(f'v_add_u32 v{vt}, v{vt}, v{vu}')
        a(f'v_lshrrev_b32 v{vu}, 1, v{vc}'); a(f'v_add_u32 v{vu}, v{vt}, v{vu}'); a(f'v_lshlrev_b32 v{vu}, 4, v{vu}')
        a(f'v_and_b32 v{vw}, 1, v{vc}'); a(f'v_lshlrev_b32 v{vw}, 3, v{vw}'); a(f'v_add_u32 v{vu}, v{vu}, v{vw}')
        a(f'v_lshlrev_b32 v{vw}, 2, v{vhf}'); a(f'v_add_u32 v{vw}, v{vw}, v{vrr}'); a(f'v_lshlrev_b32 v{vw}, 8, v{vw}')
        a(f'v_add_u32 v{WAD[0]+dt}, v{vu}, v{vw}')
        a(f'v_add_u32 v{WAD[1]+dt}, 65536, v{WAD[0]+dt}')
    a(f'v_lshlrev_b32 v{GSA}, 4, v{vhf}'); a(f'v_add_u32 v{GSA}, {GSBASE}, v{GSA}')
    a(f's_lshl_b32 s{S_GO}, s{S_FG}, 8'); a(f's_mul_i32 s{S_T}, s{S_W}, {4*3584}'); a(f's_add_u32 s{S_GO}, s{S_GO}, s{S_T}')
    a(f's_lshl_b32 s{S_M0}, s{S_W}, 10')
    def w_dma_ops(c):
        slot = c % 4
        ops = []
        for gu in range(2):
            srd = SRD_G if gu == 0 else SRD_U
            for m in range(4):
                ops.append([f's_add_u32 m0, s{S_M0}, {slot*32768 + gu*16384 + m*4096}',
                            f's_add_u32 s{S_T}, s{S_GO}, {(c*64 + m*16)*3584}',
                            f'buffer_load_dwordx4 v{WOFF}, s[{srd}:{srd+3}], s{S_T} offen lds'])
        return ops
    def w_dma(c):
        for o in w_dma_ops(c):
            a(o[0]); a(o[1]); a.vmem(o[2], ('W', c))
    w_dma(0)
    for s in range(4): x_load(s)
    w_dma(1)
    for s in range(4, 8): x_load(s)
    w_dma(2)
    for s in range(8, 12): x_load(s)
    a.wait_vm('mod')
    for c_ in range(2):
        a(f'v_add_f32 v{128+c_}, v{128+c_}, v{130+c_}'); a(f'v_add_f32 v{132+c_}, v{132+c_}, v{134+c_}')
        a(f'v_add_f32 v{128+c_}, v{128+c_}, v{132+c_}')
        a(f'v_add_f32 v{136+c_}, v{136+c_}, v{138+c_}'); a(f'v_add_f32 v{140+c_}, v{140+c_}, v{142+c_}')
        a(f'v_add_f32 v{136+c_}, v{136+c_}, v{140+c_}')
        round_bf16(a, 128+c_, 144); round_bf16(a, 136+c_, 144)
        a(f'v_add_f32 v{136+c_}, 1.0, v{136+c_}'); round_bf16(a, 136+c_, 144)
    a(f'v_add_u32 v190, {GSBASE}, v190')
    a.lds('ds_write_b64 v190, v[136:137]'); a.lds('ds_write_b64 v190, v[128:129] offset:2048')
    a.wait_vm('st')
    for i in range(2, 16, 2):
        a(f'v_add_f32 v192, v192, v{192+i}'); a(f'v_add_f32 v193, v193, v{193+i}')
    a('v_mov_b32 v168, v192'); a('v_mov_b32 v170, v193')
    xhalf_sum(a, 168, 169); xhalf_sum(a, 170, 171)
    a(f'v_mul_f32 v168, {f2u(1/512)}, v168')
    a(f'v_mul_f32 v170, {f2u(1/512)}, v170')
    a('v_fma_f32 v170, -v168, v168, v170')
    a('v_max_f32 v170, 0, v170')
    round_bf16(a, 170, 169)
    a(f'v_add_f32 v170, {f2u(1e-5)}, v170'); round_bf16(a, 170, 169)
    a('v_sqrt_f32 v170, v170'); a('s_nop 0'); round_bf16(a, 170, 169)
    a(f'v_rcp_f32 v{RS}, v170')
    round_bf16(a, 168, 169)
    a(f'v_mul_f32 v{MR}, v168, v{RS}'); a(f'v_sub_f32 v{MR}, 0, v{MR}')
    def gs_read(s):
        b = GSR[s&1]
        a.lds(f'ds_read_b128 v[{b}:{b+3}], v{GSA} offset:{s*64}', ('G', s))
        a.lds(f'ds_read_b128 v[{b+4}:{b+7}], v{GSA} offset:{s*64+32}', ('G', s))
        a.lds(f'ds_read_b128 v[{b+8}:{b+11}], v{GSA} offset:{s*64+2048}', ('G', s))
        a.lds(f'ds_read_b128 v[{b+12}:{b+15}], v{GSA} offset:{s*64+2048+32}', ('G', s))
    def gs_read_ops(s):
        b = GSR[s&1]
        return [f'ds_read_b128 v[{b}:{b+3}], v{GSA} offset:{s*64}', f'ds_read_b128 v[{b+4}:{b+7}], v{GSA} offset:{s*64+32}',
                f'ds_read_b128 v[{b+8}:{b+11}], v{GSA} offset:{s*64+2048}', f'ds_read_b128 v[{b+12}:{b+15}], v{GSA} offset:{s*64+2048+32}']
    def w_read_ops(s):
        ops = []
        c = s//4; slot = c % 4
        for gu in range(2):
            for dt in range(4):
                for u in range(2):
                    off = slot*32768 + gu*16384 + (s%4)*4096 + u*2048
                    r = WF[s&1] + (gu*4+dt)*4 + 2*u
                    ops.append(f'ds_read_b64_tr_b16 {ar(r,2)}, v{WAD[off>>16]+dt} offset:{off & 65535}')
        return ops
    def modulate_ops(s):
        ops = []; b = GSR[s&1]
        for k in range(4):
            x = 4*s+k; t0 = TT + 2*(k % 4); t1 = t0+1
            ops += [f'v_lshlrev_b32 v{t0}, 16, v{x}', f'v_and_b32 v{t1}, 0xffff0000, v{x}',
                    f'v_fma_f32 v{t0}, v{t0}, v{RS}, v{MR}', f'v_fma_f32 v{t1}, v{t1}, v{RS}, v{MR}',
                    f'v_fma_f32 v{t0}, v{t0}, v{b+2*k}, v{b+8+2*k}', f'v_fma_f32 v{t1}, v{t1}, v{b+2*k+1}, v{b+8+2*k+1}',
                    f'v_cvt_pk_bf16_f32 v{HF[s&1]+k}, v{t0}, v{t1}']
        return ops
    a.wait_vm([('W', 0), ('X', 0)]); a.wait_lg0(); a('s_barrier')
    st.mark()
    gs_read(0); gs_read(1)
    for i, op in enumerate(w_read_ops(0)): a.lds(op, ('Wf', 0, i//8))
    a.wait_lg(('G', 0))
    for op in modulate_ops(0): a(op)
    Q = []
    for c in range(3, 8):
        for o in w_dma_ops(c): Q.append((4*c-1, -1 if c <= 3 else 4*(c-3)-1, ('W', c), o))
    for s_ in range(12, 32): Q.append((s_-1, -1, ('X', s_), x_load_ops(s_)))
    Q.sort(key=lambda x: x[0])
    def pop_q(s):
        for i, it in enumerate(Q):
            if it[1] <= s: return Q.pop(i)
        return None
    for s in range(32):
        bar = (s % 4 == 3 and s < 31)
        if s in (3, 4, 7, 8): st.mark()
        if bar:
            c = (s+1)//4
            assert not any(it[2] == ('W', c) for it in Q)
            a.wait_vm(('W', c)); a.wait_lg0(); a('s_barrier')
        else:
            a.wait_lg(('Wf', s, 0))
        if s+1 < 32:
            assert not any(it[2] == ('X', s+1) for it in Q)
            a.wait_vm(('X', s+1))
            a.wait_lg(('G', s+1))
            wr = w_read_ops(s+1); md = modulate_ops(s+1)
        else: wr, md = [], []
        gr = gs_read_ops(s+2) if s+2 < 32 else []
        if s+2 >= 32: a('s_nop 1')
        for g in range(8):
            d = ar(ACC(g), 16)
            if g == 4 and not bar: a.wait_lg(('Wf', s, 1))
            it = pop_q(s) if g % 2 == 0 else None
            if it:
                for x in it[3][:2]:
                    if x: a(x)
            a(mfma(d, ar(WF[s&1]+g*4,4), vr(HF[s&1],4), '0' if s == 0 else d))
            if it: a.vmem(it[3][2], it[2])
            if g == 1:
                for op in gr: a.lds(op, ('G', s+2))
            for op in wr[2*g:2*g+2]: a.lds(op, ('Wf', s+1, g//4))
            lo = (28*g)//8; hi = (28*(g+1))//8
            for op in md[lo:hi]: a(op)
    assert not Q
    st.mark()
    a.nop(16)
    a(f's_mul_i32 s{S_XO}, s{S_RT}, {112*1024}'); a(f's_lshl_b32 s{S_T}, s{S_FG}, 13'); a(f's_add_u32 s{S_XO}, s{S_XO}, s{S_T}')
    a(f's_mov_b32 s{S_T2}, {f2u(-LOG2E)}')
    cnt = 0
    for mt in range(4):
        for t in range(2):
            b = 32*(cnt % 2); cnt += 1
            G = b; U = b+8; E = b+16; O_ = b+24
            for k in range(8): a(f'v_accvgpr_read_b32 v{G+k}, a{ACC(mt)+8*t+k}')
            for k in range(8): a(f'v_accvgpr_read_b32 v{U+k}, a{ACC(4+mt)+8*t+k}')
            for k in range(8): a(f'v_mul_f32 v{E+k}, s{S_T2}, v{G+k}')
            for k in range(8): a(f'v_exp_f32 v{E+k}, v{E+k}')
            for k in range(8): a(f'v_add_f32 v{E+k}, 1.0, v{E+k}')
            for k in range(8): a(f'v_rcp_f32 v{E+k}, v{E+k}')
            for k in range(8): a(f'v_mul_f32 v{G+k}, v{G+k}, v{E+k}')
            for k in range(8): a(f'v_mul_f32 v{G+k}, v{G+k}, v{U+k}')
            for k in range(4): a(f'v_cvt_pk_bf16_f32 v{O_+k}, v{G+2*k}, v{G+2*k+1}')
            ks = 2*mt+t
            a(f's_add_u32 s{S_T}, s{S_XO}, {(ks//4)*4096}')
            a(f'buffer_store_dwordx4 v[{O_}:{O_+3}], v{LOFF}, s[{SRD_O}:{SRD_O+3}], s{S_T} offen offset:{(ks%4)*1024} {STSC}')
    st.end(S_W, 2)
    a('s_waitcnt vmcnt(0)')
    a.label(f'{N}_END')
    a('s_endpgm')
    return a.text(), kernel_desc(name, 512, 96, 256), f'{name} grid=(224,1,1) block=(256,1,1) lds=135168'
```

```python
import sys, importlib
import gen, gen_b, gen_t, build
def make(path, stamp, **kw):
    a_pf = kw.pop('a_pf', True); osc = kw.pop('osc', 'sc1'); dsc = kw.pop('dsc', ''); csc = kw.pop('csc', '')
    cdepth = kw.pop('cdepth', 10); edepth = kw.pop('edepth', 10); rot = kw.pop('rot', False)
    tk = {k[2:]: kw.pop(k) for k in list(kw) if k.startswith('t_')}
    gen_t.TCFG.update(tk)
    gen_b.CFG.update(kw)
    parts = [gen.gen_ka(stamp=stamp, PF=a_pf), gen_b.gen_kb(stamp=stamp, OSC=osc),
             gen_t.gen_proj('C', stamp=stamp, DEPTH=cdepth, ROT=rot, STSC=csc), gen_t.gen_kd(stamp=stamp, STSC=dsc),
             gen_t.gen_proj('E', stamp=stamp, DEPTH=edepth, ROT=False)]
    build.assemble(parts, path)
if __name__ == '__main__':
    kw = {}
    for kv in sys.argv[3:]:
        k, v = kv.split('=', 1); kw[k] = eval(v)
    make(sys.argv[1], sys.argv[2] == 'stamp', **kw)
```

```python
from asmlib import *
import gen
from gen import f2u, round_bf16, xhalf_sum, wave_allreduce_add, LOG2E, KA_X, KA_K, KA_V, KA_WQ, KA_WO, KA_WG, KA_WU, KA_WD, KA_C, KA_WMOD, KA_OUT, KA_DBG, KA_WS
import gen_b as B
from gen_b import mfma, S, NEGM, P, T, KAD, VAD, VOK, VOV, LT, LR, LANE, TMP, OA, QF, KF, VF, k_read, v_read, gen_iter, gen_rare
from gen_b import S_W, S_H, S_QB, S_RT, S_KOFF, S_VOFF, S_M0, S_CNT, S_T, S_THR, S_RET, S_PF, S_PFM, SRD_K, SRD_V, SRD_WQ, SRD_XN, SRD_O, SRD_MP, VBASE, OFFSET, THR
KN = 'adaLN_cond__mha_block_cached__swiglu_ffn__prompt_kernel'

WS_M1 = 0x0; WS_XN = 0x10000; WS_M2 = 0x220000; WS_SYNC = 0x300000
WS_O = 0x400000; WS_X1 = 0x1400000; WS_H2 = 0x1600000; WS_ACT = 0x1800000; WS_STAMP = 0x2000000; WS_P = 0x3000000
C_FG, C_M2, C_CO, C_CP, C_CH, C_CA = 0, 8, 16, 48, 64, 80
SCR = 131072
GSBASE = SCR + 24576
TID = 255; STV = 253
SRD_SY = 60
M = dict(stamp=False, c_prex=12, d_prex=10, e_depth=10, pre_x=10, qp_slots=(0, 2, 4, 6), spin=200000)

class Mega:
    def __init__(self):
        self.a = Asm(); self.nst = 0
    def stamp(self):
        a = self.a
        if M['stamp']:
            a('s_memrealtime s[72:73]'); a('s_waitcnt lgkmcnt(0)'); a(f'v_writelane_b32 v{STV}, s72, {self.nst}'); self.nst += 1
    def signal(self, idx_list, vm_allow=0):
        a = self.a
        a(f's_waitcnt vmcnt({vm_allow})'); a('s_barrier')
        l = a.newlabel('SIG')
        a(f's_cmp_lg_u32 s{S_W}, 0'); a(f's_cbranch_scc1 {l}')
        a('s_mov_b64 exec, 1')
        a('v_mov_b32 v251, 1')
        for s_ in idx_list:
            a(f'v_mov_b32 v252, s{s_}')
            a(f'buffer_atomic_add v251, v252, s[{SRD_SY}:{SRD_SY+3}], 0 offen sc1')
        a('s_mov_b64 exec, -1')
        a.label(l)
    def wait(self, specs):
        a = self.a
        l = a.newlabel('WDONE')
        a(f's_cmp_lg_u32 s{S_W}, 0'); a(f's_cbranch_scc1 {l}')
        for so, nl, target in specs:
            lp = a.newlabel('POLL'); ok = a.newlabel('POK')
            a(f's_mov_b64 exec, {(1 << nl)-1}')
            a(f'v_and_b32 v252, 63, v{TID}'); a('v_lshlrev_b32 v252, 8, v252'); a(f'v_add_u32 v252, s{so}, v252')
            a('s_mov_b32 s68, 0')
            a.label(lp)
            a(f'buffer_load_dword v251, v252, s[{SRD_SY}:{SRD_SY+3}], 0 offen sc1')
            a('s_waitcnt vmcnt(0)')
            a(f'v_cmp_le_u32 vcc, {target}, v251')
            a('s_add_u32 s68, s68, 1')
            a(f's_cmp_eq_u64 vcc, exec'); a(f's_cbranch_scc1 {ok}')
            a(f's_cmp_gt_u32 s68, {M["spin"]}'); a(f's_cbranch_scc1 {ok}')
            a('s_sleep 1'); a(f's_branch {lp}')
            a.label(ok)
        a('s_mov_b64 exec, -1')
        a.label(l)
        a('s_barrier')

    def front(self):
        a = self.a
        a(f's_load_dwordx2 s[4:5], s[0:1], {KA_WS}')
        a(f's_load_dwordx2 s[6:7], s[0:1], {KA_C}'); a(f's_load_dwordx2 s[8:9], s[0:1], {KA_WMOD}'); a(f's_load_dwordx2 s[10:11], s[0:1], {KA_X}')
        a(f's_load_dwordx2 s[74:75], s[0:1], {KA_WQ}'); a(f's_load_dwordx2 s[76:77], s[0:1], {KA_DBG}')
        a(f'v_mov_b32 v{TID}, v0')
        a('v_lshrrev_b32 v1, 6, v0'); a(f'v_and_b32 v{LANE}, 63, v0'); a('s_nop 0'); a(f'v_readfirstlane_b32 s{S_W}, v1')
        if M['stamp']: a(f'v_mov_b32 v{STV}, 0')
        a(f's_and_b32 s{S_H}, s2, 31'); a(f's_lshr_b32 s{S_QB}, s2, 5')
        a(f'v_lshlrev_b32 v3, 4, v{LANE}')
        a('s_waitcnt lgkmcnt(0)')
        self.stamp()
        a.srd(SRD_SY, 4, WS_SYNC, 24576); a.srd(64, 76, 0, 256)
        a.srd(28, 10, 0, 2097152); a.srd(SRD_XN, 4, WS_XN, 2097152)
        a.srd(12, 6, 0, 1024); a.srd(16, 8, 0, 3145728); a.srd(SRD_WQ, 74, 0, 4194304)
        a('s_cmp_lg_u32 s2, 0'); a('s_cbranch_scc1 F_NOZ')
        for k in range(4): a(f'v_mov_b32 v{8+k}, 0')
        a(f'v_lshlrev_b32 v4, 4, v{TID}')
        for k in range(6):
            a(f's_mov_b32 s{S_T}, {k*4096}'); a(f'buffer_store_dwordx4 v[8:11], v4, s[{SRD_SY}:{SRD_SY+3}], s{S_T} offen sc1')
        a('s_waitcnt vmcnt(0)'); a('s_barrier')
        a(f's_cmp_lg_u32 s{S_W}, 0'); a('s_cbranch_scc1 F_NOZ')
        a('s_mov_b64 exec, 1'); a('v_mov_b32 v8, 1'); a('v_mov_b32 v9, 0'); a('buffer_store_dword v8, v9, s[64:67], 0 offen sc1'); a('s_mov_b64 exec, -1')
        a.label('F_NOZ')
        a('s_lshl_b32 s80, s2, 3'); a(f's_lshl_b32 s81, s{S_W}, 1'); a('s_add_u32 s80, s80, s81'); a('s_lshl_b32 s80, s80, 10')
        a.vmem('buffer_load_dwordx4 v[8:11], v3, s[28:31], s80 offen', 'x'); a.vmem('buffer_load_dwordx4 v[12:15], v3, s[28:31], s80 offen offset:1024', 'x')
        a(f'v_and_b32 v4, 7, v{TID}'); a('v_lshlrev_b32 v4, 4, v4'); a(f'v_lshrrev_b32 v5, 3, v{TID}')
        a(f's_and_b32 s82, s{S_H}, 15'); a(f's_lshr_b32 s83, s{S_H}, 4')
        a('v_mul_u32_u24 v6, 49152, v5'); a('v_add_u32 v6, v6, v4')
        a(f's_mul_i32 s84, s83, {256*6144}'); a('s_lshl_b32 s85, s82, 7'); a('s_add_u32 s84, s84, s85')
        a('v_lshlrev_b32 v7, 4, v5'); a('s_lshl_b32 s85, s83, 9')
        a.vmem('buffer_load_dwordx4 v[16:19], v7, s[12:15], s85 offen', 'c1')
        for i in range(8):
            a(f's_add_u32 s86, s84, {i*6144}'); a.vmem(f'buffer_load_dwordx4 v[{20+4*i}:{23+4*i}], v6, s[16:19], s86 offen', 'w1')
        a('v_mul_u32_u24 v67, 12288, v5'); a('v_add_u32 v67, v67, v4')
        a(f's_mul_i32 s87, s{S_QB}, {64*6144}'); a(f's_lshl_b32 s88, s{S_H}, 7'); a('s_add_u32 s87, s87, s88'); a('s_add_u32 s87, s87, 2048')
        a('v_lshlrev_b32 v68, 2, v5'); a(f's_lshl_b32 s88, s{S_QB}, 7')
        a.vmem('buffer_load_dword v52, v68, s[12:15], s88 offen', 'c2')
        for i in range(2):
            a(f's_add_u32 s86, s87, {i*6144}'); a.vmem(f'buffer_load_dwordx4 v[{56+4*i}:{59+4*i}], v67, s[16:19], s86 offen', 'w2')
        L = LANE
        a(f'v_lshrrev_b32 v70, 4, v{L}'); a(f'v_and_b32 v71, 15, v{L}'); a('v_lshlrev_b32 v72, 2, v70'); a('v_xor_b32 v72, v71, v72'); a('v_lshlrev_b32 v72, 4, v72')
        a('v_lshlrev_b32 v222, 13, v70'); a('v_add_u32 v222, v222, v72')
        a(f's_lshl_b32 s89, s{S_W}, 10'); a(f's_lshl_b32 s99, s{S_W}, 15'); a(f's_lshl_b32 s{S_T}, s{S_H}, 8'); a(f's_add_u32 s99, s99, s{S_T}')
        for m in range(32):
            a(f's_add_u32 m0, s89, {m*4096}'); a(f's_add_u32 s{S_T}, s99, {m*131072}')
            a.vmem(f'buffer_load_dwordx4 v222, s[{SRD_WQ}:{SRD_WQ+3}], s{S_T} offen lds', 'W')
        a.wait_vm('x')
        for r in range(2):
            src = 8+4*r; X = 100+8*r
            for k in range(4):
                a(f'v_lshlrev_b32 v{X+2*k}, 16, v{src+k}'); a(f'v_and_b32 v{X+2*k+1}, 0xffff0000, v{src+k}')
            m = 116+r
            a(f'v_add_f32 v{m}, v{X}, v{X+1}')
            for k in range(2, 8): a(f'v_add_f32 v{m}, v{m}, v{X+k}')
        for r in range(2): wave_allreduce_add(a, 116+r, 118)
        for r in range(2):
            X = 100+8*r; m = 116+r; v = 120+r
            a(f'v_mul_f32 v{m}, {f2u(1/512)}, v{m}')
            a(f'v_sub_f32 v118, v{X}, v{m}'); a(f'v_mul_f32 v{v}, v118, v118')
            for k in range(1, 8):
                a(f'v_sub_f32 v118, v{X+k}, v{m}'); a(f'v_fmac_f32 v{v}, v118, v118')
        for r in range(2): wave_allreduce_add(a, 120+r, 118)
        for r in range(2):
            X = 100+8*r; m = 116+r; v = 120+r
            a(f'v_mul_f32 v{v}, {f2u(1/512)}, v{v}')
            round_bf16(a, v, 118); a(f'v_add_f32 v{v}, {f2u(1e-5)}, v{v}'); round_bf16(a, v, 118)
            a(f'v_sqrt_f32 v{v}, v{v}'); a('s_nop 0'); round_bf16(a, v, 118)
            a(f'v_rcp_f32 v{v}, v{v}'); round_bf16(a, m, 118)
            for k in range(4):
                a(f'v_sub_f32 v118, v{X+2*k}, v{m}'); a(f'v_sub_f32 v119, v{X+2*k+1}, v{m}')
                a('v_cvt_pk_bf16_f32 v122, v118, v119'); a('v_lshlrev_b32 v118, 16, v122'); a('v_and_b32 v119, 0xffff0000, v122')
                a(f'v_mul_f32 v118, v118, v{v}'); a(f'v_mul_f32 v119, v119, v{v}')
                a(f'v_cvt_pk_bf16_f32 v{8+4*r+k}, v118, v119')
        a(f'v_lshlrev_b32 v118, 7, v{L}'); a(f's_lshl_b32 s44, s{S_W}, 5'); a(f's_add_u32 s44, s44, {SCR+16384}'); a('v_add_u32 v118, s44, v118')
        a('ds_write_b128 v118, v[8:11]'); a('ds_write_b128 v118, v[12:15] offset:16')
        def silu(vals):
            for i, r in enumerate(vals): a(f'v_mul_f32 v{124+i}, {f2u(-LOG2E)}, v{r}')
            for i, r in enumerate(vals): a(f'v_exp_f32 v{124+i}, v{124+i}')
            a('s_nop 0')
            for i, r in enumerate(vals): a(f'v_add_f32 v{124+i}, 1.0, v{124+i}')
            for i, r in enumerate(vals): a(f'v_rcp_f32 v{124+i}, v{124+i}')
            a('s_nop 0')
            for i, r in enumerate(vals): a(f'v_mul_f32 v{r}, v{r}, v{124+i}')
            for r in vals: round_bf16(a, r, 132)
        a.wait_vm('w1')
        for k in range(4):
            a(f'v_lshlrev_b32 v{100+2*k}, 16, v{16+k}'); a(f'v_and_b32 v{101+2*k}, 0xffff0000, v{16+k}')
        silu(list(range(100, 108)))
        for i in range(8):
            for j in range(4):
                w = 20+4*i+j
                a(f'v_lshlrev_b32 v108, 16, v{w}'); a(f'v_and_b32 v109, 0xffff0000, v{w}')
                if i == 0: a(f'v_mul_f32 v{110+2*j}, v108, v100'); a(f'v_mul_f32 v{111+2*j}, v109, v100')
                else: a(f'v_fmac_f32 v{110+2*j}, v108, v{100+i}'); a(f'v_fmac_f32 v{111+2*j}, v109, v{100+i}')
        a('v_lshlrev_b32 v108, 8, v5'); a('v_lshlrev_b32 v109, 1, v4'); a('v_add_u32 v108, v108, v109'); a(f'v_add_u32 v108, {SCR}, v108')
        for j in range(4): a(f'ds_write_b64 v108, v[{110+2*j}:{111+2*j}] offset:{8*j}')
        a.wait_vm('w2')
        a('v_lshlrev_b32 v100, 16, v52'); a('v_and_b32 v101, 0xffff0000, v52')
        silu([100, 101])
        for i in range(2):
            for j in range(4):
                w = 56+4*i+j
                a(f'v_lshlrev_b32 v102, 16, v{w}'); a(f'v_and_b32 v103, 0xffff0000, v{w}')
                if i == 0: a(f'v_mul_f32 v{110+2*j}, v102, v100'); a(f'v_mul_f32 v{111+2*j}, v103, v100')
                else: a(f'v_fmac_f32 v{110+2*j}, v102, v101'); a(f'v_fmac_f32 v{111+2*j}, v103, v101')
        for j in range(4): a(f'ds_write_b64 v108, v[{110+2*j}:{111+2*j}] offset:{8192+8*j}')
        a('s_waitcnt lgkmcnt(0)'); a('s_barrier')
        a(f'v_lshlrev_b32 v118, 4, v{TID}'); a(f'v_add_u32 v119, {SCR+16384}, v118')
        a('ds_read_b128 v[8:11], v119'); a('ds_read_b128 v[12:15], v119 offset:4096')
        a(f'v_lshrrev_b32 v119, 3, v{TID}'); a('v_lshlrev_b32 v119, 9, v119'); a(f'v_and_b32 v120, 7, v{TID}'); a('v_lshlrev_b32 v120, 4, v120'); a('v_add_u32 v119, v119, v120')
        a('s_lshr_b32 s44, s2, 2'); a('s_lshl_b32 s44, s44, 15'); a('s_and_b32 s45, s2, 3'); a('s_lshl_b32 s45, s45, 7'); a('s_add_u32 s44, s44, s45'); a('s_add_u32 s45, s44, 16384')
        a('s_waitcnt lgkmcnt(0)')
        a.vmem(f'buffer_store_dwordx4 v[8:11], v119, s[{SRD_XN}:{SRD_XN+3}], s44 offen sc1', 'st'); a.vmem(f'buffer_store_dwordx4 v[12:15], v119, s[{SRD_XN}:{SRD_XN+3}], s45 offen sc1', 'st')
        a(f's_cmp_gt_u32 s{S_W}, 1'); a('s_cbranch_scc1 F_NORED')
        a(f'v_lshlrev_b32 v3, 2, v{L}'); a(f's_lshl_b32 s44, s{S_W}, 13'); a(f's_add_u32 s44, s44, {SCR}'); a('v_add_u32 v4, s44, v3')
        for r in range(32): a(f'ds_read_b32 v{20+r}, v4 offset:{256*r}')
        a('s_waitcnt lgkmcnt(0)')
        n = 32
        while n > 1:
            for r in range(n//2): a(f'v_add_f32 v{20+r}, v{20+r}, v{20+r+n//2}')
            n //= 2
        a(f's_lshl_b32 s44, s{S_QB}, 1'); a('s_add_u32 s44, s44, s83'); a('s_lshl_b32 s44, s44, 12'); a('s_lshl_b32 s45, s82, 8'); a('s_add_u32 s44, s44, s45')
        a(f's_lshl_b32 s45, s{S_QB}, 13'); a(f's_lshl_b32 s46, s{S_H}, 8'); a('s_add_u32 s45, s45, s46'); a(f's_add_u32 s45, s45, {WS_M2}')
        a(f's_cmp_eq_u32 s{S_W}, 0'); a('s_cselect_b32 s44, s44, s45')
        a.srd(SRD_MP, 4, 0, WS_M2 + 65536)
        a(f'buffer_store_dword v20, v3, s[{SRD_MP}:{SRD_MP+3}], s44 offen sc1')
        a.label('F_NORED')
        self.stamp()
        a('s_waitcnt vmcnt(0)'); a.vm = []
        a(f's_cmp_lg_u32 s{S_W}, 0'); a('s_cbranch_scc1 F_ZOK')
        a('s_mov_b64 exec, 1'); a('v_mov_b32 v252, 0'); a('s_mov_b32 s68, 0')
        a.label('F_ZP')
        a('buffer_load_dword v251, v252, s[64:67], 0 offen sc1'); a('s_waitcnt vmcnt(0)'); a('v_readfirstlane_b32 s69, v251')
        a('s_add_u32 s68, s68, 1'); a('s_cmp_lg_u32 s69, 0'); a('s_cbranch_scc1 F_ZD')
        a(f's_cmp_gt_u32 s68, {M["spin"]}'); a('s_cbranch_scc1 F_ZD'); a('s_sleep 1'); a('s_branch F_ZP')
        a.label('F_ZD'); a('s_mov_b64 exec, -1')
        a.label('F_ZOK')
        a(f's_lshl_b32 s70, s{S_QB}, 8'); a('s_and_b32 s71, s2, 7'); a(f's_add_u32 s71, s71, {C_M2}'); a('s_lshl_b32 s71, s71, 8')
        self.signal([70, 71])
        self.stamp()

    def attention(self):
        a = self.a; L = LANE
        a(f's_load_dwordx2 s[6:7], s[0:1], {KA_K}'); a(f's_load_dwordx2 s[8:9], s[0:1], {KA_V}')
        a(f's_load_dwordx2 s[56:57], s[0:1], {KA_WO}'); a(f's_load_dwordx2 s[90:91], s[0:1], {KA_WG}'); a(f's_load_dwordx2 s[92:93], s[0:1], {KA_WU}'); a(f's_load_dwordx2 s[94:95], s[0:1], {KA_WD}')
        a(f's_lshl_b32 s{S_RT}, s{S_QB}, 3'); a(f's_lshl_b32 s{S_T}, s{S_W}, 1'); a(f's_add_u32 s{S_RT}, s{S_RT}, s{S_T}')
        a(f's_lshl_b32 s{S_M0}, s{S_W}, 12'); a(f's_mov_b32 s{S_THR}, {f2u(THR)}')
        a('s_mov_b32 s58, 4194304'); a('s_mov_b32 s59, 0x00020000')
        a('s_mov_b32 s96, 1835008'); a('s_mov_b32 s97, 1835008'); a('s_mov_b32 s98, 1835008')
        a(f's_lshl_b32 s{S_PF}, s2, 12'); a(f's_lshl_b32 s{S_PFM}, s{S_W}, 10'); a(f's_add_u32 s{S_PF}, s{S_PF}, s{S_PFM}'); a(f's_add_u32 s{S_PFM}, s{S_PFM}, {SCR}')
        vg, vhf, vch, vrr, vc, vt, vu = 200, 201, 202, 203, 204, 205, 206
        a(f'v_lshrrev_b32 v{vg}, 4, v{L}'); a(f'v_lshrrev_b32 v{vhf}, 5, v{L}'); a(f'v_and_b32 v{vch}, 1, v{vg}'); a(f'v_bfe_u32 v{vrr}, v{L}, 2, 2'); a(f'v_and_b32 v{vc}, 3, v{L}')
        a(f'v_and_b32 v{vt}, 15, v{L}'); a(f'v_lshlrev_b32 v{vu}, 2, v{vg}'); a(f'v_xor_b32 v{vu}, v{vt}, v{vu}'); a(f'v_lshlrev_b32 v{vu}, 4, v{vu}')
        a(f'v_lshlrev_b32 v{VOV}, 8, v{vg}'); a(f'v_add_u32 v{VOV}, v{VOV}, v{vu}')
        for i in range(4):
            a(f'v_add_u32 v{vu}, {4*i}, v{vg}'); a(f'v_xor_b32 v{vu}, v{vt}, v{vu}'); a(f'v_lshlrev_b32 v{vu}, 4, v{vu}')
            a(f'v_lshlrev_b32 v{VOK+i}, 8, v{vg}'); a(f'v_add_u32 v{VOK+i}, v{VOK+i}, v{vu}')
        a(f'v_and_b32 v{vt}, 31, v{L}')
        for s in range(8):
            a(f'v_add_u32 v{vu}, {2*s}, v{vhf}'); a(f'v_and_b32 v{KAD+s}, 15, v{vt}'); a(f'v_xor_b32 v{vu}, v{vu}, v{KAD+s}'); a(f'v_lshlrev_b32 v{vu}, 4, v{vu}')
            a(f'v_lshlrev_b32 v{KAD+s}, 8, v{vt}'); a(f'v_add_u32 v{KAD+s}, v{KAD+s}, v{vu}')
        WAD = 216
        for dt in range(4):
            a(f'v_xor_b32 v{vt}, {dt}, v{vrr}'); a(f'v_lshlrev_b32 v{vt}, 2, v{vt}'); a(f'v_lshlrev_b32 v{vu}, 1, v{vch}'); a(f'v_add_u32 v{vt}, v{vt}, v{vu}')
            a(f'v_lshrrev_b32 v{vu}, 1, v{vc}'); a(f'v_add_u32 v{vu}, v{vt}, v{vu}'); a(f'v_lshlrev_b32 v{vu}, 4, v{vu}')
            a(f'v_and_b32 v207, 1, v{vc}'); a('v_lshlrev_b32 v207, 3, v207'); a(f'v_add_u32 v{vu}, v{vu}, v207')
            a(f'v_lshlrev_b32 v207, 2, v{vhf}'); a(f'v_add_u32 v207, v207, v{vrr}'); a('v_lshlrev_b32 v207, 8, v207'); a(f'v_add_u32 v{vu}, v{vu}, v207')
            a(f'v_add_u32 v{VAD+dt}, {VBASE}, v{vu}')
            a(f'v_and_b32 v{vu}, 1, v{vc}'); a(f'v_add_u32 v{vu}, v{vt}, v{vu}'); a(f'v_lshlrev_b32 v{vu}, 4, v{vu}')
            a(f'v_lshrrev_b32 v207, 1, v{vc}'); a('v_lshlrev_b32 v207, 3, v207'); a(f'v_add_u32 v{vu}, v{vu}, v207')
            a(f'v_lshlrev_b32 v207, 3, v{vhf}'); a(f'v_add_u32 v207, v207, v{vrr}'); a('v_lshlrev_b32 v207, 8, v207'); a(f'v_add_u32 v{WAD+dt}, v{vu}, v207')
        GSA = 220; XOFF = 221
        a(f'v_lshlrev_b32 v{GSA}, 5, v{vhf}'); a(f'v_add_u32 v{GSA}, {GSBASE}, v{GSA}'); a(f'v_lshlrev_b32 v{XOFF}, 4, v{L}')
        a('s_waitcnt lgkmcnt(0)')
        a(f's_lshl_b32 s{S_T}, s{S_H}, 19')
        a.srd(SRD_K, 6, f's{S_T}', 524288); a.srd(SRD_V, 8, f's{S_T}', 524288)
        a.srd(SRD_O, 4, WS_O, 16777216); a.srd(SRD_MP, 4, WS_M1, 65536)
        a(f's_lshl_b32 s70, s{S_QB}, 8')
        self.wait([(70, 1, 32)])
        self.stamp()
        a(f'v_lshlrev_b32 v223, 3, v{TID}')
        a(f's_lshl_b32 s{S_T}, s{S_QB}, 13')
        for hh in range(2):
            a.vmem(f'buffer_load_dwordx2 v[{160+2*hh}:{161+2*hh}], v223, s[{SRD_MP}:{SRD_MP+3}], s{S_T} offen sc1', 'mod')
            a.vmem(f'buffer_load_dwordx2 v[{168+2*hh}:{169+2*hh}], v223, s[{SRD_MP}:{SRD_MP+3}], s{S_T} offen offset:2048 sc1', 'mod')
            if hh == 0: a(f's_add_u32 s{S_T}, s{S_T}, 4096')
        RING = 20; S_XO = 48
        a(f's_lshl_b32 s{S_XO}, s{S_RT}, 15'); a(f's_add_u32 s{S_XO+1}, s{S_XO}, 32768')
        def x_ops(s, q):
            r = 8*(s % RING) + 4*q
            return ([f's_add_u32 s{S_T}, s{S_XO+q}, {(s//4)*4096}'],
                    f'buffer_load_dwordx4 v[{r}:{r+3}], v{XOFF}, s[{SRD_XN}:{SRD_XN+3}], s{S_T} offen offset:{(s%4)*1024} sc1')
        def kv_ops(which, tile, i):
            base = (0 if which == 'K' else VBASE) + (tile & 3)*16384
            srd = SRD_K if which == 'K' else SRD_V
            vo = VOK+i if which == 'K' else VOV
            return ([f's_add_u32 m0, s{S_M0}, {base}', f's_add_u32 s{S_T}, s{S_M0}, {tile*16384}'],
                    f'buffer_load_dwordx4 v{vo}, s[{srd}:{srd+3}], s{S_T} offen offset:{1024*i} lds')
        def emit_item(ops, tag):
            for x in ops[0]: a(x)
            a.vmem(ops[1], tag)
        PRE_X = M['pre_x']
        for s in range(PRE_X):
            for q in range(2): emit_item(x_ops(s, q), ('X', s))
        a.wait_vm('mod')
        for c_ in range(2):
            a(f'v_add_f32 v{160+c_}, v{160+c_}, v{162+c_}'); a(f'v_add_f32 v{168+c_}, v{168+c_}, v{170+c_}')
            round_bf16(a, 160+c_, 176); round_bf16(a, 168+c_, 176)
            a(f'v_add_f32 v{168+c_}, 1.0, v{168+c_}'); round_bf16(a, 168+c_, 176)
        a(f'v_add_u32 v223, {GSBASE}, v223')
        a.lds('ds_write_b64 v223, v[168:169]'); a.lds('ds_write_b64 v223, v[160:161] offset:2048')
        GSR = [160, 176]; HF = [192, 200]; TT = 208; WF = [192, 208]
        def gs_read_ops(s):
            b = GSR[s&1]
            return [f'ds_read_b128 v[{b}:{b+3}], v{GSA} offset:{s*64}', f'ds_read_b128 v[{b+4}:{b+7}], v{GSA} offset:{s*64+16}',
                    f'ds_read_b128 v[{b+8}:{b+11}], v{GSA} offset:{s*64+2048}', f'ds_read_b128 v[{b+12}:{b+15}], v{GSA} offset:{s*64+2048+16}']
        def w_read_ops(s):
            return [f'ds_read_b64_tr_b16 {ar(WF[s&1] + dt*4 + 2*u,2)}, v{WAD+dt} offset:{(s%16)*4096 + 1024*u}' for dt in range(4) for u in range(2)]
        def modulate_ops(s):
            ops = []; b = GSR[s&1]
            for q in range(2):
                for k in range(4):
                    x = 8*(s % RING) + 4*q + k
                    t0 = TT + 2*((q*4+k) % 4); t1 = t0+1
                    ops += [f'v_lshlrev_b32 v{t0}, 16, v{x}', f'v_and_b32 v{t1}, 0xffff0000, v{x}',
                            f'v_fma_f32 v{t0}, v{t0}, v{b+2*k}, v{b+8+2*k}', f'v_fma_f32 v{t1}, v{t1}, v{b+2*k+1}, v{b+8+2*k+1}',
                            f'v_cvt_pk_bf16_f32 v{HF[s&1]+4*q+k}, v{t0}, v{t1}']
            return ops
        BARS = [7, 15, 23, 31]
        Q = []
        for s in range(PRE_X, 32):
            for q in range(2): Q.append((s-1, s-RING, ('X', s), x_ops(s, q)))
        for which, tile, av in (('K',0,7),('K',1,7),('K',2,15),('K',3,15),('V',0,23),('V',1,23),('V',2,31)):
            for i in range(4): Q.append((100, av, (which, tile), kv_ops(which, tile, i)))
        Q.sort(key=lambda x: x[0])
        def pop_q(s):
            for i, it in enumerate(Q):
                if it[1] <= s: return Q.pop(i)
            return None
        a.wait_lg0(); a('s_barrier')
        for op in gs_read_ops(0): a.lds(op, ('G', 0))
        for op in gs_read_ops(1): a.lds(op, ('G', 1))
        for op in w_read_ops(0): a.lds(op, ('Wf', 0))
        a.wait_vm(('X', 0)); a.wait_lg(('G', 0))
        for op in modulate_ops(0): a(op)
        for s in range(32):
            if s in BARS: a.wait_lg0(); a('s_barrier')
            else: a.wait_lg(('Wf', s))
            if s == 15:
                for dt in range(4): a(f'v_add_u32 v{WAD+dt}, 65536, v{WAD+dt}')
            if s+1 < 32:
                assert not any(it[2] == ('X', s+1) for it in Q), s
                a.wait_vm(('X', s+1)); a.wait_lg(('G', s+1))
                wr = w_read_ops(s+1); md = modulate_ops(s+1)
            else: wr, md = [], []
            gr = gs_read_ops(s+2) if s+2 < 32 else []
            mfs = [mfma(ar(OA(q,dt),16), ar(WF[s&1]+dt*4,4), vr(HF[s&1]+4*q,4), '0' if s == 0 else ar(OA(q,dt),16)) for dt in range(4) for q in range(2)]
            if s+2 >= 32: a('s_nop 1')
            for g in range(8):
                it = pop_q(s) if g in M['qp_slots'] else None
                if it:
                    for x in it[3][0]: a(x)
                a(mfs[g])
                if it: a.vmem(it[3][1], it[2])
                if g < 4:
                    for op in wr[2*g:2*g+2]: a.lds(op, ('Wf', s+1))
                elif g < 6:
                    for op in gr[2*(g-4):2*(g-4)+2]: a.lds(op, ('G', s+2))
                for op in md[5*g:5*g+5]: a(op)
        while Q:
            it = Q.pop(0); emit_item(it[3], it[2])
        a(f's_add_u32 s{S_KOFF}, s{S_M0}, {4*16384}'); a(f's_add_u32 s{S_VOFF}, s{S_M0}, {3*16384}')
        self.stamp()
        a.nop(16)
        a(f's_mov_b32 s{S_T}, {f2u(128**-0.5 * LOG2E)}')
        for q in range(2):
            for dt in range(4):
                for t in range(2):
                    for k in range(8): a(f'v_accvgpr_read_b32 v{k}, a{OA(q,dt)+8*t+k}')
                    for k in range(8): a(f'v_mul_f32 v{k}, s{S_T}, v{k}')
                    for k in range(4): a(f'v_cvt_pk_bf16_f32 v{8+k}, v{2*k}, v{2*k+1}')
                    for k in range(4): a(f'v_accvgpr_write_b32 a{QF(q,2*dt+t)+k}, v{8+k}')
        for r in range(128): a(f'v_accvgpr_write_b32 a{r}, 0')
        a(f'v_mov_b32 v{LR[0]}, 0'); a(f'v_mov_b32 v{LR[1]}, 0')
        a.wait_vm(('V', 1)); a('s_barrier')
        for s in range(8): a(k_read(s, 0))
        a('s_waitcnt lgkmcnt(0)')
        for s in range(8):
            for q in range(2):
                d = vr(S[0]+q*16, 16); a(mfma(d, ar(KF(s),4), ar(QF(q,s),4), '0' if s == 0 else d))
        for s in range(8): a(k_read(s, 1))
        a.nop(16)
        m = TMP+1; t2 = TMP+2
        for q in range(2):
            sc = S[0]+q*16
            a(f'v_max3_f32 v{m}, v{sc}, v{sc+1}, v{sc+2}')
            for r in range(3, 15, 2): a(f'v_max3_f32 v{m}, v{m}, v{sc+r}, v{sc+r+1}')
            a(f'v_max_f32 v{m}, v{m}, v{sc+15}')
            a(f'v_mov_b32 v{t2}, v{m}'); a('s_nop 1'); a(f'v_permlane32_swap_b32 v{t2}, v{m}'); a('s_nop 1'); a(f'v_max_f32 v{m}, v{m}, v{t2}')
            a(f'v_add_f32 v{m}, {f2u(OFFSET)}, v{m}')
            for r in range(16):
                a(f'v_sub_f32 v{NEGM+q*16+r}, 0, v{m}'); a(f'v_sub_f32 v{sc+r}, v{sc+r}, v{m}')
        self.stubs = stubs = []
        self.stamp()
        gen_iter(a, 0, do_pv=False, do_vread=False, barrier=63, dmaK=4, lsum_prev=False, stubs=stubs)
        a(f's_mov_b32 s{S_CNT}, 7')
        a.raw('.p2align 6')
        a.label('KB_LOOP0')
        for j in range(1, 9):
            T_ = j//2
            if j % 2 == 0: gen_iter(a, j, barrier=18, dmaK=T_+4, stubs=stubs)
            else: gen_iter(a, j, dmaV=T_+3, stubs=stubs, pf=True)
        a(f's_sub_u32 s{S_PF}, s{S_PF}, 0x400000')
        a('s_mov_b32 s56, s90'); a('s_mov_b32 s57, s91'); a('s_mov_b32 s90, s92'); a('s_mov_b32 s91, s93'); a('s_mov_b32 s92, s94'); a('s_mov_b32 s93, s95')
        a('s_mov_b32 s58, s96'); a('s_mov_b32 s96, s97'); a('s_mov_b32 s97, s98'); a('s_mov_b32 s98, 0')
        a(f's_sub_u32 s{S_CNT}, s{S_CNT}, 1'); a(f's_cmp_lg_u32 s{S_CNT}, 0'); a('s_cbranch_scc1 KB_LOOP0')
        gen_iter(a, 57, dmaV=31, stubs=stubs); gen_iter(a, 58, barrier=8, stubs=stubs); gen_iter(a, 59, stubs=stubs)
        gen_iter(a, 60, barrier=0, stubs=stubs); gen_iter(a, 61, stubs=stubs); gen_iter(a, 62, do_kread=False, stubs=stubs)
        gen_iter(a, 63, do_qk=False, do_kread=False, stubs=stubs)
        a(f'v_add_f32 v{LR[0]}, v{LR[0]}, v{LT[0]}'); a(f'v_add_f32 v{LR[1]}, v{LR[1]}, v{LT[1]}')
        for t in range(2):
            for dt in range(4):
                for u in range(2): a(v_read(t, dt, u, 63))
        a('s_waitcnt lgkmcnt(0)')
        for t in range(2):
            for dt in range(4):
                for q in range(2):
                    d = ar(OA(q,dt),16); a(mfma(d, ar(VF(t,dt),4), vr(P[1]+q*8+t*4,4), d))
        a('s_barrier')
        a.vm = []; a.lg = []
        self.stamp()
        for q in range(2):
            xhalf_sum(a, LR[q], TMP); a(f'v_rcp_f32 v{LR[q]}, v{LR[q]}')
        a.nop(16)
        S_WS = 45
        a(f's_lshl_b32 s{S_T}, s{S_RT}, 18'); a(f's_lshl_b32 s{S_WS}, s{S_H}, 13'); a(f's_add_u32 s{S_XO}, s{S_T}, s{S_WS}'); a(f's_add_u32 s{S_XO+1}, s{S_XO}, {256*1024}')
        cnt = 0
        for q in range(2):
            for dt in range(4):
                for t in range(2):
                    b = 16*(cnt % 4); cnt += 1
                    for k in range(8): a(f'v_accvgpr_read_b32 v{b+k}, a{OA(q,dt)+8*t+k}')
                    for k in range(8): a(f'v_mul_f32 v{b+k}, v{b+k}, v{LR[q]}')
                    for k in range(4): a(f'v_cvt_pk_bf16_f32 v{b+8+k}, v{b+2*k}, v{b+2*k+1}')
                    ks = 2*dt+t
                    a(f's_add_u32 s{S_T}, s{S_XO+q}, {(ks//4)*4096}')
                    a.vmem(f'buffer_store_dwordx4 v[{b+8}:{b+11}], v{XOFF}, s[{SRD_O}:{SRD_O+3}], s{S_T} offen offset:{(ks%4)*1024} sc1', 'ost')

    def lane_consts_vstyle(self, WAD, WOFF, rowstride, tmp):
        a = self.a; L = LANE
        vg, vhf, vch, vrr, vc, vt, vu, vw = range(tmp, tmp+8)
        a(f'v_lshrrev_b32 v{vg}, 4, v{L}'); a(f'v_lshrrev_b32 v{vhf}, 5, v{L}'); a(f'v_and_b32 v{vch}, 1, v{vg}')
        a(f'v_bfe_u32 v{vrr}, v{L}, 2, 2'); a(f'v_and_b32 v{vc}, 3, v{L}')
        a(f'v_and_b32 v{vt}, 15, v{L}'); a(f'v_lshlrev_b32 v{vu}, 2, v{vg}'); a(f'v_xor_b32 v{vu}, v{vt}, v{vu}'); a(f'v_lshlrev_b32 v{vu}, 4, v{vu}')
        a(f'v_mul_u32_u24 v{WOFF}, {rowstride}, v{vg}'); a(f'v_add_u32 v{WOFF}, v{WOFF}, v{vu}')
        for dt in range(4):
            a(f'v_xor_b32 v{vt}, {dt}, v{vrr}'); a(f'v_lshlrev_b32 v{vt}, 2, v{vt}'); a(f'v_lshlrev_b32 v{vu}, 1, v{vch}'); a(f'v_add_u32 v{vt}, v{vt}, v{vu}')
            a(f'v_lshrrev_b32 v{vu}, 1, v{vc}'); a(f'v_add_u32 v{vu}, v{vt}, v{vu}'); a(f'v_lshlrev_b32 v{vu}, 4, v{vu}')
            a(f'v_and_b32 v{vw}, 1, v{vc}'); a(f'v_lshlrev_b32 v{vw}, 3, v{vw}'); a(f'v_add_u32 v{vu}, v{vu}, v{vw}')
            a(f'v_lshlrev_b32 v{vw}, 2, v{vhf}'); a(f'v_add_u32 v{vw}, v{vw}, v{vrr}'); a(f'v_lshlrev_b32 v{vw}, 8, v{vw}')
            a(f'v_add_u32 v{WAD[0]+dt}, v{vu}, v{vw}'); a(f'v_add_u32 v{WAD[1]+dt}, 65536, v{WAD[0]+dt}')

    def shared_gemm(self, NK, NM, nmat, CH, w_dma_ops, x_load_ops, XRING, XR, WF, WAD, ACC, pre_x, nv):
        a = self.a
        chunk_bytes = nmat*CH*4096; NSLOT = 131072 // chunk_bytes; NCH = NK // CH
        def emit(ops, tag):
            for x in ops[0]: a(x)
            a.vmem(ops[1], tag)
        for s in range(pre_x): emit(x_load_ops(s), ('X', s))
        Q = []
        for c in range(NSLOT, NCH):
            for o in w_dma_ops(c): Q.append((c*CH-1-CH, (c-NSLOT+1)*CH - 1, ('W', c), o))
        for s in range(pre_x, NK): Q.append((s-0.5-4, s-XRING+1, ('X', s), x_load_ops(s)))
        Q.sort(key=lambda x: x[0])
        def pop_q(s):
            for i, it in enumerate(Q):
                if it[1] <= s: return Q.pop(i)
            return None
        def w_read_ops(s):
            ops = []; c = s//CH; slot = c % NSLOT
            for gu in range(nmat):
                for dt in range(4):
                    for u in range(2):
                        off = slot*chunk_bytes + gu*CH*4096 + (s % CH)*4096 + u*2048
                        ops.append(f'ds_read_b64_tr_b16 {ar(WF[s&1] + (gu*4+dt)*4 + 2*u,2)}, v{WAD[off>>16]+dt} offset:{off & 65535}')
            return ops
        half = NM
        for i, op in enumerate(w_read_ops(0)): a.lds(op, ('Wf', 0, i//half))
        for s in range(NK):
            bar = (s % CH == CH-1 and s < NK-1)
            assert not any(it[2] == ('X', s) for it in Q), s
            if bar:
                c = (s+1)//CH
                assert not any(it[2] == ('W', c) for it in Q), (s, c)
                a.wait_vm([('W', c), ('X', s)]); a.wait_lg0(); a('s_barrier')
            else:
                a.wait_vm(('X', s)); a.wait_lg(('Wf', s, 0))
            wr = w_read_ops(s+1) if s+1 < NK else []
            x = XR + 4*(s % XRING)
            items = []
            for _ in range(nv):
                it = pop_q(s)
                if it: items.append(it)
            vg = list(range(0, NM, max(1, NM//max(1, nv))))[:len(items)] if items else []
            vg = [NM-1-g for g in vg]
            free = [g for g in range(NM) if g not in vg]
            nper = {g: 0 for g in range(NM)}
            rem = len(wr)
            order = free + sorted(vg)
            for g in free:
                k = min(4, rem); nper[g] = k; rem -= k
            for g in sorted(vg):
                k = min(4, rem); nper[g] += k; rem -= k
            assert rem == 0
            ri = 0; vi = 0
            for g in range(NM):
                d = ACC(g)
                if g == NM//2 and not bar: a.wait_lg(('Wf', s, 1))
                it = None
                if g in vg:
                    it = items[vi]; vi += 1
                    for t in it[3][0]: a(t)
                a(mfma(d, ar(WF[s&1]+g*4,4), vr(x,4), '0' if s == 0 else d))
                if it: a.vmem(it[3][1], it[2])
                for _ in range(nper[g]):
                    a.lds(wr[ri], ('Wf', s+1, ri//half)); ri += 1
        assert not Q, Q

    def phase_c(self):
        a = self.a
        S_RB=36; S_CB=37; S_KQ=33; S_TT=38; S_RTc=39; S_WO=41; S_M0c=42; S_XO=45
        SRD_W=12; SRD_X=16; SRD_Oc=20
        WAD=[200, 204]; WOFF=208; LOFF=209
        a(f's_load_dwordx2 s[6:7], s[0:1], {KA_WO}')
        a('s_and_b32 s34, s2, 7'); a('s_lshr_b32 s35, s2, 3')
        a(f's_and_b32 s{S_KQ}, s34, 3'); a('s_lshr_b32 s34, s34, 2'); a('s_lshl_b32 s34, s34, 3'); a(f's_and_b32 s{S_RB}, s35, 7'); a(f's_add_u32 s{S_RB}, s{S_RB}, s34')
        a(f's_lshr_b32 s{S_CB}, s35, 3')
        a(f's_lshl_b32 s70, s{S_QB if False else 37}, 0') if False else None
        a(f'v_lshlrev_b32 v{LOFF}, 4, v{LANE}')
        self.lane_consts_vstyle(WAD, WOFF, 1024, 128)
        a(f's_lshl_b32 s{S_RTc}, s{S_RB}, 2'); a(f's_add_u32 s{S_RTc}, s{S_RTc}, s{S_W}')
        a(f's_lshl_b32 s{S_WO}, s{S_KQ}, 20'); a(f's_lshl_b32 s{S_TT}, s{S_W}, 12'); a(f's_add_u32 s{S_WO}, s{S_WO}, s{S_TT}')
        a(f's_lshl_b32 s{S_TT}, s{S_CB}, 8'); a(f's_add_u32 s{S_WO}, s{S_WO}, s{S_TT}')
        a(f's_lshl_b32 s{S_M0c}, s{S_W}, 10')
        a(f's_lshl_b32 s{S_XO}, s{S_RTc}, 18'); a(f's_lshl_b32 s{S_TT}, s{S_KQ}, 16'); a(f's_add_u32 s{S_XO}, s{S_XO}, s{S_TT}')
        a('s_waitcnt lgkmcnt(0)')
        a.srd(SRD_W, 6, 0, 4194304); a.srd(SRD_X, 4, WS_O, 16777216); a.srd(SRD_Oc, 4, WS_P, 16777216)
        def w_dma_ops(c):
            slot = c % 8
            return [([f's_add_u32 m0, s{S_M0c}, {slot*16384 + m*4096}', f's_add_u32 s{S_TT}, s{S_WO}, {(c*64 + m*16)*1024}'],
                     f'buffer_load_dwordx4 v{WOFF}, s[{SRD_W}:{SRD_W+3}], s{S_TT} offen lds') for m in range(4)]
        XRING = 16
        def x_load_ops(s):
            r = 4*(s % XRING)
            return ([f's_add_u32 s{S_TT}, s{S_XO}, {(s//4)*4096}'],
                    f'buffer_load_dwordx4 v[{r}:{r+3}], v{LOFF}, s[{SRD_X}:{SRD_X+3}], s{S_TT} offen offset:{(s%4)*1024} sc1')
        for c in range(8):
            for o in w_dma_ops(c):
                for x in o[0]: a(x)
                a.vmem(o[1], ('W', c))
        a('s_lshr_b32 s70, s2, 5'); a('s_lshl_b32 s70, s70, 2'); a('s_bfe_u32 s71, s2, 0x20003'); a('s_add_u32 s70, s70, s71'); a(f's_add_u32 s70, s70, {C_CO}'); a('s_lshl_b32 s70, s70, 8')
        self.signal([70], vm_allow=32)
        self.stamp()
        a(f's_lshr_b32 s70, s{S_RB}, 1'); a('s_lshl_b32 s70, s70, 2'); a(f's_add_u32 s70, s70, s{S_KQ}'); a(f's_add_u32 s70, s70, {C_CO}'); a('s_lshl_b32 s70, s70, 8')
        a('s_waitcnt vmcnt(0)'); a.vm = []
        self.wait([(70, 1, 8)])
        self.stamp()
        ACCB = 64
        self.shared_gemm(64, 4, 1, 4, w_dma_ops, x_load_ops, XRING, 0, [0, 16], WAD, lambda g: vr(ACCB+16*g, 16), pre_x=M['c_prex'], nv=2 if not M.get('c_nv') else M['c_nv'])
        a('s_barrier')
        self.stamp()
        a.nop(12)
        a(f's_lshl_b32 s{S_XO}, s{S_KQ}, 22'); a(f's_lshl_b32 s{S_TT}, s{S_RTc}, 16'); a(f's_add_u32 s{S_XO}, s{S_XO}, s{S_TT}')
        a(f's_lshl_b32 s{S_TT}, s{S_CB}, 14'); a(f's_add_u32 s{S_XO}, s{S_XO}, s{S_TT}')
        for mt in range(4):
            a(f's_add_u32 s{S_TT}, s{S_XO}, {mt*4096}')
            for i in range(4):
                r = ACCB + 16*mt + 4*i
                a.vmem(f'buffer_store_dwordx4 v[{r}:{r+3}], v{LOFF}, s[{SRD_Oc}:{SRD_Oc+3}], s{S_TT} offen offset:{1024*i} sc1', 'pst')
        a(f's_add_u32 s74, s{S_RB}, {C_CP}'); a('s_lshl_b32 s74, s74, 8')

    def d_setup(self):
        a = self.a
        d = self.d = dict(S_RB=36, S_FG=37, S_TT=38, S_RT=39, S_GO=41, S_M0=42, S_XO=45, SRD_G=12, SRD_U=16, SRD_X=20, SRD_O=28, WAD=[200, 204], WOFF=208, LOFF=209)
        a(f's_load_dwordx2 s[6:7], s[0:1], {KA_WG}'); a(f's_load_dwordx2 s[8:9], s[0:1], {KA_WU}')
        a('s_and_b32 s33, s2, 7'); a('s_lshr_b32 s34, s2, 3')
        a(f's_and_b32 s36, s34, 3'); a('s_lshr_b32 s35, s33, 1'); a('s_lshl_b32 s35, s35, 2'); a('s_add_u32 s36, s36, s35')
        a(f's_lshr_b32 s37, s34, 2'); a('s_and_b32 s35, s33, 1'); a('s_mul_i32 s35, s35, 7'); a('s_add_u32 s37, s37, s35')
        self.lane_consts_vstyle(d['WAD'], d['WOFF'], 3584, 128)
        a(f's_lshl_b32 s39, s36, 2'); a(f's_add_u32 s39, s39, s{S_W}')
        a(f's_lshl_b32 s41, s37, 8'); a(f's_mul_i32 s38, s{S_W}, {4*3584}'); a('s_add_u32 s41, s41, s38')
        a(f's_lshl_b32 s42, s{S_W}, 10'); a('s_lshl_b32 s45, s39, 15')
        a('s_waitcnt lgkmcnt(0)')
        a.srd(12, 6, 0, 512*3584); a.srd(16, 8, 0, 512*3584)
    def d_w_dma_ops(self, c):
        slot = c % 4; ops = []
        for m in range(4):
            for gu in range(2):
                srd = 12 if gu == 0 else 16
                ops.append(([f's_add_u32 m0, s42, {slot*32768 + gu*16384 + m*4096}', f's_add_u32 s38, s41, {(c*64 + m*16)*3584}'],
                            f'buffer_load_dwordx4 v208, s[{srd}:{srd+3}], s38 offen lds'))
        return ops

    def phase_r(self):
        a = self.a
        S_TT = 38
        SRD_P=44; SRD_X=48; SRD_MPr=52; SRD_X1=64; SRD_H=76
        TB0 = SCR
        a(f's_load_dwordx2 s[6:7], s[0:1], {KA_X}')
        a(f'v_and_b32 v2, 7, v{TID}'); a(f'v_bfe_u32 v3, v{TID}, 3, 1'); a(f'v_lshrrev_b32 v4, 4, v{TID}')
        a('s_lshr_b32 s80, s2, 2'); a('s_and_b32 s81, s2, 3'); a('s_lshl_b32 s81, s81, 3')
        a('v_lshlrev_b32 v5, 5, v3'); a('v_add_u32 v5, v5, v2'); a('v_add_u32 v5, s81, v5'); a('v_lshlrev_b32 v5, 4, v5')
        a('v_lshlrev_b32 v6, 10, v4'); a('v_add_u32 v6, v6, v5'); a('v_lshlrev_b32 v7, 11, v4'); a('v_add_u32 v7, v7, v5')
        a('v_add_u32 v8, s81, v2'); a('v_lshlrev_b32 v8, 10, v8'); a('v_lshlrev_b32 v9, 5, v4'); a('v_add_u32 v8, v8, v9'); a('v_lshlrev_b32 v9, 3, v3'); a('v_add_u32 v8, v8, v9')
        a(f'v_lshlrev_b32 v10, 3, v{TID}')
        a('s_waitcnt lgkmcnt(0)')
        a.srd(20, 4, WS_P, 16777216); a.srd(24, 6, 0, 2097152); a.srd(28, 4, WS_M2, 65536); a.srd(64, 4, WS_X1, 2097152); a.srd(76, 4, WS_H2, 2097152)
        a('s_lshl_b32 s82, s80, 15')
        for i in range(2):
            a(f's_add_u32 s83, s82, {i*512}')
            a.vmem(f'buffer_load_dwordx2 v[{112+4*i}:{113+4*i}], v8, s[24:27], s83 offen', 'x')
            a.vmem(f'buffer_load_dwordx2 v[{114+4*i}:{115+4*i}], v8, s[24:27], s83 offen offset:16', 'x')
        a('s_lshr_b32 s70, s2, 4'); a(f's_add_u32 s70, s70, {C_CP}'); a('s_lshl_b32 s70, s70, 8'); a(f's_mov_b32 s71, {C_M2*256}')
        self.wait([(71, 8, 32), (70, 1, 16)])
        self.stamp()
        a('s_lshl_b32 s84, s80, 16')
        for i in range(2):
            for kq in range(4):
                a(f's_add_u32 s83, s84, {kq*4194304 + i*16*2048}')
                for h in range(2):
                    r = 48 + ((i*4+kq)*2+h)*4
                    a.vmem(f'buffer_load_dwordx4 v[{r}:{r+3}], v7, s[20:23], s83 offen offset:{1024*h} sc1', 'P')
        a('v_add_u32 v11, 4096, v10')
        for e in range(8):
            a(f's_mov_b32 s83, {e*8192}')
            a.vmem(f'buffer_load_dwordx2 v[{128+2*e}:{129+2*e}], v10, s[28:31], s83 offen sc1', 'mod')
            a.vmem(f'buffer_load_dwordx2 v[{144+2*e}:{145+2*e}], v10, s[28:31], s83 offen offset:2048 sc1', 'mod')
            a.vmem(f'buffer_load_dwordx2 v[{160+2*e}:{161+2*e}], v11, s[28:31], s83 offen sc1', 'mod')
        a.wait_vm('mod')
        for j in range(3):
            for c_ in range(2):
                b = 128+16*j+c_
                for st_ in (2, 4, 8):
                    for e in range(0, 16, 2*st_): a(f'v_add_f32 v{b+e}, v{b+e}, v{b+e+st_}')
                round_bf16(a, b, 40)
        for c_ in range(2):
            a(f'v_add_f32 v{160+c_}, 1.0, v{160+c_}'); round_bf16(a, 160+c_, 40)
        a(f'v_add_u32 v10, {TB0}, v10')
        a('ds_write_b64 v10, v[128:129]'); a('ds_write_b64 v10, v[160:161] offset:2048'); a('ds_write_b64 v10, v[144:145] offset:4096')
        a('s_waitcnt lgkmcnt(0)'); a('s_barrier')
        a('v_lshlrev_b32 v12, 6, v4'); a('v_lshlrev_b32 v13, 4, v3'); a('v_add_u32 v12, v12, v13'); a(f'v_add_u32 v12, {TB0}, v12')
        TB = 120
        for j in range(3):
            for i in range(2):
                for h in range(2):
                    r = TB + 16*j + 8*i + 4*h
                    a(f'ds_read_b128 v[{r}:{r+3}], v12 offset:{2048*j + 1024*i + 32*h}')
        for i in range(2):
            for r in range(8):
                b = 48 + i*32
                a(f'v_add_f32 v{b+r}, v{b+r}, v{b+8+r}'); a(f'v_add_f32 v{b+16+r}, v{b+16+r}, v{b+24+r}'); a(f'v_add_f32 v{b+r}, v{b+r}, v{b+16+r}')
        a('s_waitcnt lgkmcnt(0)')
        for i in range(2):
            b = 48 + i*32
            for k in range(4):
                A0, A1 = b+2*k, b+2*k+1
                a(f'v_cvt_pk_bf16_f32 v40, v{A0}, v{A1}'); a(f'v_lshlrev_b32 v{A0}, 16, v40'); a(f'v_and_b32 v{A1}, 0xffff0000, v40')
                a(f'v_mul_f32 v{A0}, v{A0}, v{TB+8*i+2*k}'); a(f'v_mul_f32 v{A1}, v{A1}, v{TB+8*i+2*k+1}')
                a(f'v_cvt_pk_bf16_f32 v40, v{A0}, v{A1}'); a(f'v_lshlrev_b32 v{A0}, 16, v40'); a(f'v_and_b32 v{A1}, 0xffff0000, v40')
                xr = 112+4*i+k
                a(f'v_lshlrev_b32 v41, 16, v{xr}'); a(f'v_and_b32 v42, 0xffff0000, v{xr}')
                a(f'v_add_f32 v{A0}, v{A0}, v41'); a(f'v_add_f32 v{A1}, v{A1}, v42')
                a(f'v_cvt_pk_bf16_f32 v{32+4*i+k}, v{A0}, v{A1}')
                a(f'v_lshlrev_b32 v{16+8*i+2*k}, 16, v{32+4*i+k}'); a(f'v_and_b32 v{17+8*i+2*k}, 0xffff0000, v{32+4*i+k}')
        a('s_lshl_b32 s82, s80, 15'); a('s_add_u32 s83, s82, 16384')
        a.vmem('buffer_store_dwordx4 v[32:35], v6, s[64:67], s82 offen sc1', 'st'); a.vmem('buffer_store_dwordx4 v[36:39], v6, s[64:67], s83 offen sc1', 'st')
        def rowreduce(x, t, ldsoff):
            a('s_nop 1'); a(f'v_add_f32_dpp v{x}, v{x}, v{x} row_ror:8 row_mask:0xf bank_mask:0xf')
            a(f'v_mov_b32 v{t}, v{x}'); a('s_nop 1'); a(f'v_permlane16_swap_b32 v{t}, v{x}'); a('s_nop 1'); a(f'v_add_f32 v{x}, v{x}, v{t}')
            a(f'v_mov_b32 v{t}, v{x}'); a('s_nop 1'); a(f'v_permlane32_swap_b32 v{t}, v{x}'); a('s_nop 1'); a(f'v_add_f32 v{x}, v{x}, v{t}')
            a(f'ds_write_b32 v44, v{x} offset:{ldsoff}'); a('s_waitcnt lgkmcnt(0)'); a('s_barrier')
            for w in range(4): a(f'ds_read_b32 v{168+w}, v45 offset:{ldsoff+32*w}')
            a('s_waitcnt lgkmcnt(0)')
            a('v_add_f32 v168, v168, v169'); a('v_add_f32 v170, v170, v171'); a(f'v_add_f32 v{x}, v168, v170')
        a('v_lshlrev_b32 v45, 2, v2'); a(f'v_add_u32 v45, {TB0+8192}, v45'); a(f's_lshl_b32 s85, s{S_W}, 5'); a('v_add_u32 v44, s85, v45')
        a('v_add_f32 v46, v16, v17')
        for k in range(2, 16): a(f'v_add_f32 v46, v46, v{16+k}')
        rowreduce(46, 47, 0)
        a(f'v_mul_f32 v46, {f2u(1/512)}, v46')
        a('v_sub_f32 v41, v16, v46'); a('v_mul_f32 v43, v41, v41')
        for k in range(1, 16):
            a(f'v_sub_f32 v41, v{16+k}, v46'); a('v_fmac_f32 v43, v41, v41')
        rowreduce(43, 47, 256)
        a(f'v_mul_f32 v43, {f2u(1/512)}, v43')
        round_bf16(a, 43, 47); a(f'v_add_f32 v43, {f2u(1e-5)}, v43'); round_bf16(a, 43, 47)
        a('v_sqrt_f32 v43, v43'); a('s_nop 0'); round_bf16(a, 43, 47); a('v_rcp_f32 v43, v43'); round_bf16(a, 46, 47)
        for i in range(2):
            for k in range(4):
                e0, e1 = 16+8*i+2*k, 17+8*i+2*k
                a(f'v_sub_f32 v41, v{e0}, v46'); a(f'v_sub_f32 v42, v{e1}, v46')
                a('v_cvt_pk_bf16_f32 v40, v41, v42'); a('v_lshlrev_b32 v41, 16, v40'); a('v_and_b32 v42, 0xffff0000, v40')
                a('v_mul_f32 v41, v41, v43'); a('v_mul_f32 v42, v42, v43')
                a('v_cvt_pk_bf16_f32 v40, v41, v42'); a('v_lshlrev_b32 v41, 16, v40'); a('v_and_b32 v42, 0xffff0000, v40')
                a(f'v_mul_f32 v41, v41, v{TB+16+8*i+2*k}'); a(f'v_mul_f32 v42, v42, v{TB+16+8*i+2*k+1}')
                a('v_cvt_pk_bf16_f32 v40, v41, v42'); a('v_lshlrev_b32 v41, 16, v40'); a('v_and_b32 v42, 0xffff0000, v40')
                a(f'v_add_f32 v41, v41, v{TB+32+8*i+2*k}'); a(f'v_add_f32 v42, v42, v{TB+32+8*i+2*k+1}')
                a(f'v_cvt_pk_bf16_f32 v{48+4*i+k}, v41, v42')
        a.vmem('buffer_store_dwordx4 v[48:51], v6, s[76:79], s82 offen sc1', 'st'); a.vmem('buffer_store_dwordx4 v[52:55], v6, s[76:79], s83 offen sc1', 'st')
        a('s_lshr_b32 s70, s2, 4'); a(f's_add_u32 s70, s70, {C_CH}'); a('s_lshl_b32 s70, s70, 8')
        self.signal([70], vm_allow=0); a.vm = []
        self.stamp()

    def phase_d(self):
        a = self.a
        LOFF = 209
        a.srd(20, 4, WS_H2, 2097152); a.srd(28, 4, WS_ACT, 64*112*1024)
        a(f's_add_u32 s70, s36, {C_CH}'); a('s_lshl_b32 s70, s70, 8')
        self.wait([(70, 1, 16)])
        self.stamp()
        def x_load_ops(s):
            return ([f's_add_u32 s38, s45, {(s//4)*4096}'],
                    f'buffer_load_dwordx4 v[{4*s}:{4*s+3}], v{LOFF}, s[20:23], s38 offen offset:{(s%4)*1024} sc1')
        self.shared_gemm(32, 8, 2, 4, self.d_w_dma_ops, x_load_ops, 32, 0, [128, 160], [200, 204], lambda g: ar(16*g, 16), pre_x=M['d_prex'], nv=3)
        self.stamp()
        a.nop(16)
        a(f's_mul_i32 s45, s39, {112*1024}'); a('s_lshl_b32 s38, s37, 13'); a('s_add_u32 s45, s45, s38')
        a(f's_mov_b32 s40, {f2u(-LOG2E)}')
        cnt = 0
        for mt in range(4):
            for t in range(2):
                b = 32*(cnt % 2); cnt += 1
                G = b; U = b+8; E = b+16; O_ = b+24
                for k in range(8): a(f'v_accvgpr_read_b32 v{G+k}, a{16*mt+8*t+k}')
                for k in range(8): a(f'v_accvgpr_read_b32 v{U+k}, a{16*(4+mt)+8*t+k}')
                for k in range(8): a(f'v_mul_f32 v{E+k}, s40, v{G+k}')
                for k in range(8): a(f'v_exp_f32 v{E+k}, v{E+k}')
                for k in range(8): a(f'v_mul_f32 v{U+k}, v{G+k}, v{U+k}')
                for k in range(8): a(f'v_add_f32 v{E+k}, 1.0, v{E+k}')
                for k in range(8): a(f'v_rcp_f32 v{E+k}, v{E+k}')
                a('s_nop 0')
                for k in range(8): a(f'v_mul_f32 v{U+k}, v{U+k}, v{E+k}')
                for k in range(4): a(f'v_cvt_pk_bf16_f32 v{O_+k}, v{U+2*k}, v{U+2*k+1}')
                ks = 2*mt+t
                a(f's_add_u32 s38, s45, {(ks//4)*4096}')
                a.vmem(f'buffer_store_dwordx4 v[{O_}:{O_+3}], v{LOFF}, s[28:31], s38 offen offset:{(ks%4)*1024} sc1', 'ast')
        a(f's_add_u32 s74, s36, {C_CA}'); a('s_lshl_b32 s74, s74, 8')

    def e_setup(self):
        a = self.a; L = LANE
        NKT = 112; NK = 28
        e = self.e = dict(S_RB=36, S_CB=37, S_T=38, S_AO=39, S_B0=40, S_B1=41, S_M0=42, SRD_W=12, SRD_B=16, SRD_MP=20, SRD_X=24, SRD_O=28,
                          AF=[192, 200], AAD=208, VOA=210, VOB=211, LOFF=212, NK=NK, NKT=NKT)
        a(f's_load_dwordx2 s[6:7], s[0:1], {KA_WD}'); a(f's_load_dwordx2 s[8:9], s[0:1], {KA_OUT}')
        a('s_and_b32 s33, s2, 7'); a('s_lshr_b32 s34, s2, 3'); a('s_and_b32 s36, s34, 3'); a('s_lshl_b32 s33, s33, 2'); a('s_add_u32 s36, s36, s33'); a('s_lshr_b32 s37, s34, 2')
        a(f'v_lshrrev_b32 v2, 3, v{L}'); a('v_lshlrev_b32 v2, 10, v2'); a(f'v_bfe_u32 v3, v{L}, 4, 1'); a('v_lshlrev_b32 v3, 2, v3')
        a(f'v_and_b32 v4, 7, v{L}'); a('v_xor_b32 v3, v3, v4'); a('v_lshlrev_b32 v3, 4, v3')
        a('v_add_u32 v210, v2, v3'); a('v_add_u32 v211, 7168, v210'); a(f'v_lshlrev_b32 v212, 4, v{L}')
        a(f'v_lshrrev_b32 v2, 5, v{L}'); a(f'v_bfe_u32 v3, v{L}, 4, 1'); a(f'v_bfe_u32 v4, v{L}, 2, 2'); a(f'v_and_b32 v5, 3, v{L}')
        a('v_lshlrev_b32 v6, 2, v2'); a('v_add_u32 v6, v6, v4'); a('v_lshlrev_b32 v6, 7, v6'); a('v_and_b32 v7, 1, v5'); a('v_lshlrev_b32 v7, 3, v7'); a('v_add_u32 v6, v6, v7')
        a('v_lshrrev_b32 v7, 1, v5'); a('v_lshlrev_b32 v8, 1, v3'); a('v_add_u32 v7, v7, v8'); a('v_lshrrev_b32 v8, 1, v4')
        a(f's_lshl_b32 s42, s{S_W}, 15')
        for mt in range(2):
            a(f'v_xor_b32 v9, {mt}, v8'); a('v_lshlrev_b32 v9, 2, v9'); a('v_add_u32 v9, v9, v7'); a('v_lshlrev_b32 v9, 4, v9')
            a(f'v_add_u32 v{208+mt}, v6, v9'); a(f'v_add_u32 v{208+mt}, s42, v{208+mt}')
        a(f's_mul_i32 s39, s{S_W}, {NK*16384}'); a('s_lshl_b32 s38, s37, 7'); a('s_add_u32 s39, s39, s38')
        a(f's_mul_i32 s40, s36, {2*NKT*1024}'); a(f's_mul_i32 s38, s{S_W}, {NK*1024}'); a('s_add_u32 s40, s40, s38'); a(f's_add_u32 s41, s40, {NKT*1024}')
        a('s_waitcnt lgkmcnt(0)')
        a.srd(12, 6, 0, NKT*16*1024); a.srd(16, 4, WS_ACT, 64*NKT*1024); a.srd(20, 4, WS_M2, 65536); a.srd(24, 4, WS_X1, 2097152); a.srd(28, 8, 0, 2097152)
    def e_a_ops(self, k):
        slot = k % 16
        return [([f's_add_u32 m0, s42, {slot*2048}', f's_add_u32 s38, s39, {k*16384}'], f'buffer_load_dwordx4 v210, s[12:15], s38 offen lds'),
                ([], f'buffer_load_dwordx4 v211, s[12:15], s38 offen offset:1024 lds')]
    def phase_e(self):
        a = self.a; L = LANE
        NK = 28; DEPTH = M['e_depth']; AF = [192, 200]; ACC = 128; LOFF = 212; GT = SCR
        def b_ops(k):
            r = 8*(k % 16)
            return [([f's_add_u32 s43, s40, {(k//4)*4096}'], f'buffer_load_dwordx4 v[{r}:{r+3}], v{LOFF}, s[16:19], s43 offen offset:{(k%4)*1024} sc1'),
                    ([f's_add_u32 s43, s41, {(k//4)*4096}'], f'buffer_load_dwordx4 v[{r+4}:{r+7}], v{LOFF}, s[16:19], s43 offen offset:{(k%4)*1024} sc1')]
        def emit(o, tag):
            for x in o[0]: a(x)
            a.vmem(o[1], tag)
        lb = a.newlabel('E_NOGT')
        a(f's_cmp_lg_u32 s{S_W}, 0'); a(f's_cbranch_scc1 {lb}')
        a(f'v_lshlrev_b32 v2, 2, v{L}'); a('s_lshl_b32 s43, s37, 8'); a(f's_add_u32 s43, s43, {1536*4}')
        for e in range(8):
            a(f's_add_u32 s44, s43, {e*8192}'); a(f'buffer_load_dword v{4+e}, v2, s[20:23], s44 offen sc1')
        a('s_waitcnt vmcnt(0)')
        for st_ in (1, 2, 4):
            for e in range(0, 8, 2*st_): a(f'v_add_f32 v{4+e}, v{4+e}, v{4+e+st_}')
        round_bf16(a, 4, 5)
        a(f'v_add_u32 v2, {GT}, v2'); a('ds_write_b32 v2, v4')
        a.label(lb)
        a('s_lshr_b32 s70, s36, 1'); a(f's_add_u32 s70, s70, {C_CA}'); a('s_lshl_b32 s70, s70, 8')
        self.wait([(70, 1, 14)])
        self.stamp()
        for k in range(DEPTH):
            for o in b_ops(k): emit(o, ('B', k))
        def aread_ops(k):
            slot = k % 16
            return [f'ds_read_b64_tr_b16 {vr(AF[k&1] + mt*4 + 2*u,2)}, v{208+mt} offset:{slot*2048 + u*1024}' for mt in range(2) for u in range(2)]
        a.wait_vm(('A', 0))
        for op in aread_ops(0): a.lds(op, ('Af', 0))
        NPRE = 16
        for k in range(NK):
            a.wait_vm(('B', k)) if k == 0 else None
            if k+1 < NK: a.wait_vm([('B', k+1), ('A', k+1)])
            a.wait_lg(('Af', k))
            r = 8*(k % 16)
            ar_ = aread_ops(k+1) if k+1 < NK else []
            gs = []
            if k >= 2 and k+NPRE-2 < NK: gs += [(o, ('A', k+NPRE-2)) for o in self.e_a_ops(k+NPRE-2)]
            if k+DEPTH < NK: gs += [(o, ('B', k+DEPTH)) for o in b_ops(k+DEPTH)]
            i = 0
            for mt in range(2):
                for nt in range(2):
                    d = vr(ACC+(mt*2+nt)*16, 16)
                    it = gs[i] if i < len(gs) else None
                    if it:
                        for x in it[0][0]: a(x)
                    a(mfma(d, vr(AF[k&1]+mt*4,4), vr(r+4*nt,4), '0' if k == 0 else d))
                    if it: a.vmem(it[0][1], it[1])
                    if i < 2:
                        for op in ar_[2*i:2*i+2]: a.lds(op, ('Af', k+1))
                    i += 1
        self.stamp()
        a(f's_lshr_b32 s46, s{S_W}, 1'); a(f's_and_b32 s47, s{S_W}, 1')
        a('s_lshl_b32 s48, s36, 1'); a('s_add_u32 s48, s48, s47')
        a('s_lshl_b32 s49, s37, 2'); a('s_lshl_b32 s50, s46, 1'); a('s_add_u32 s49, s49, s50')
        a('s_lshl_b32 s50, s48, 5'); a('s_add_u32 s50, s50, s49'); a('s_lshl_b32 s50, s50, 10')
        a(f'v_and_b32 v2, 31, v{L}'); a('v_lshlrev_b32 v2, 10, v2'); a(f'v_lshrrev_b32 v3, 5, v{L}'); a('v_lshlrev_b32 v4, 4, v3'); a('v_add_u32 v2, v2, v4')
        a('s_lshl_b32 s51, s48, 15'); a('s_lshl_b32 s33, s49, 5'); a('s_add_u32 s51, s51, s33')
        for t in range(2):
            a(f'buffer_load_dwordx4 v[{8+4*t}:{11+4*t}], v{LOFF}, s[24:27], s50 offen offset:{1024*t} sc1')
        a.nop(12)
        a('s_waitcnt lgkmcnt(0)'); a('s_barrier')
        a(f's_lshl_b32 s33, s{S_W}, 14'); a(f'v_add_u32 v5, s33, v{LOFF}')
        for tile in range(4):
            for r4 in range(4):
                r = ACC + tile*16 + r4*4
                a(f'ds_write_b128 v5, v[{r}:{r+3}] offset:{(tile*4+r4)*1024}')
        a('s_waitcnt lgkmcnt(0)'); a('s_barrier')
        a(f's_lshl_b32 s33, s{S_W}, 12'); a(f'v_add_u32 v5, s33, v{LOFF}')
        for wv in range(4):
            for r4 in range(4):
                r = 32 + wv*16 + r4*4
                a(f'ds_read_b128 v[{r}:{r+3}], v5 offset:{wv*16384 + r4*1024}')
        a('v_lshlrev_b32 v6, 4, v3'); a('s_lshl_b32 s33, s46, 7'); a(f's_add_u32 s33, s33, {GT}'); a('v_add_u32 v6, s33, v6')
        for g in range(4): a(f'ds_read_b128 v[{16+4*g}:{19+4*g}], v6 offset:{32*g}')
        a('s_waitcnt lgkmcnt(0)')
        for r in range(16):
            a(f'v_add_f32 v{32+r}, v{32+r}, v{48+r}'); a(f'v_add_f32 v{64+r}, v{64+r}, v{80+r}')
        for r in range(16): a(f'v_add_f32 v{32+r}, v{32+r}, v{64+r}')
        for r in range(0, 16, 2):
            a(f'v_cvt_pk_bf16_f32 v100, v{32+r}, v{33+r}'); a(f'v_lshlrev_b32 v{32+r}, 16, v100'); a(f'v_and_b32 v{33+r}, 0xffff0000, v100')
            a(f'v_mul_f32 v{32+r}, v{32+r}, v{16+r}'); a(f'v_mul_f32 v{33+r}, v{33+r}, v{17+r}')
            a(f'v_cvt_pk_bf16_f32 v100, v{32+r}, v{33+r}'); a(f'v_lshlrev_b32 v{32+r}, 16, v100'); a(f'v_and_b32 v{33+r}, 0xffff0000, v100')
        a('s_waitcnt vmcnt(0)')
        for k in range(8):
            a(f'v_lshlrev_b32 v101, 16, v{8+k}'); a(f'v_and_b32 v102, 0xffff0000, v{8+k}')
            a(f'v_add_f32 v{32+2*k}, v{32+2*k}, v101'); a(f'v_add_f32 v{33+2*k}, v{33+2*k}, v102')
            a(f'v_cvt_pk_bf16_f32 v{104+k}, v{32+2*k}, v{33+2*k}')
        a('s_nop 1')
        for gp in range(2):
            b = 104+4*gp
            a(f'v_permlane32_swap_b32 v{b}, v{b+2}'); a(f'v_permlane32_swap_b32 v{b+1}, v{b+3}')
        a('s_nop 1')
        for gp in range(2):
            b = 104+4*gp
            a(f'buffer_store_dwordx4 v[{b}:{b+3}], v2, s[28:31], s51 offen offset:{32*gp}')

    def build(self):
        a = self.a
        a.raw(kernel_head(KN))
        a('s_cmp_ge_u32 s2, 256'); a('s_cbranch_scc1 K_END')
        self.front()
        self.attention()
        self.phase_c()
        a('s_cmp_ge_u32 s2, 224'); a('s_cbranch_scc1 NO_DPF')
        self.d_setup()
        for c in range(4):
            for o in self.d_w_dma_ops(c):
                for x in o[0]: a(x)
                a.vmem(o[1], ('W', c))
        a('s_waitcnt vmcnt(32)'); a('s_branch DPF_J')
        a.label('NO_DPF'); a('s_waitcnt vmcnt(0)')
        a.label('DPF_J')
        self.signal([74], vm_allow=63)
        self.stamp()
        a.vm = []
        self.phase_r()
        a('s_cmp_ge_u32 s2, 224'); a('s_cbranch_scc1 E_PRE')
        a(f'v_lshlrev_b32 v209, 4, v{LANE}')
        self.phase_d()
        a.label('E_PRE')
        a('s_waitcnt lgkmcnt(0)'); a('s_barrier')
        a.vm = []; a.lg = []
        self.e_setup()
        for k in range(16):
            for o in self.e_a_ops(k):
                for x in o[0]: a(x)
                a.vmem(o[1], ('A', k))
        l = a.newlabel('NOSIGA')
        a('s_cmp_ge_u32 s2, 224'); a(f's_cbranch_scc1 {l}')
        self.signal([74], vm_allow=32)
        a.label(l)
        self.stamp()
        self.phase_e()
        if M['stamp']:
            a('s_waitcnt vmcnt(0)'); self.stamp()
            a.srd(44, 4, WS_STAMP, 131072)
            a(f'v_lshlrev_b32 v0, 2, v{LANE}'); a('s_lshl_b32 s48, s2, 9'); a(f's_lshl_b32 s49, s{S_W}, 7'); a('s_add_u32 s48, s48, s49')
            a('s_mov_b64 exec, 0xffffffff')
            a(f'buffer_store_dword v{STV}, v0, s[44:47], s48 offen')
        a('s_waitcnt vmcnt(0)')
        a.label('K_END'); a('s_endpgm')
        for st, bk, p in self.stubs:
            a.label(st); a(f's_call_b64 s[{S_RET}:{S_RET+1}], RARE_{p}'); a(f's_branch {bk}')
        gen_rare(a, 0); gen_rare(a, 1)
        return a.text()

def make(path, **kw):
    M.update({k: v for k, v in kw.items() if k in M or k.startswith('c_')})
    B.CFG.update({k: v for k, v in kw.items() if k in B.CFG})
    m = Mega(); text = m.build()
    head = open('adaLN_cond__mha_block_cached__swiglu_ffn__prompt.s.ref').read().split('; Override launch')[0]
    s = head + '; @launch grid=(256,1,1) block=(256,1,1) lds=163840\n.amdgcn_target "amdgcn-amd-amdhsa--gfx950"\n' + text
    s += '.section .rodata,"a"\n' + kernel_desc(KN, 512, 102, 256)
    open(path, 'w').write(s)
    return m.nst
if __name__ == '__main__':
    import sys
    kw = {}
    for kv in sys.argv[2:]:
        k, v = kv.split('=', 1); kw[k] = eval(v)
    print('stamps', make(sys.argv[1], **kw))
```

```python
from asmlib import *
import gen
from gen import f2u, round_bf16, xhalf_sum, wave_allreduce_add, LOG2E, KA_X, KA_K, KA_V, KA_WQ, KA_WO, KA_WG, KA_WU, KA_WD, KA_C, KA_WMOD, KA_OUT, KA_DBG, KA_WS
import gen_b as B
from gen_b import mfma, S, NEGM, P, T, KAD, VAD, VOK, VOV, LT, LR, LANE, TMP, OA, QF, KF, VF, k_read, v_read, gen_iter, gen_rare
from gen_b import S_W, S_H, S_QB, S_RT, S_KOFF, S_VOFF, S_M0, S_CNT, S_T, S_THR, S_RET, S_PF, S_PFM, SRD_K, SRD_V, SRD_WQ, SRD_XN, SRD_O, SRD_MP, VBASE, OFFSET, THR
KN = 'adaLN_cond__mha_block_cached__swiglu_ffn__prompt_kernel'

WS_M1 = 0x0; WS_XN = 0x10000; WS_M2 = 0x220000; WS_SYNC = 0x300000
WS_O = 0x400000; WS_X1 = 0x1400000; WS_H2 = 0x1600000; WS_ACT = 0x1800000; WS_STAMP = 0x2000000; WS_P = 0x3000000
C_FG, C_M2, C_CO, C_CP, C_CH, C_CA, C_FG2 = 0, 8, 16, 48, 64, 80, 96
SCR = 131072
GSBASE = SCR + 24576
T2B = SCR + 8192
TID = 255; STV = 253
SRD_SY = 60
M = dict(stamp=False, lds=147456, e_prea=16, kvpf=True, kv_from=0, ldsc='sc1', w_early=16, la=2, tr_cap=3, c_prew=8, c_nv=2, c_prex=12, d_prex=12, e_depth=10, pre_x=10, qp_slots=(0, 2, 4, 6), spin=200000)

def allreduce_multi(a, xs, ts):
    pad = max(0, 2 - (len(xs)-1))
    for r in (8, 4, 2, 1):
        if pad: a(f's_nop {pad-1}')
        for x in xs: a(f'v_add_f32_dpp v{x}, v{x}, v{x} row_ror:{r} row_mask:0xf bank_mask:0xf')
    for op in ('v_permlane16_swap_b32', 'v_permlane32_swap_b32'):
        for x, t in zip(xs, ts): a(f'v_mov_b32 v{t}, v{x}')
        if pad: a(f's_nop {pad}')
        for x, t in zip(xs, ts): a(f'{op} v{t}, v{x}')
        a('s_nop 1')
        for x, t in zip(xs, ts): a(f'v_add_f32 v{x}, v{x}, v{t}')

class Mega:
    def __init__(self):
        self.a = Asm(); self.nst = 0
    def stamp(self):
        a = self.a
        if M['stamp']:
            a('s_memrealtime s[72:73]'); a('s_memtime s[100:101]'); a('s_waitcnt lgkmcnt(0)')
            a(f'v_writelane_b32 v{STV}, s72, {self.nst}'); a(f'v_writelane_b32 v254, s100, {self.nst}'); self.nst += 1
    def signal(self, idx_list, vm_allow=0):
        a = self.a
        a(f's_waitcnt vmcnt({vm_allow})'); a('s_barrier')
        l = a.newlabel('SIG')
        a(f's_cmp_lg_u32 s{S_W}, 0'); a(f's_cbranch_scc1 {l}')
        a('s_mov_b64 exec, 1')
        a('v_mov_b32 v251, 1')
        for s_ in idx_list:
            a(f'v_mov_b32 v252, s{s_}')
            a(f'buffer_atomic_add v251, v252, s[{SRD_SY}:{SRD_SY+3}], 0 offen sc1')
        a('s_mov_b64 exec, -1')
        a.label(l)
    def wait(self, specs):
        a = self.a
        l = a.newlabel('WDONE')
        a(f's_cmp_lg_u32 s{S_W}, 0'); a(f's_cbranch_scc1 {l}')
        for so, nl, target in specs:
            lp = a.newlabel('POLL'); ok = a.newlabel('POK')
            a(f's_mov_b64 exec, {(1 << nl)-1}')
            a(f'v_and_b32 v252, 63, v{TID}'); a('v_lshlrev_b32 v252, 8, v252'); a(f'v_add_u32 v252, s{so}, v252')
            a('s_mov_b32 s68, 0')
            a.label(lp)
            a(f'buffer_load_dword v251, v252, s[{SRD_SY}:{SRD_SY+3}], 0 offen sc1')
            a('s_waitcnt vmcnt(0)')
            a(f'v_cmp_le_u32 vcc, {target}, v251')
            a('s_add_u32 s68, s68, 1')
            a(f's_cmp_eq_u64 vcc, exec'); a(f's_cbranch_scc1 {ok}')
            a(f's_cmp_gt_u32 s68, {M["spin"]}'); a(f's_cbranch_scc1 {ok}')
            a('s_sleep 1'); a(f's_branch {lp}')
            a.label(ok)
        a('s_mov_b64 exec, -1')
        a.label(l)
        a('s_barrier')

    def wait_front(self, so):
        a = self.a
        l = a.newlabel('WDONE'); lp = a.newlabel('POLL'); ok = a.newlabel('POK')
        a(f's_cmp_lg_u32 s{S_W}, 0'); a(f's_cbranch_scc1 {l}')
        a('s_mov_b64 exec, 0x1ff')
        a(f'v_and_b32 v252, 63, v{TID}'); a(f'v_add_u32 v252, {C_M2-1}, v252'); a('v_lshlrev_b32 v252, 8, v252')
        a(f'v_mov_b32 v251, s{so}'); a(f'v_writelane_b32 v252, s{so}, 0')
        a('s_mov_b32 s68, 0')
        a.label(lp)
        a(f'buffer_load_dword v251, v252, s[{SRD_SY}:{SRD_SY+3}], 0 offen sc1')
        a('s_waitcnt vmcnt(0)')
        a('v_cmp_le_u32 vcc, 32, v251')
        a('s_add_u32 s68, s68, 1')
        a('s_cmp_eq_u64 vcc, exec'); a(f's_cbranch_scc1 {ok}')
        a(f's_cmp_gt_u32 s68, {M["spin"]}'); a(f's_cbranch_scc1 {ok}')
        a('s_sleep 1'); a(f's_branch {lp}')
        a.label(ok)
        a('s_mov_b64 exec, -1')
        a.label(l)
        a('s_barrier')

    def handoff(self, sig, specs, pre=None, npre=0, skip_cond=None, defer=False):
        a = self.a
        a('s_waitcnt vmcnt(0)'); a('s_barrier'); a.vm = []
        l = a.newlabel('HW'); lo = a.newlabel('HO')
        a(f's_cmp_lg_u32 s{S_W}, 0'); a(f's_cbranch_scc1 {lo}')
        if sig is not None:
            a('s_mov_b64 exec, 1'); a('v_mov_b32 v251, 1'); a(f'v_mov_b32 v252, s{sig}')
            a(f'buffer_atomic_add v251, v252, s[{SRD_SY}:{SRD_SY+3}], 0 offen sc1')
        self.stamp_w0()
        for sp in specs:
            lp = a.newlabel('POLL'); ok = a.newlabel('POK')
            if sp[0] == 'multi':
                a('s_mov_b64 exec, 0x1ff')
                a(f'v_and_b32 v252, 63, v{TID}'); a(f'v_add_u32 v252, {C_M2-1}, v252'); a('v_lshlrev_b32 v252, 8, v252'); a(f'v_writelane_b32 v252, s{sp[1]}, 0')
                a('v_mov_b32 v250, 32'); a(f's_mov_b32 s69, {sp[2]}'); a('s_nop 0'); a('v_writelane_b32 v250, s69, 0')
                tgt = 'v250'
            else:
                a('s_mov_b64 exec, 1'); a(f'v_mov_b32 v252, s{sp[0]}'); tgt = None
            a('s_mov_b32 s68, 0')
            a.label(lp)
            a(f'buffer_load_dword v251, v252, s[{SRD_SY}:{SRD_SY+3}], 0 offen sc1')
            a('s_waitcnt vmcnt(0)')
            a(f'v_cmp_le_u32 vcc, {tgt if tgt else sp[2]}, v251')
            a('s_add_u32 s68, s68, 1')
            a('s_cmp_eq_u64 vcc, exec'); a(f's_cbranch_scc1 {ok}')
            a(f's_cmp_gt_u32 s68, {M["spin"]}'); a(f's_cbranch_scc1 {ok}')
            a('s_sleep 1'); a(f's_branch {lp}')
            a.label(ok)
        a('s_mov_b64 exec, -1')
        a(f's_branch {l}')
        a.label(lo)
        if pre:
            if skip_cond: a(skip_cond); a(f's_cbranch_scc1 {l}')
            pre(True)
        a.label(l)
        if specs: a('s_barrier')
        def late():
            if pre:
                l2 = a.newlabel('HL')
                a(f's_cmp_lg_u32 s{S_W}, 0'); a(f's_cbranch_scc1 {l2}')
                if skip_cond: a(skip_cond); a(f's_cbranch_scc1 {l2}')
                pre(False)
                a.label(l2)
        if defer: return late
        late()
    def stamp_w0(self):
        pass

    def front(self):
        a = self.a; L = LANE
        a(f's_load_dwordx2 s[4:5], s[0:1], {KA_WS}')
        a(f's_load_dwordx2 s[6:7], s[0:1], {KA_C}'); a(f's_load_dwordx2 s[8:9], s[0:1], {KA_WMOD}'); a(f's_load_dwordx2 s[10:11], s[0:1], {KA_X}')
        a(f's_load_dwordx2 s[74:75], s[0:1], {KA_WQ}'); a(f's_load_dwordx2 s[76:77], s[0:1], {KA_DBG}')
        a(f's_load_dwordx2 s[78:79], s[0:1], {KA_K}'); a(f's_load_dwordx2 s[90:91], s[0:1], {KA_V}')
        a(f'v_mov_b32 v{TID}, v0')
        a('v_lshrrev_b32 v1, 6, v0'); a(f'v_and_b32 v{LANE}, 63, v0'); a('s_nop 0'); a(f'v_readfirstlane_b32 s{S_W}, v1')
        if M['stamp']: a(f'v_mov_b32 v{STV}, 0'); a('v_mov_b32 v254, 0')
        a(f's_and_b32 s{S_H}, s2, 31'); a(f's_lshr_b32 s{S_QB}, s2, 5')
        a(f'v_lshlrev_b32 v3, 4, v{LANE}')
        a(f'v_and_b32 v4, 3, v{TID}'); a('v_lshlrev_b32 v4, 4, v4'); a(f'v_lshrrev_b32 v5, 2, v{TID}')
        a('v_mul_u32_u24 v6, 49152, v5'); a('v_add_u32 v6, v6, v4'); a('v_lshlrev_b32 v7, 4, v5')
        a(f's_and_b32 s82, s{S_H}, 7'); a('s_lshl_b32 s82, s82, 2'); a(f's_lshr_b32 s83, s{S_H}, 3'); a('s_add_u32 s82, s82, s83')
        a('s_and_b32 s83, s2, 7'); a('s_lshl_b32 s83, s83, 5'); a('s_lshr_b32 s85, s2, 3'); a('s_add_u32 s83, s83, s85')
        a('s_lshl_b32 s84, s82, 6')
        a(f'v_mul_u32_u24 v67, 6144, v{TID}'); a('s_lshl_b32 s87, s83, 4'); a('s_add_u32 s87, s87, 2048'); a(f'v_lshlrev_b32 v68, 1, v{TID}')
        a('s_lshl_b32 s80, s2, 3'); a(f's_lshl_b32 s81, s{S_W}, 1'); a('s_add_u32 s80, s80, s81'); a('s_lshl_b32 s80, s80, 10')
        a('s_waitcnt lgkmcnt(0)')
        self.stamp()
        a.srd(12, 6, 0, 1024); a.srd(16, 8, 0, 3145728); a.srd(28, 10, 0, 2097152)
        a.vmem('buffer_load_dwordx4 v[16:19], v7, s[12:15], 0 offen', 'c1')
        for i in range(8):
            a(f's_add_u32 s86, s84, {i*6144}'); a.vmem(f'buffer_load_dwordx4 v[{20+4*i}:{23+4*i}], v6, s[16:19], s86 offen', 'w1')
        a.vmem('buffer_load_dwordx4 v[8:11], v3, s[28:31], s80 offen', 'x'); a.vmem('buffer_load_dwordx4 v[12:15], v3, s[28:31], s80 offen offset:1024', 'x')
        a.vmem('buffer_load_ushort v52, v68, s[12:15], 0 offen', 'c2'); a.vmem('buffer_load_ushort v53, v68, s[12:15], 0 offen offset:512', 'c2')
        for i in range(2):
            a(f's_add_u32 s86, s87, {i*256*6144}'); a.vmem(f'buffer_load_dwordx4 v[{56+4*i}:{59+4*i}], v67, s[16:19], s86 offen', 'w2')
        if M['kvpf']:
            a(f's_lshl_b32 s44, s{S_H}, 19'); a(f's_lshl_b32 s45, s{S_QB}, 13'); a(f's_lshl_b32 s46, s{S_W}, 11'); a('s_add_u32 s45, s45, s46')
            a.srd(20, 78, 's44', 524288)
            a.vmem('buffer_load_dwordx4 v[148:151], v3, s[20:23], s45 offen', 'pf'); a.vmem('buffer_load_dwordx4 v[152:155], v3, s[20:23], s45 offen offset:1024', 'pf')
            a(f's_mul_i32 s45, s{S_QB}, 6144'); a(f's_mul_i32 s46, s{S_W}, 1536'); a('s_add_u32 s45, s45, s46')
            a.srd(20, 90, 's44', 524288)
            a.vmem('buffer_load_dwordx4 v[156:159], v3, s[20:23], s45 offen', 'pf'); a.vmem('buffer_load_dwordx4 v[160:163], v3, s[20:23], s45 offen offset:512', 'pf')
        a.srd(SRD_SY, 4, WS_SYNC, 28672); a.srd(64, 76, 0, 256); a.srd(SRD_XN, 4, WS_XN, 2097152); a.srd(SRD_WQ, 74, 0, 4194304)
        a.srd(SRD_MP, 4, 0, WS_M2 + 8192)
        a('s_cmp_lg_u32 s2, 0'); a('s_cbranch_scc1 F_NOZ')
        for k in range(4): a(f'v_mov_b32 v{72+k}, 0')
        a(f'v_lshlrev_b32 v76, 4, v{TID}')
        for k in range(7):
            a(f's_mov_b32 s{S_T}, {k*4096}'); a(f'buffer_store_dwordx4 v[72:75], v76, s[{SRD_SY}:{SRD_SY+3}], s{S_T} offen sc1')
        a('s_waitcnt vmcnt(0)'); a('s_barrier')
        a(f's_cmp_lg_u32 s{S_W}, 0'); a('s_cbranch_scc1 F_NOZ')
        a('s_mov_b64 exec, 1'); a('v_mov_b32 v72, 1'); a('v_mov_b32 v73, 0'); a('buffer_store_dword v72, v73, s[64:67], 0 offen sc1'); a('s_mov_b64 exec, -1')
        a.label('F_NOZ')
        def silu(vals):
            for i, r in enumerate(vals): a(f'v_mul_f32 v{124+i}, {f2u(-LOG2E)}, v{r}')
            for i, r in enumerate(vals): a(f'v_exp_f32 v{124+i}, v{124+i}')
            a('s_nop 0')
            for i, r in enumerate(vals): a(f'v_add_f32 v{124+i}, 1.0, v{124+i}')
            for i, r in enumerate(vals): a(f'v_rcp_f32 v{124+i}, v{124+i}')
            a('s_nop 0')
            for i, r in enumerate(vals): a(f'v_mul_f32 v{r}, v{r}, v{124+i}')
            for r in vals: round_bf16(a, r, 132)
        a.wait_vm('c1')
        for k in range(4):
            a(f'v_lshlrev_b32 v{100+2*k}, 16, v{16+k}'); a(f'v_and_b32 v{101+2*k}, 0xffff0000, v{16+k}')
        silu(list(range(100, 108)))
        a.wait_vm('w1')
        for i in range(8):
            for j in range(4):
                w = 20+4*i+j
                a(f'v_lshlrev_b32 v108, 16, v{w}'); a(f'v_and_b32 v109, 0xffff0000, v{w}')
                if i == 0: a(f'v_mul_f32 v{110+2*j}, v108, v100'); a(f'v_mul_f32 v{111+2*j}, v109, v100')
                else: a(f'v_fmac_f32 v{110+2*j}, v108, v{100+i}'); a(f'v_fmac_f32 v{111+2*j}, v109, v{100+i}')
        a('v_lshlrev_b32 v108, 7, v5'); a('v_lshlrev_b32 v109, 1, v4'); a('v_add_u32 v108, v108, v109'); a(f'v_add_u32 v108, {SCR}, v108')
        for j in range(4): a(f'ds_write_b64 v108, v[{110+2*j}:{111+2*j}] offset:{8*j}')
        a('s_waitcnt lgkmcnt(0)'); a('s_barrier')
        a(f's_cmp_lg_u32 s{S_W}, 0'); a('s_cbranch_scc1 F_NOT0')
        a(f'v_and_b32 v70, 31, v{L}'); a('v_lshlrev_b32 v70, 2, v70'); a(f'v_lshrrev_b32 v71, 5, v{L}'); a('v_lshlrev_b32 v71, 12, v71'); a('v_add_u32 v71, v71, v70'); a(f'v_add_u32 v71, {SCR}, v71')
        for r in range(32): a(f'ds_read_b32 v{20+r}, v71 offset:{128*r}')
        a('s_waitcnt lgkmcnt(0)')
        n = 32
        while n > 1:
            for r in range(n//2): a(f'v_add_f32 v{20+r}, v{20+r}, v{20+r+n//2}')
            n //= 2
        xhalf_sum(a, 20, 21)
        a(f's_lshl_b32 s44, s{S_QB}, 12'); a('s_lshl_b32 s45, s82, 7'); a('s_add_u32 s44, s44, s45')
        a('s_mov_b64 exec, 0xffffffff'); a(f'buffer_store_dword v20, v70, s[{SRD_MP}:{SRD_MP+3}], s44 offen sc1')
        a('s_mov_b64 exec, 1'); a('v_mov_b32 v252, 0'); a('s_mov_b32 s68, 0')
        a.label('F_ZP')
        a('buffer_load_dword v251, v252, s[64:67], 0 offen sc1'); a('s_waitcnt vmcnt(0)'); a('v_readfirstlane_b32 s69, v251')
        a('s_add_u32 s68, s68, 1'); a('s_cmp_lg_u32 s69, 0'); a('s_cbranch_scc1 F_ZD')
        a(f's_cmp_gt_u32 s68, {M["spin"]}'); a('s_cbranch_scc1 F_ZD'); a('s_sleep 1'); a('s_branch F_ZP')
        a.label('F_ZD')
        a(f's_lshl_b32 s70, s{S_QB}, 8'); a('v_mov_b32 v251, 1'); a('v_mov_b32 v252, s70')
        a(f'buffer_atomic_add v251, v252, s[{SRD_SY}:{SRD_SY+3}], 0 offen sc1')
        a('s_mov_b64 exec, -1')
        a.label('F_NOT0')
        self.stamp()
        a.wait_vm('x')
        for r in range(2):
            src = 8+4*r; X = 100+8*r
            for k in range(4):
                a(f'v_lshlrev_b32 v{X+2*k}, 16, v{src+k}'); a(f'v_and_b32 v{X+2*k+1}, 0xffff0000, v{src+k}')
            m = 116+r
            a(f'v_add_f32 v{m}, v{X}, v{X+1}')
            for k in range(2, 8): a(f'v_add_f32 v{m}, v{m}, v{X+k}')
        allreduce_multi(a, [116, 117], [118, 119])
        for r in range(2):
            X = 100+8*r; m = 116+r; v = 120+r
            a(f'v_mul_f32 v{m}, {f2u(1/512)}, v{m}')
            a(f'v_sub_f32 v118, v{X}, v{m}'); a(f'v_mul_f32 v{v}, v118, v118')
            for k in range(1, 8):
                a(f'v_sub_f32 v118, v{X+k}, v{m}'); a(f'v_fmac_f32 v{v}, v118, v118')
        allreduce_multi(a, [120, 121], [118, 119])
        for r in range(2):
            X = 100+8*r; m = 116+r; v = 120+r
            a(f'v_mul_f32 v{v}, {f2u(1/512)}, v{v}')
            round_bf16(a, v, 118); a(f'v_add_f32 v{v}, {f2u(1e-5)}, v{v}'); round_bf16(a, v, 118)
            a(f'v_sqrt_f32 v{v}, v{v}'); a('s_nop 0'); round_bf16(a, v, 118)
            a(f'v_rcp_f32 v{v}, v{v}'); round_bf16(a, m, 118)
            for k in range(4):
                a(f'v_sub_f32 v118, v{X+2*k}, v{m}'); a(f'v_sub_f32 v119, v{X+2*k+1}, v{m}')
                a('v_cvt_pk_bf16_f32 v122, v118, v119'); a('v_lshlrev_b32 v118, 16, v122'); a('v_and_b32 v119, 0xffff0000, v122')
                a(f'v_mul_f32 v118, v118, v{v}'); a(f'v_mul_f32 v119, v119, v{v}')
                a('v_cvt_pk_bf16_f32 v122, v118, v119'); a(f'v_lshlrev_b32 v{X+2*k}, 16, v122'); a(f'v_and_b32 v{X+2*k+1}, 0xffff0000, v122')
        a.vm = []
        a(f'v_lshrrev_b32 v70, 4, v{L}'); a(f'v_and_b32 v71, 15, v{L}'); a('v_lshlrev_b32 v72, 2, v70'); a('v_xor_b32 v72, v71, v72'); a('v_lshlrev_b32 v72, 4, v72')
        a('v_lshlrev_b32 v222, 13, v70'); a('v_add_u32 v222, v222, v72')
        a(f's_lshl_b32 s89, s{S_W}, 10'); a(f's_lshl_b32 s99, s{S_W}, 15'); a(f's_lshl_b32 s{S_T}, s{S_H}, 8'); a(f's_add_u32 s99, s99, s{S_T}')
        def wdma(m):
            a(f's_add_u32 m0, s89, {m*4096}'); a(f's_add_u32 s{S_T}, s99, {m*131072}')
            a.vmem(f'buffer_load_dwordx4 v222, s[{SRD_WQ}:{SRD_WQ+3}], s{S_T} offen lds', 'W')
        for m in range(M['w_early']): wdma(m)
        self.stamp()
        a(f's_lshl_b32 s70, s{S_QB}, 8')
        self.wait([(70, 1, 32)])
        self.stamp()
        a(f'v_lshlrev_b32 v70, 5, v{L}'); a(f's_lshl_b32 s44, s{S_QB}, 12')
        a.vmem(f'buffer_load_dwordx4 v[20:23], v70, s[{SRD_MP}:{SRD_MP+3}], s44 offen sc1', 'g'); a.vmem(f'buffer_load_dwordx4 v[24:27], v70, s[{SRD_MP}:{SRD_MP+3}], s44 offen offset:16 sc1', 'g')
        a.vmem(f'buffer_load_dwordx4 v[28:31], v70, s[{SRD_MP}:{SRD_MP+3}], s44 offen offset:2048 sc1', 'g'); a.vmem(f'buffer_load_dwordx4 v[32:35], v70, s[{SRD_MP}:{SRD_MP+3}], s44 offen offset:2064 sc1', 'g')
        for m in range(M['w_early'], 32): wdma(m)
        a.wait_vm('g')
        cs = 128**-0.5 * LOG2E
        for k in range(8):
            round_bf16(a, 20+k, 36); round_bf16(a, 28+k, 36)
            a(f'v_add_f32 v{28+k}, 1.0, v{28+k}'); round_bf16(a, 28+k, 36)
        for r in range(2):
            X = 100+8*r
            for k in range(8): a(f'v_fma_f32 v{X+k}, v{X+k}, v{28+k}, v{20+k}')
            for k in range(4): a(f'v_cvt_pk_bf16_f32 v{8+4*r+k}, v{X+2*k}, v{X+2*k+1}')
        a(f'v_lshlrev_b32 v118, 7, v{L}'); a(f's_lshl_b32 s44, s{S_W}, 5'); a(f's_add_u32 s44, s44, {SCR+8192}'); a('v_add_u32 v118, s44, v118')
        a('ds_write_b128 v118, v[8:11]'); a('ds_write_b128 v118, v[12:15] offset:16')
        a('s_waitcnt lgkmcnt(0)'); a('s_barrier')
        a(f'v_lshlrev_b32 v118, 4, v{TID}'); a(f'v_add_u32 v119, {SCR+8192}, v118')
        a('ds_read_b128 v[8:11], v119'); a('ds_read_b128 v[12:15], v119 offset:4096')
        a(f'v_lshrrev_b32 v119, 3, v{TID}'); a('v_lshlrev_b32 v119, 9, v119'); a(f'v_and_b32 v120, 7, v{TID}'); a('v_lshlrev_b32 v120, 4, v120'); a('v_add_u32 v119, v119, v120')
        a('s_lshr_b32 s44, s2, 2'); a('s_lshl_b32 s44, s44, 15'); a('s_and_b32 s45, s2, 3'); a('s_lshl_b32 s45, s45, 7'); a('s_add_u32 s44, s44, s45'); a('s_add_u32 s45, s44, 16384')
        a('s_waitcnt lgkmcnt(0)')
        a(f'buffer_store_dwordx4 v[8:11], v119, s[{SRD_XN}:{SRD_XN+3}], s44 offen sc1'); a(f'buffer_store_dwordx4 v[12:15], v119, s[{SRD_XN}:{SRD_XN+3}], s45 offen sc1')
        a(f's_add_u32 s70, s{S_QB}, {C_FG2}'); a('s_lshl_b32 s70, s70, 8')
        self.signal([70], vm_allow=0); a.vm = []
        a('v_lshlrev_b32 v134, 16, v52'); a('v_lshlrev_b32 v135, 16, v53')
        silu([134, 135])
        for i in range(2):
            for j in range(4):
                w = 56+4*i+j
                a(f'v_lshlrev_b32 v136, 16, v{w}'); a(f'v_and_b32 v137, 0xffff0000, v{w}')
                if i == 0: a(f'v_mul_f32 v{140+2*j}, v136, v134'); a(f'v_mul_f32 v{141+2*j}, v137, v134')
                else: a(f'v_fmac_f32 v{140+2*j}, v136, v135'); a(f'v_fmac_f32 v{141+2*j}, v137, v135')
        a('s_nop 1'); allreduce_multi(a, list(range(140, 148)), list(range(124, 132)))
        a(f's_lshl_b32 s44, s{S_W}, 5'); a(f's_add_u32 s44, s44, {SCR+4096}'); a('v_mov_b32 v136, s44')
        a('s_mov_b64 exec, 1'); a('ds_write_b128 v136, v[140:143]'); a('ds_write_b128 v136, v[144:147] offset:16'); a('s_mov_b64 exec, -1')
        a('s_waitcnt lgkmcnt(0)'); a('s_barrier')
        a(f's_cmp_lg_u32 s{S_W}, 1'); a('s_cbranch_scc1 F_NOT1')
        a(f'v_and_b32 v70, 7, v{L}'); a('v_lshlrev_b32 v70, 2, v70'); a(f'v_add_u32 v71, {SCR+4096}, v70')
        for w in range(4): a(f'ds_read_b32 v{20+w}, v71 offset:{32*w}')
        a('s_waitcnt lgkmcnt(0)')
        a('v_add_f32 v20, v20, v21'); a('v_add_f32 v22, v22, v23'); a('v_add_f32 v20, v20, v22')
        a('s_lshl_b32 s44, s83, 5'); a(f's_add_u32 s44, s44, {WS_M2}')
        a('s_mov_b64 exec, 0xff'); a(f'buffer_store_dword v20, v70, s[{SRD_MP}:{SRD_MP+3}], s44 offen sc1')
        a('s_mov_b64 exec, 1'); a('v_mov_b32 v252, 0'); a('s_mov_b32 s68, 0')
        a.label('F_ZP1')
        a('buffer_load_dword v251, v252, s[64:67], 0 offen sc1'); a('s_waitcnt vmcnt(0)'); a('v_readfirstlane_b32 s69, v251')
        a('s_add_u32 s68, s68, 1'); a('s_cmp_lg_u32 s69, 0'); a('s_cbranch_scc1 F_ZD1')
        a(f's_cmp_gt_u32 s68, {M["spin"]}'); a('s_cbranch_scc1 F_ZD1'); a('s_sleep 1'); a('s_branch F_ZP1')
        a.label('F_ZD1')
        a('s_and_b32 s71, s2, 7'); a(f's_add_u32 s71, s71, {C_M2}'); a('s_lshl_b32 s71, s71, 8'); a('v_mov_b32 v251, 1'); a('v_mov_b32 v252, s71')
        a(f'buffer_atomic_add v251, v252, s[{SRD_SY}:{SRD_SY+3}], 0 offen sc1')
        a('s_mov_b64 exec, -1')
        a.label('F_NOT1')
        self.stamp()

    def attention(self):
        a = self.a; L = LANE
        a(f's_load_dwordx2 s[6:7], s[0:1], {KA_K}'); a(f's_load_dwordx2 s[8:9], s[0:1], {KA_V}')
        a(f's_load_dwordx2 s[56:57], s[0:1], {KA_WO}'); a(f's_load_dwordx2 s[90:91], s[0:1], {KA_WG}'); a(f's_load_dwordx2 s[92:93], s[0:1], {KA_WU}'); a(f's_load_dwordx2 s[94:95], s[0:1], {KA_WD}')
        a(f's_lshl_b32 s{S_RT}, s{S_QB}, 3'); a(f's_lshl_b32 s{S_T}, s{S_W}, 1'); a(f's_add_u32 s{S_RT}, s{S_RT}, s{S_T}')
        a(f's_lshl_b32 s{S_M0}, s{S_W}, 12'); a(f's_mov_b32 s{S_THR}, {f2u(THR)}')
        a('s_mov_b32 s58, 4194304'); a('s_mov_b32 s59, 0x00020000')
        a('s_mov_b32 s96, 1835008'); a('s_mov_b32 s97, 1835008'); a('s_mov_b32 s98, 1835008')
        a(f's_lshl_b32 s{S_PF}, s2, 12'); a(f's_lshl_b32 s{S_PFM}, s{S_W}, 10'); a(f's_add_u32 s{S_PF}, s{S_PF}, s{S_PFM}'); a(f's_add_u32 s{S_PFM}, s{S_PFM}, {SCR}')
        vg, vhf, vch, vrr, vc, vt, vu = 200, 201, 202, 203, 204, 205, 206
        a(f'v_lshrrev_b32 v{vg}, 4, v{L}'); a(f'v_lshrrev_b32 v{vhf}, 5, v{L}'); a(f'v_and_b32 v{vch}, 1, v{vg}'); a(f'v_bfe_u32 v{vrr}, v{L}, 2, 2'); a(f'v_and_b32 v{vc}, 3, v{L}')
        a(f'v_and_b32 v{vt}, 15, v{L}'); a(f'v_lshlrev_b32 v{vu}, 2, v{vg}'); a(f'v_xor_b32 v{vu}, v{vt}, v{vu}'); a(f'v_lshlrev_b32 v{vu}, 4, v{vu}')
        a(f'v_lshlrev_b32 v{VOV}, 8, v{vg}'); a(f'v_add_u32 v{VOV}, v{VOV}, v{vu}')
        for i in range(4):
            a(f'v_add_u32 v{vu}, {4*i}, v{vg}'); a(f'v_xor_b32 v{vu}, v{vt}, v{vu}'); a(f'v_lshlrev_b32 v{vu}, 4, v{vu}')
            a(f'v_lshlrev_b32 v{VOK+i}, 8, v{vg}'); a(f'v_add_u32 v{VOK+i}, v{VOK+i}, v{vu}')
        a(f'v_and_b32 v{vt}, 31, v{L}')
        for s in range(8):
            a(f'v_add_u32 v{vu}, {2*s}, v{vhf}'); a(f'v_and_b32 v{KAD+s}, 15, v{vt}'); a(f'v_xor_b32 v{vu}, v{vu}, v{KAD+s}'); a(f'v_lshlrev_b32 v{vu}, 4, v{vu}')
            a(f'v_lshlrev_b32 v{KAD+s}, 8, v{vt}'); a(f'v_add_u32 v{KAD+s}, v{KAD+s}, v{vu}')
        WAD = 246
        for dt in range(4):
            a(f'v_xor_b32 v{vt}, {dt}, v{vrr}'); a(f'v_lshlrev_b32 v{vt}, 2, v{vt}'); a(f'v_lshlrev_b32 v{vu}, 1, v{vch}'); a(f'v_add_u32 v{vt}, v{vt}, v{vu}')
            a(f'v_lshrrev_b32 v{vu}, 1, v{vc}'); a(f'v_add_u32 v{vu}, v{vt}, v{vu}'); a(f'v_lshlrev_b32 v{vu}, 4, v{vu}')
            a(f'v_and_b32 v207, 1, v{vc}'); a('v_lshlrev_b32 v207, 3, v207'); a(f'v_add_u32 v{vu}, v{vu}, v207')
            a(f'v_lshlrev_b32 v207, 2, v{vhf}'); a(f'v_add_u32 v207, v207, v{vrr}'); a('v_lshlrev_b32 v207, 8, v207'); a(f'v_add_u32 v{vu}, v{vu}, v207')
            a(f'v_add_u32 v{VAD+dt}, {VBASE}, v{vu}')
            a(f'v_and_b32 v{vu}, 1, v{vc}'); a(f'v_add_u32 v{vu}, v{vt}, v{vu}'); a(f'v_lshlrev_b32 v{vu}, 4, v{vu}')
            a(f'v_lshrrev_b32 v207, 1, v{vc}'); a('v_lshlrev_b32 v207, 3, v207'); a(f'v_add_u32 v{vu}, v{vu}, v207')
            a(f'v_lshlrev_b32 v207, 3, v{vhf}'); a(f'v_add_u32 v207, v207, v{vrr}'); a('v_lshlrev_b32 v207, 8, v207'); a(f'v_add_u32 v{WAD+dt}, v{vu}, v207')
        XOFF = 221
        a(f'v_lshlrev_b32 v{XOFF}, 4, v{L}')
        a('s_waitcnt lgkmcnt(0)')
        a(f's_lshl_b32 s{S_T}, s{S_H}, 19')
        a.srd(SRD_K, 6, f's{S_T}', 524288); a.srd(SRD_V, 8, f's{S_T}', 524288); a.srd(SRD_O, 4, WS_O, 16777216)
        a(f's_add_u32 s70, s{S_QB}, {C_FG2}'); a('s_lshl_b32 s70, s70, 8')
        self.wait([(70, 1, 32)])
        self.stamp()
        S_XO = 48
        a(f's_lshl_b32 s{S_XO}, s{S_RT}, 15'); a(f's_add_u32 s{S_XO+1}, s{S_XO}, 32768')
        SLOTS = [8*i for i in range(8)] + [192, 200, 208]
        RING = len(SLOTS)
        def x_ops(s, q):
            r = SLOTS[s % RING] + 4*q
            return ([f's_add_u32 s{S_T}, s{S_XO+q}, {(s//4)*4096}'],
                    f'buffer_load_dwordx4 v[{r}:{r+3}], v{XOFF}, s[{SRD_XN}:{SRD_XN+3}], s{S_T} offen offset:{(s%4)*1024} {M["ldsc"]}')
        def kv_ops(which, tile, i):
            base = (0 if which == 'K' else VBASE) + (tile & 3)*16384
            srd = SRD_K if which == 'K' else SRD_V
            vo = VOK+i if which == 'K' else VOV
            return ([f's_add_u32 m0, s{S_M0}, {base}', f's_add_u32 s{S_T}, s{S_M0}, {tile*16384}'],
                    f'buffer_load_dwordx4 v{vo}, s[{srd}:{srd+3}], s{S_T} offen offset:{1024*i} lds')
        def emit_item(ops, tag):
            for x in ops[0]: a(x)
            a.vmem(ops[1], tag)
        PRE_X = min(M['pre_x'], RING)
        for s in range(PRE_X):
            for q in range(2): emit_item(x_ops(s, q), ('X', s))
        LA = 2; WF = [192, 208, 224]
        def QA(q, dt): return 64 + (q*4+dt)*16
        def w_read_ops(s):
            return [f'ds_read_b64_tr_b16 {ar(WF[s % 3] + dt*4 + 2*u,2)}, v{WAD+dt} offset:{(s%16)*4096 + 1024*u}' for dt in range(4) for u in range(2)]
        for s0 in range(LA):
            for op in w_read_ops(s0): a.lds(op, ('Wf', s0))
        BARS = [7, 15, 23, 31]
        Q = []
        for s in range(PRE_X, 32):
            for q in range(2): Q.append((s-1, s-RING+1, ('X', s), x_ops(s, q)))
        for which, tile, av in (('K',0,7),('K',1,7),('K',2,15),('K',3,15),('V',0,23),('V',1,23),('V',2,31)):
            for i in range(4): Q.append((100, max(av, M['kv_from']), (which, tile), kv_ops(which, tile, i)))
        Q.sort(key=lambda x: x[0])
        def pop_q(s):
            for i, it in enumerate(Q):
                if it[1] <= s: return Q.pop(i)
            return None
        bumped = False
        for s in range(32):
            assert not any(it[2] == ('X', s) for it in Q), s
            if s in BARS: a.wait_vm(('X', s)); a.wait_lg0(); a('s_barrier')
            else: a.wait_vm(('X', s)); a.wait_lg(('Wf', s))
            if s+LA == 16:
                for dt in range(4): a(f'v_add_u32 v{WAD+dt}, 65536, v{WAD+dt}')
            wr = w_read_ops(s+LA) if s+LA < 32 else []
            x = SLOTS[s % RING]
            mfs = [mfma(vr(QA(q,dt),16), ar(WF[s % 3]+dt*4,4), vr(x+4*q,4), '0' if s == 0 else vr(QA(q,dt),16)) for dt in range(4) for q in range(2)]
            ri = 0
            for g in range(8):
                it = pop_q(s) if g in M['qp_slots'] else None
                if it:
                    for t_ in it[3][0]: a(t_)
                a(mfs[g])
                if it: a.vmem(it[3][1], it[2])
                else:
                    for op in wr[ri:ri+2]: a.lds(op, ('Wf', s+LA))
                    ri += 2
            for op in wr[ri:]: a.lds(op, ('Wf', s+LA))
        while Q:
            it = Q.pop(0); emit_item(it[3], it[2])
        a(f's_add_u32 s{S_KOFF}, s{S_M0}, {4*16384}'); a(f's_add_u32 s{S_VOFF}, s{S_M0}, {3*16384}')
        self.stamp()
        a(f'v_mov_b32 v250, {f2u(128**-0.5 * LOG2E)}')
        a.nop(14)
        for q in range(2):
            for dt in range(4):
                for k in range(0, 16, 2):
                    r = QA(q,dt)+k
                    a(f'v_pk_mul_f32 v[{r}:{r+1}], v[{r}:{r+1}], v[250:251] op_sel_hi:[1,0]')
                for t in range(2):
                    b = 4*((2*dt+t) % 4)
                    for k in range(4): a(f'v_cvt_pk_bf16_f32 v{b+k}, v{QA(q,dt)+8*t+2*k}, v{QA(q,dt)+8*t+2*k+1}')
                    for k in range(4): a(f'v_accvgpr_write_b32 a{QF(q,2*dt+t)+k}, v{b+k}')
        a(f'v_mov_b32 v{LR[0]}, 0'); a(f'v_mov_b32 v{LR[1]}, 0')
        a.wait_vm(('V', 1)); a('s_barrier')
        for s in range(8): a(k_read(s, 0))
        a('s_waitcnt lgkmcnt(0)')
        for s in range(8):
            for q in range(2):
                d = vr(S[0]+q*16, 16); a(mfma(d, ar(KF(s),4), ar(QF(q,s),4), '0' if s == 0 else d))
        for s in range(8): a(k_read(s, 1))
        a.nop(16)
        m = TMP+1; t2 = TMP+2
        for q in range(2):
            sc = S[0]+q*16
            a(f'v_max3_f32 v{m}, v{sc}, v{sc+1}, v{sc+2}')
            for r in range(3, 15, 2): a(f'v_max3_f32 v{m}, v{m}, v{sc+r}, v{sc+r+1}')
            a(f'v_max_f32 v{m}, v{m}, v{sc+15}')
            a(f'v_mov_b32 v{t2}, v{m}'); a('s_nop 1'); a(f'v_permlane32_swap_b32 v{t2}, v{m}'); a('s_nop 1'); a(f'v_max_f32 v{m}, v{m}, v{t2}')
            a(f'v_add_f32 v{m}, {f2u(OFFSET)}, v{m}')
            for r in range(16):
                a(f'v_sub_f32 v{NEGM+q*16+r}, 0, v{m}'); a(f'v_sub_f32 v{sc+r}, v{sc+r}, v{m}')
        self.stubs = stubs = []
        self.stamp()
        gen_iter(a, 0, do_pv=False, do_vread=False, barrier=63, dmaK=4, lsum_prev=False, stubs=stubs)
        gen_iter(a, 1, dmaV=3, stubs=stubs, pf=True, pv_zero=True)
        a(f's_mov_b32 s{S_CNT}, 7')
        a.raw('.p2align 6')
        a.label('KB_LOOP0')
        for j in range(2, 10):
            T_ = j//2
            if j % 2 == 0: gen_iter(a, j, barrier=18, dmaK=T_+4, stubs=stubs)
            else: gen_iter(a, j, dmaV=T_+3, stubs=stubs, pf=True)
            if j == 8:
                a(f's_sub_u32 s{S_PF}, s{S_PF}, 0x400000')
                a('s_mov_b32 s56, s90'); a('s_mov_b32 s57, s91'); a('s_mov_b32 s90, s92'); a('s_mov_b32 s91, s93'); a('s_mov_b32 s92, s94'); a('s_mov_b32 s93, s95')
                a('s_mov_b32 s58, s96'); a('s_mov_b32 s96, s97'); a('s_mov_b32 s97, s98'); a('s_mov_b32 s98, 0')
        a(f's_sub_u32 s{S_CNT}, s{S_CNT}, 1'); a(f's_cmp_lg_u32 s{S_CNT}, 0'); a('s_cbranch_scc1 KB_LOOP0')
        gen_iter(a, 58, barrier=9, stubs=stubs); gen_iter(a, 59, stubs=stubs)
        gen_iter(a, 60, barrier=0, stubs=stubs); gen_iter(a, 61, stubs=stubs); gen_iter(a, 62, do_kread=False, stubs=stubs)
        gen_iter(a, 63, do_qk=False, do_kread=False, stubs=stubs)
        a(f'v_add_f32 v{LR[0]}, v{LR[0]}, v{LT[0]}'); a(f'v_add_f32 v{LR[1]}, v{LR[1]}, v{LT[1]}')
        for t in range(2):
            for dt in range(4):
                for u in range(2): a(v_read(t, dt, u, 63))
        a('s_waitcnt lgkmcnt(0)')
        for t in range(2):
            for dt in range(4):
                for q in range(2):
                    d = ar(OA(q,dt),16); a(mfma(d, ar(VF(t,dt),4), vr(P[1]+q*8+t*4,4), d))
        a('s_barrier')
        a.vm = []; a.lg = []
        self.stamp()
        for q in range(2):
            xhalf_sum(a, LR[q], TMP); a(f'v_rcp_f32 v{LR[q]}, v{LR[q]}')
        a.nop(16)
        S_WS = 45
        a(f's_lshl_b32 s{S_T}, s{S_RT}, 18'); a(f's_lshl_b32 s{S_WS}, s{S_H}, 13'); a(f's_add_u32 s{S_XO}, s{S_T}, s{S_WS}'); a(f's_add_u32 s{S_XO+1}, s{S_XO}, {256*1024}')
        cnt = 0
        for q in range(2):
            a(f'v_mov_b32 v250, v{LR[q]}')
            for dt in range(4):
                for t in range(2):
                    b = 16*(cnt % 4); cnt += 1
                    for k in range(8): a(f'v_accvgpr_read_b32 v{b+k}, a{OA(q,dt)+8*t+k}')
                    for k in range(0, 8, 2): a(f'v_pk_mul_f32 v[{b+k}:{b+k+1}], v[{b+k}:{b+k+1}], v[250:251] op_sel_hi:[1,0]')
                    for k in range(4): a(f'v_cvt_pk_bf16_f32 v{b+8+k}, v{b+2*k}, v{b+2*k+1}')
                    ks = 2*dt+t
                    a(f's_add_u32 s{S_T}, s{S_XO+q}, {(ks//4)*4096}')
                    a.vmem(f'buffer_store_dwordx4 v[{b+8}:{b+11}], v{XOFF}, s[{SRD_O}:{SRD_O+3}], s{S_T} offen offset:{(ks%4)*1024} sc1', 'ost')

    def lane_consts_vstyle(self, WAD, WOFF, rowstride, tmp):
        a = self.a; L = LANE
        vg, vhf, vch, vrr, vc, vt, vu, vw = range(tmp, tmp+8)
        a(f'v_lshrrev_b32 v{vg}, 4, v{L}'); a(f'v_lshrrev_b32 v{vhf}, 5, v{L}'); a(f'v_and_b32 v{vch}, 1, v{vg}')
        a(f'v_bfe_u32 v{vrr}, v{L}, 2, 2'); a(f'v_and_b32 v{vc}, 3, v{L}')
        a(f'v_and_b32 v{vt}, 15, v{L}'); a(f'v_lshlrev_b32 v{vu}, 2, v{vg}'); a(f'v_xor_b32 v{vu}, v{vt}, v{vu}'); a(f'v_lshlrev_b32 v{vu}, 4, v{vu}')
        a(f'v_mul_u32_u24 v{WOFF}, {rowstride}, v{vg}'); a(f'v_add_u32 v{WOFF}, v{WOFF}, v{vu}')
        for dt in range(4):
            a(f'v_xor_b32 v{vt}, {dt}, v{vrr}'); a(f'v_lshlrev_b32 v{vt}, 2, v{vt}'); a(f'v_lshlrev_b32 v{vu}, 1, v{vch}'); a(f'v_add_u32 v{vt}, v{vt}, v{vu}')
            a(f'v_lshrrev_b32 v{vu}, 1, v{vc}'); a(f'v_add_u32 v{vu}, v{vt}, v{vu}'); a(f'v_lshlrev_b32 v{vu}, 4, v{vu}')
            a(f'v_and_b32 v{vw}, 1, v{vc}'); a(f'v_lshlrev_b32 v{vw}, 3, v{vw}'); a(f'v_add_u32 v{vu}, v{vu}, v{vw}')
            a(f'v_lshlrev_b32 v{vw}, 2, v{vhf}'); a(f'v_add_u32 v{vw}, v{vw}, v{vrr}'); a(f'v_lshlrev_b32 v{vw}, 8, v{vw}')
            a(f'v_add_u32 v{WAD[0]+dt}, v{vu}, v{vw}'); a(f'v_add_u32 v{WAD[1]+dt}, 65536, v{WAD[0]+dt}')

    def shared_gemm(self, NK, NM, nmat, CH, w_dma_ops, x_load_ops, XRING, XR, WF, WAD, ACC, pre_x, nv, npre, LA=2):
        a = self.a
        chunk_bytes = nmat*CH*4096; NSLOT = 131072 // chunk_bytes; NCH = NK // CH
        NB = LA+1
        def emit(ops, tag):
            for x in ops[0]: a(x)
            a.vmem(ops[1], tag)
        for s in range(pre_x): emit(x_load_ops(s), ('X', s))
        a.wait_vm(('W', 0)); a('s_barrier')
        Q = []
        for c in range(npre, NCH):
            av = -1 if c < NSLOT else (c-NSLOT+1)*CH - LA
            for o in w_dma_ops(c): Q.append((c*CH-LA-2*CH, av, ('W', c), o))
        for s in range(pre_x, NK): Q.append((s-0.5-4, s-XRING+1, ('X', s), x_load_ops(s)))
        Q.sort(key=lambda x: x[0])
        def pop_q(s):
            for i, it in enumerate(Q):
                if it[1] <= s: return Q.pop(i)
            return None
        def w_read_ops(s):
            ops = []; c = s//CH; slot = c % NSLOT
            for gu in range(nmat):
                for dt in range(4):
                    for u in range(2):
                        off = slot*chunk_bytes + gu*CH*4096 + (s % CH)*4096 + u*2048
                        ops.append(f'ds_read_b64_tr_b16 {ar(WF[s % NB] + (gu*4+dt)*4 + 2*u,2)}, v{WAD[off>>16]+dt} offset:{off & 65535}')
            return ops
        half = NM
        for s0 in range(LA):
            for i, op in enumerate(w_read_ops(s0)): a.lds(op, ('Wf', s0, i//half))
        for s in range(NK):
            bar = ((s+LA) % CH == 0 and s+LA < NK)
            assert not any(it[2] == ('X', s) for it in Q), s
            if bar:
                c = (s+LA)//CH
                assert not any(it[2] == ('W', c) for it in Q), (s, c)
                a.wait_vm([('W', c), ('X', s)]); a.wait_lg0(); a('s_barrier')
            else:
                a.wait_vm(('X', s)); a.wait_lg(('Wf', s, 0))
            wr = w_read_ops(s+LA) if s+LA < NK else []
            x = XR + 4*(s % XRING)
            items = []
            for _ in range(nv):
                it = pop_q(s)
                if it: items.append(it)
            vg = list(range(0, NM, max(1, NM//max(1, nv))))[:len(items)] if items else []
            vg = [NM-1-g for g in vg]
            free = [g for g in range(NM) if g not in vg]
            nper = {g: 0 for g in range(NM)}
            rem = len(wr)
            cap = M['tr_cap']
            for g in free:
                k = min(cap, rem); nper[g] = k; rem -= k
            gi = 0; sv = sorted(vg) + free
            while rem:
                nper[sv[gi % len(sv)]] += 1; rem -= 1; gi += 1
            ri = 0; vi = 0
            for g in range(NM):
                d = ACC(g)
                if g == NM//2 and not bar: a.wait_lg(('Wf', s, 1))
                it = None
                if g in vg:
                    it = items[vi]; vi += 1
                    for t in it[3][0]: a(t)
                a(mfma(d, ar(WF[s % NB]+g*4,4), vr(x,4), '0' if s == 0 else d))
                if it: a.vmem(it[3][1], it[2])
                for _ in range(nper[g]):
                    a.lds(wr[ri], ('Wf', s+LA, ri//half)); ri += 1
        assert not Q, Q

    def mod2_tables(self):
        a = self.a
        a.srd(64, 4, WS_M2, 65536)
        a(f's_mov_b32 s71, {C_M2*256}')
        self.wait([(71, 8, 32)])
        a(f'v_lshlrev_b32 v136, 3, v{TID}'); a('v_add_u32 v137, 4096, v136')
        B0 = 64
        for e in range(8):
            a(f's_mov_b32 s83, {e*8192}')
            for j in range(4):
                vo = 136 if j < 2 else 137
                a.vmem(f'buffer_load_dwordx2 v[{B0+16*j+2*e}:{B0+16*j+2*e+1}], v{vo}, s[64:67], s83 offen offset:{2048*(j%2)} sc1', 'mod')
        a.wait_vm('mod')
        for j in range(4):
            for c_ in range(2):
                b = B0+16*j+c_
                for st_ in (2, 4, 8):
                    for e in range(0, 16, 2*st_): a(f'v_add_f32 v{b+e}, v{b+e}, v{b+e+st_}')
                round_bf16(a, b, 138)
        for c_ in range(2):
            a(f'v_add_f32 v{B0+32+c_}, 1.0, v{B0+32+c_}'); round_bf16(a, B0+32+c_, 138)
        a(f'v_add_u32 v136, {SCR}, v136')
        a(f'ds_write_b64 v136, v[{B0}:{B0+1}]'); a(f'ds_write_b64 v136, v[{B0+32}:{B0+33}] offset:2048')
        a(f'ds_write_b64 v136, v[{B0+16}:{B0+17}] offset:4096'); a(f'ds_write_b64 v136, v[{B0+48}:{B0+49}] offset:6144')
        a('s_waitcnt lgkmcnt(0)')

    def phase_c(self):
        a = self.a
        S_RB=36; S_CB=37; S_KQ=33; S_TT=38; S_RTc=39; S_WO=41; S_M0c=42; S_XO=45
        SRD_W=12; SRD_X=16; SRD_Oc=20
        WAD=[200, 204]; WOFF=208; LOFF=209
        a(f's_load_dwordx2 s[6:7], s[0:1], {KA_WO}')
        a('s_lshr_b32 s70, s2, 5'); a('s_lshl_b32 s70, s70, 2'); a('s_bfe_u32 s71, s2, 0x20003'); a('s_add_u32 s70, s70, s71'); a(f's_add_u32 s70, s70, {C_CO}'); a('s_lshl_b32 s70, s70, 8')
        a('s_and_b32 s34, s2, 7'); a('s_lshr_b32 s35, s2, 3')
        a(f's_and_b32 s{S_KQ}, s34, 3'); a('s_lshr_b32 s34, s34, 2'); a('s_lshl_b32 s34, s34, 3'); a(f's_and_b32 s{S_RB}, s35, 7'); a(f's_add_u32 s{S_RB}, s{S_RB}, s34')
        a(f's_lshr_b32 s{S_CB}, s35, 3')
        a(f'v_lshlrev_b32 v{LOFF}, 4, v{LANE}')
        self.lane_consts_vstyle(WAD, WOFF, 1024, 128)
        a(f's_lshl_b32 s{S_RTc}, s{S_RB}, 2'); a(f's_add_u32 s{S_RTc}, s{S_RTc}, s{S_W}')
        a(f's_lshl_b32 s{S_WO}, s{S_KQ}, 20'); a(f's_lshl_b32 s{S_TT}, s{S_W}, 12'); a(f's_add_u32 s{S_WO}, s{S_WO}, s{S_TT}')
        a(f's_lshl_b32 s{S_TT}, s{S_CB}, 8'); a(f's_add_u32 s{S_WO}, s{S_WO}, s{S_TT}')
        a(f's_lshl_b32 s{S_M0c}, s{S_W}, 10')
        a(f's_lshl_b32 s{S_XO}, s{S_RTc}, 18'); a(f's_lshl_b32 s{S_TT}, s{S_KQ}, 16'); a(f's_add_u32 s{S_XO}, s{S_XO}, s{S_TT}')
        a(f's_lshr_b32 s71, s{S_RB}, 1'); a('s_lshl_b32 s71, s71, 2'); a(f's_add_u32 s71, s71, s{S_KQ}'); a(f's_add_u32 s71, s71, {C_CO}'); a('s_lshl_b32 s71, s71, 8')
        a('s_waitcnt lgkmcnt(0)')
        a.srd(SRD_W, 6, 0, 4194304); a.srd(SRD_X, 4, WS_O, 16777216); a.srd(SRD_Oc, 4, WS_P, 8388608); a.srd(64, 4, WS_M2, 8192)
        def w_dma_ops(c):
            slot = c % 8
            return [([f's_add_u32 m0, s{S_M0c}, {slot*16384 + m*4096}', f's_add_u32 s{S_TT}, s{S_WO}, {(c*64 + m*16)*1024}'],
                     f'buffer_load_dwordx4 v{WOFF}, s[{SRD_W}:{SRD_W+3}], s{S_TT} offen lds') for m in range(4)]
        XRING = 32
        def x_load_ops(s):
            r = 4*(s % XRING)
            return ([f's_add_u32 s{S_TT}, s{S_XO}, {(s//4)*4096}'],
                    f'buffer_load_dwordx4 v[{r}:{r+3}], v{LOFF}, s[{SRD_X}:{SRD_X+3}], s{S_TT} offen offset:{(s%4)*1024} {M["ldsc"]}')
        NPRE = M['c_prew']
        def pre(track):
            for c in range(NPRE):
                for o in w_dma_ops(c):
                    for x in o[0]: a(x)
                    if track: a.vmem(o[1], ('W', c))
                    else: a(o[1])
        self.handoff(70, [('multi', 71, 8)], pre=pre, npre=4*NPRE)
        self.stamp()
        a(f'v_lshlrev_b32 v210, 3, v{TID}'); a('v_add_u32 v211, 4096, v210')
        a.vmem('buffer_load_dwordx2 v[192:193], v210, s[64:67], 0 offen sc1', 'mod'); a.vmem('buffer_load_dwordx2 v[194:195], v210, s[64:67], 0 offen offset:2048 sc1', 'mod')
        a.vmem('buffer_load_dwordx2 v[196:197], v211, s[64:67], 0 offen sc1', 'mod'); a.vmem('buffer_load_dwordx2 v[198:199], v211, s[64:67], 0 offen offset:2048 sc1', 'mod')
        ACCB = 128
        self.shared_gemm(64, 4, 1, 4, w_dma_ops, x_load_ops, XRING, 0, [0, 16, 32], WAD, lambda g: vr(ACCB+16*g, 16), pre_x=M['c_prex'], nv=M['c_nv'], npre=NPRE, LA=M['la'])
        for c_ in range(2):
            for r in (192, 194, 196, 198): round_bf16(a, r+c_, 212)
            a(f'v_add_f32 v{196+c_}, 1.0, v{196+c_}'); round_bf16(a, 196+c_, 212)
        a(f'v_add_u32 v210, {T2B}, v210')
        a('ds_write_b64 v210, v[192:193]'); a('ds_write_b64 v210, v[196:197] offset:2048'); a('ds_write_b64 v210, v[194:195] offset:4096'); a('ds_write_b64 v210, v[198:199] offset:6144')
        a('s_waitcnt lgkmcnt(0)')
        a('s_barrier')
        self.stamp()
        a(f's_lshl_b32 s{S_XO}, s{S_KQ}, 21'); a(f's_lshl_b32 s{S_TT}, s{S_RTc}, 15'); a(f's_add_u32 s{S_XO}, s{S_XO}, s{S_TT}')
        a(f's_lshl_b32 s{S_TT}, s{S_CB}, 13'); a(f's_add_u32 s{S_XO}, s{S_XO}, s{S_TT}')
        for mt in range(4):
            if mt % 2 == 0: a(f's_add_u32 s{S_TT}, s{S_XO}, {(mt//2)*4096}')
            for t in range(2):
                b = 4*(2*mt+t)
                for k in range(4):
                    r = ACCB + 16*mt + 8*t + 2*k
                    a(f'v_cvt_pk_bf16_f32 v{b+k}, v{r}, v{r+1}')
                a.vmem(f'buffer_store_dwordx4 v[{b}:{b+3}], v{LOFF}, s[{SRD_Oc}:{SRD_Oc+3}], s{S_TT} offen offset:{1024*((2*mt+t)%4)} sc1', 'pst')
        a(f's_add_u32 s74, s{S_RB}, {C_CP}'); a('s_lshl_b32 s74, s74, 8')

    def d_setup(self):
        a = self.a
        d = self.d = dict(S_RB=36, S_FG=37, S_TT=38, S_RT=39, S_GO=41, S_M0=42, S_XO=45, SRD_G=12, SRD_U=16, SRD_X=20, SRD_O=28, WAD=[200, 204], WOFF=208, LOFF=209)
        a(f's_load_dwordx2 s[6:7], s[0:1], {KA_WG}'); a(f's_load_dwordx2 s[8:9], s[0:1], {KA_WU}')
        a('s_and_b32 s33, s2, 7'); a('s_lshr_b32 s34, s2, 3')
        a(f's_and_b32 s36, s34, 3'); a('s_lshr_b32 s35, s33, 1'); a('s_lshl_b32 s35, s35, 2'); a('s_add_u32 s36, s36, s35')
        a(f's_lshr_b32 s37, s34, 2'); a('s_and_b32 s35, s33, 1'); a('s_mul_i32 s35, s35, 7'); a('s_add_u32 s37, s37, s35')
        self.lane_consts_vstyle(d['WAD'], d['WOFF'], 3584, 128)
        a(f's_lshl_b32 s39, s36, 2'); a(f's_add_u32 s39, s39, s{S_W}')
        a(f's_lshl_b32 s41, s37, 8'); a(f's_mul_i32 s38, s{S_W}, {4*3584}'); a('s_add_u32 s41, s41, s38')
        a(f's_lshl_b32 s42, s{S_W}, 10'); a('s_lshl_b32 s45, s39, 15')
        a('s_waitcnt lgkmcnt(0)')
        a.srd(12, 6, 0, 512*3584); a.srd(16, 8, 0, 512*3584)
    def d_w_dma_ops(self, c):
        slot = c % 4; ops = []
        for m in range(4):
            for gu in range(2):
                srd = 12 if gu == 0 else 16
                ops.append(([f's_add_u32 m0, s42, {slot*32768 + gu*16384 + m*4096}', f's_add_u32 s38, s41, {(c*64 + m*16)*3584}'],
                            f'buffer_load_dwordx4 v208, s[{srd}:{srd+3}], s38 offen lds'))
        return ops

    def wait_P(self):
        a = self.a
        l1 = a.newlabel('WP'); l2 = a.newlabel('WP')
        a(f's_cmp_lg_u32 s{S_W}, 0'); a(f's_cbranch_scc1 {l1}'); a('s_cmp_ge_u32 s2, 224'); a(f's_cbranch_scc1 {l1}')
        a('s_waitcnt vmcnt(32)'); a(f's_branch {l2}')
        a.label(l1); a('s_waitcnt vmcnt(0)')
        a.label(l2); a.vm = []
    def phase_r(self):
        a = self.a
        S_TT = 38
        SRD_P=44; SRD_X=48; SRD_MPr=52; SRD_X1=64; SRD_H=76
        TB0 = T2B
        a(f's_load_dwordx2 s[6:7], s[0:1], {KA_X}')
        a(f'v_and_b32 v2, 7, v{TID}'); a(f'v_bfe_u32 v3, v{TID}, 3, 1'); a(f'v_lshrrev_b32 v4, 4, v{TID}')
        a('s_lshr_b32 s80, s2, 2'); a('s_and_b32 s81, s2, 3'); a('s_lshl_b32 s81, s81, 3')
        a('v_lshlrev_b32 v5, 5, v3'); a('v_add_u32 v5, v5, v2'); a('v_add_u32 v5, s81, v5'); a('v_lshlrev_b32 v5, 4, v5')
        a('v_lshlrev_b32 v6, 10, v4'); a('v_add_u32 v6, v6, v5'); a('v_lshlrev_b32 v7, 11, v4'); a('v_add_u32 v7, v7, v5')
        a('v_add_u32 v8, s81, v2'); a('v_lshlrev_b32 v8, 10, v8'); a('v_lshlrev_b32 v9, 5, v4'); a('v_add_u32 v8, v8, v9'); a('v_lshlrev_b32 v9, 3, v3'); a('v_add_u32 v8, v8, v9')
        a(f'v_lshlrev_b32 v10, 3, v{TID}')
        a('s_waitcnt lgkmcnt(0)')
        a.srd(20, 4, WS_P, 8388608); a.srd(24, 6, 0, 2097152); a.srd(28, 4, WS_M2, 65536); a.srd(64, 4, WS_X1, 2097152); a.srd(76, 4, WS_H2, 2097152)
        a('s_lshl_b32 s82, s80, 15')
        for i in range(2):
            a(f's_add_u32 s83, s82, {i*512}')
            a.vmem(f'buffer_load_dwordx2 v[{112+4*i}:{113+4*i}], v8, s[24:27], s83 offen', 'x')
            a.vmem(f'buffer_load_dwordx2 v[{114+4*i}:{115+4*i}], v8, s[24:27], s83 offen offset:16', 'x')
        a('v_lshlrev_b32 v12, 6, v4'); a('v_lshlrev_b32 v13, 4, v3'); a('v_add_u32 v12, v12, v13'); a(f'v_add_u32 v12, {TB0}, v12')
        TB = 120
        for j in range(3):
            for i in range(2):
                for h in range(2):
                    r = TB + 16*j + 8*i + 4*h
                    a(f'ds_read_b128 v[{r}:{r+3}], v12 offset:{2048*j + 1024*i + 32*h}')
        a('s_lshr_b32 s70, s2, 4'); a(f's_add_u32 s70, s70, {C_CP}'); a('s_lshl_b32 s70, s70, 8')
        def pre(track):
            for c in range(4):
                for o in self.d_w_dma_ops(c):
                    for x in o[0]: a(x)
                    if track: a.vmem(o[1], ('W', c))
                    else: a(o[1])
        late = self.handoff(74, [(70, 1, 16)], pre=pre, npre=32, skip_cond='s_cmp_ge_u32 s2, 224', defer=True)
        a.vm = []
        self.stamp()
        a('s_lshl_b32 s84, s80, 15')
        for i in range(2):
            for kq in range(4):
                a(f's_add_u32 s83, s84, {kq*2097152 + i*16384}')
                r = 80 + (i*4+kq)*4
                a.vmem(f'buffer_load_dwordx4 v[{r}:{r+3}], v6, s[20:23], s83 offen sc1', 'P')
        late()
        a('s_waitcnt vmcnt(32)') if False else None
        self.wait_P()
        a('s_waitcnt lgkmcnt(0)')
        for i in range(2):
            b = 48 + i*32
            for k in range(4):
                for kq in range(4):
                    r = 80 + (i*4+kq)*4 + k
                    if kq == 0:
                        a(f'v_lshlrev_b32 v{b+2*k}, 16, v{r}'); a(f'v_and_b32 v{b+2*k+1}, 0xffff0000, v{r}')
                    else:
                        a(f'v_lshlrev_b32 v41, 16, v{r}'); a(f'v_and_b32 v42, 0xffff0000, v{r}')
                        a(f'v_add_f32 v{b+2*k}, v{b+2*k}, v41'); a(f'v_add_f32 v{b+2*k+1}, v{b+2*k+1}, v42')
        for i in range(2):
            b = 48 + i*32
            for k in range(4):
                A0, A1 = b+2*k, b+2*k+1
                a(f'v_cvt_pk_bf16_f32 v40, v{A0}, v{A1}'); a(f'v_lshlrev_b32 v{A0}, 16, v40'); a(f'v_and_b32 v{A1}, 0xffff0000, v40')
                a(f'v_mul_f32 v{A0}, v{A0}, v{TB+8*i+2*k}'); a(f'v_mul_f32 v{A1}, v{A1}, v{TB+8*i+2*k+1}')
                a(f'v_cvt_pk_bf16_f32 v40, v{A0}, v{A1}'); a(f'v_lshlrev_b32 v{A0}, 16, v40'); a(f'v_and_b32 v{A1}, 0xffff0000, v40')
                xr = 112+4*i+k
                a(f'v_lshlrev_b32 v41, 16, v{xr}'); a(f'v_and_b32 v42, 0xffff0000, v{xr}')
                a(f'v_add_f32 v{A0}, v{A0}, v41'); a(f'v_add_f32 v{A1}, v{A1}, v42')
                a(f'v_cvt_pk_bf16_f32 v{32+4*i+k}, v{A0}, v{A1}')
                a(f'v_lshlrev_b32 v{16+8*i+2*k}, 16, v{32+4*i+k}'); a(f'v_and_b32 v{17+8*i+2*k}, 0xffff0000, v{32+4*i+k}')
        a('s_lshl_b32 s82, s80, 15'); a('s_add_u32 s83, s82, 16384')
        a.vmem('buffer_store_dwordx4 v[32:35], v6, s[64:67], s82 offen sc1', 'st'); a.vmem('buffer_store_dwordx4 v[36:39], v6, s[64:67], s83 offen sc1', 'st')
        def rowreduce(x, t, ldsoff):
            a('s_nop 1'); a(f'v_add_f32_dpp v{x}, v{x}, v{x} row_ror:8 row_mask:0xf bank_mask:0xf')
            a(f'v_mov_b32 v{t}, v{x}'); a('s_nop 1'); a(f'v_permlane16_swap_b32 v{t}, v{x}'); a('s_nop 1'); a(f'v_add_f32 v{x}, v{x}, v{t}')
            a(f'v_mov_b32 v{t}, v{x}'); a('s_nop 1'); a(f'v_permlane32_swap_b32 v{t}, v{x}'); a('s_nop 1'); a(f'v_add_f32 v{x}, v{x}, v{t}')
            a(f'ds_write_b32 v44, v{x} offset:{ldsoff}'); a('s_waitcnt lgkmcnt(0)'); a('s_barrier')
            for w in range(4): a(f'ds_read_b32 v{168+w}, v45 offset:{ldsoff+32*w}')
            a('s_waitcnt lgkmcnt(0)')
            a('v_add_f32 v168, v168, v169'); a('v_add_f32 v170, v170, v171'); a(f'v_add_f32 v{x}, v168, v170')
        a('v_lshlrev_b32 v45, 2, v2'); a(f'v_add_u32 v45, {SCR+4096}, v45'); a(f's_lshl_b32 s85, s{S_W}, 5'); a('v_add_u32 v44, s85, v45')
        a('v_add_f32 v46, v16, v17')
        for k in range(2, 16): a(f'v_add_f32 v46, v46, v{16+k}')
        rowreduce(46, 47, 0)
        a(f'v_mul_f32 v46, {f2u(1/512)}, v46')
        a('v_sub_f32 v41, v16, v46'); a('v_mul_f32 v43, v41, v41')
        for k in range(1, 16):
            a(f'v_sub_f32 v41, v{16+k}, v46'); a('v_fmac_f32 v43, v41, v41')
        rowreduce(43, 47, 256)
        a(f'v_mul_f32 v43, {f2u(1/512)}, v43')
        round_bf16(a, 43, 47); a(f'v_add_f32 v43, {f2u(1e-5)}, v43'); round_bf16(a, 43, 47)
        a('v_sqrt_f32 v43, v43'); a('s_nop 0'); round_bf16(a, 43, 47); a('v_rcp_f32 v43, v43'); round_bf16(a, 46, 47)
        for i in range(2):
            for k in range(4):
                e0, e1 = 16+8*i+2*k, 17+8*i+2*k
                a(f'v_sub_f32 v41, v{e0}, v46'); a(f'v_sub_f32 v42, v{e1}, v46')
                a('v_cvt_pk_bf16_f32 v40, v41, v42'); a('v_lshlrev_b32 v41, 16, v40'); a('v_and_b32 v42, 0xffff0000, v40')
                a('v_mul_f32 v41, v41, v43'); a('v_mul_f32 v42, v42, v43')
                a('v_cvt_pk_bf16_f32 v40, v41, v42'); a('v_lshlrev_b32 v41, 16, v40'); a('v_and_b32 v42, 0xffff0000, v40')
                a(f'v_mul_f32 v41, v41, v{TB+16+8*i+2*k}'); a(f'v_mul_f32 v42, v42, v{TB+16+8*i+2*k+1}')
                a('v_cvt_pk_bf16_f32 v40, v41, v42'); a('v_lshlrev_b32 v41, 16, v40'); a('v_and_b32 v42, 0xffff0000, v40')
                a(f'v_add_f32 v41, v41, v{TB+32+8*i+2*k}'); a(f'v_add_f32 v42, v42, v{TB+32+8*i+2*k+1}')
                a(f'v_cvt_pk_bf16_f32 v{48+4*i+k}, v41, v42')
        a.vmem('buffer_store_dwordx4 v[48:51], v6, s[76:79], s82 offen sc1', 'st'); a.vmem('buffer_store_dwordx4 v[52:55], v6, s[76:79], s83 offen sc1', 'st')
        a('s_lshr_b32 s70, s2, 4'); a(f's_add_u32 s70, s70, {C_CH}'); a('s_lshl_b32 s70, s70, 8')
        self.signal([70], vm_allow=0); a.vm = []
        self.stamp()

    def phase_d(self):
        a = self.a
        LOFF = 209
        a.srd(20, 4, WS_H2, 2097152); a.srd(28, 4, WS_ACT, 64*112*1024)
        a(f's_add_u32 s70, s36, {C_CH}'); a('s_lshl_b32 s70, s70, 8')
        self.wait([(70, 1, 16)])
        self.stamp()
        def x_load_ops(s):
            return ([f's_add_u32 s38, s45, {(s//4)*4096}'],
                    f'buffer_load_dwordx4 v[{4*s}:{4*s+3}], v{LOFF}, s[20:23], s38 offen offset:{(s%4)*1024} {M["ldsc"]}')
        self.shared_gemm(32, 8, 2, 4, self.d_w_dma_ops, x_load_ops, 32, 0, [128, 160, 192], [200, 204], lambda g: ar(16*g, 16), pre_x=M['d_prex'], nv=3, npre=4, LA=M['la'])
        self.stamp()
        a.nop(16)
        a(f's_mul_i32 s45, s39, {112*1024}'); a('s_lshl_b32 s38, s37, 13'); a('s_add_u32 s45, s45, s38')
        a(f's_mov_b32 s40, {f2u(-LOG2E)}')
        cnt = 0
        for mt in range(4):
            for t in range(2):
                b = 32*(cnt % 2); cnt += 1
                G = b; U = b+8; E = b+16; O_ = b+24
                for k in range(8): a(f'v_accvgpr_read_b32 v{G+k}, a{16*mt+8*t+k}')
                for k in range(8): a(f'v_accvgpr_read_b32 v{U+k}, a{16*(4+mt)+8*t+k}')
                for k in range(8): a(f'v_mul_f32 v{E+k}, s40, v{G+k}')
                for k in range(8): a(f'v_exp_f32 v{E+k}, v{E+k}')
                for k in range(8): a(f'v_mul_f32 v{U+k}, v{G+k}, v{U+k}')
                for k in range(8): a(f'v_add_f32 v{E+k}, 1.0, v{E+k}')
                for k in range(8): a(f'v_rcp_f32 v{E+k}, v{E+k}')
                a('s_nop 0')
                for k in range(8): a(f'v_mul_f32 v{U+k}, v{U+k}, v{E+k}')
                for k in range(4): a(f'v_cvt_pk_bf16_f32 v{O_+k}, v{U+2*k}, v{U+2*k+1}')
                ks = 2*mt+t
                a(f's_add_u32 s38, s45, {(ks//4)*4096}')
                a.vmem(f'buffer_store_dwordx4 v[{O_}:{O_+3}], v{LOFF}, s[28:31], s38 offen offset:{(ks%4)*1024} sc1', 'ast')
        a(f's_add_u32 s74, s36, {C_CA}'); a('s_lshl_b32 s74, s74, 8')

    def e_setup(self):
        a = self.a; L = LANE
        NKT = 112; NK = 28
        e = self.e = dict(S_RB=36, S_CB=37, S_T=38, S_AO=39, S_B0=40, S_B1=41, S_M0=42, SRD_W=12, SRD_B=16, SRD_MP=20, SRD_X=24, SRD_O=28,
                          AF=[192, 200], AAD=208, VOA=210, VOB=211, LOFF=212, NK=NK, NKT=NKT)
        a(f's_load_dwordx2 s[6:7], s[0:1], {KA_WD}'); a(f's_load_dwordx2 s[8:9], s[0:1], {KA_OUT}')
        a('s_and_b32 s33, s2, 7'); a('s_lshr_b32 s34, s2, 3'); a('s_and_b32 s36, s34, 3'); a('s_lshl_b32 s33, s33, 2'); a('s_add_u32 s36, s36, s33'); a('s_lshr_b32 s37, s34, 2')
        a(f'v_lshrrev_b32 v2, 3, v{L}'); a('v_lshlrev_b32 v2, 10, v2'); a(f'v_bfe_u32 v3, v{L}, 4, 1'); a('v_lshlrev_b32 v3, 2, v3')
        a(f'v_and_b32 v4, 7, v{L}'); a('v_xor_b32 v3, v3, v4'); a('v_lshlrev_b32 v3, 4, v3')
        a('v_add_u32 v210, v2, v3'); a('v_add_u32 v211, 7168, v210'); a(f'v_lshlrev_b32 v212, 4, v{L}')
        a(f'v_lshrrev_b32 v2, 5, v{L}'); a(f'v_bfe_u32 v3, v{L}, 4, 1'); a(f'v_bfe_u32 v4, v{L}, 2, 2'); a(f'v_and_b32 v5, 3, v{L}')
        a('v_lshlrev_b32 v6, 2, v2'); a('v_add_u32 v6, v6, v4'); a('v_lshlrev_b32 v6, 7, v6'); a('v_and_b32 v7, 1, v5'); a('v_lshlrev_b32 v7, 3, v7'); a('v_add_u32 v6, v6, v7')
        a('v_lshrrev_b32 v7, 1, v5'); a('v_lshlrev_b32 v8, 1, v3'); a('v_add_u32 v7, v7, v8'); a('v_lshrrev_b32 v8, 1, v4')
        a(f's_lshl_b32 s42, s{S_W}, 15')
        for mt in range(2):
            a(f'v_xor_b32 v9, {mt}, v8'); a('v_lshlrev_b32 v9, 2, v9'); a('v_add_u32 v9, v9, v7'); a('v_lshlrev_b32 v9, 4, v9')
            a(f'v_add_u32 v{208+mt}, v6, v9'); a(f'v_add_u32 v{208+mt}, s42, v{208+mt}')
        a(f's_mul_i32 s39, s{S_W}, {NK*16384}'); a('s_lshl_b32 s38, s37, 7'); a('s_add_u32 s39, s39, s38')
        a(f's_mul_i32 s40, s36, {2*NKT*1024}'); a(f's_mul_i32 s38, s{S_W}, {NK*1024}'); a('s_add_u32 s40, s40, s38'); a(f's_add_u32 s41, s40, {NKT*1024}')
        a('s_waitcnt lgkmcnt(0)')
        a.srd(12, 6, 0, NKT*16*1024); a.srd(16, 4, WS_ACT, 64*NKT*1024); a.srd(20, 4, WS_M2, 65536); a.srd(24, 4, WS_X1, 2097152); a.srd(28, 8, 0, 2097152)
    def e_a_ops(self, k):
        slot = k % 16
        return [([f's_add_u32 m0, s42, {slot*2048}', f's_add_u32 s38, s39, {k*16384}'], f'buffer_load_dwordx4 v210, s[12:15], s38 offen lds'),
                ([], f'buffer_load_dwordx4 v211, s[12:15], s38 offen offset:1024 lds')]
    def phase_e(self):
        a = self.a; L = LANE
        NK = 28; DEPTH = M['e_depth']; AF = [192, 200]; ACC = 128; LOFF = 212; GT = SCR
        def b_ops(k):
            r = 8*(k % 16)
            return [([f's_add_u32 s43, s40, {(k//4)*4096}'], f'buffer_load_dwordx4 v[{r}:{r+3}], v{LOFF}, s[16:19], s43 offen offset:{(k%4)*1024} {M["ldsc"]}'),
                    ([f's_add_u32 s43, s41, {(k//4)*4096}'], f'buffer_load_dwordx4 v[{r+4}:{r+7}], v{LOFF}, s[16:19], s43 offen offset:{(k%4)*1024} {M["ldsc"]}')]
        def emit(o, tag):
            for x in o[0]: a(x)
            a.vmem(o[1], tag)
        for k in range(DEPTH):
            for o in b_ops(k): emit(o, ('B', k))
        def aread_ops(k):
            slot = k % 16
            return [f'ds_read_b64_tr_b16 {vr(AF[k&1] + mt*4 + 2*u,2)}, v{208+mt} offset:{slot*2048 + u*1024}' for mt in range(2) for u in range(2)]
        a.wait_vm(('A', 0))
        for op in aread_ops(0): a.lds(op, ('Af', 0))
        NPRE = M['e_prea']
        for k in range(NK):
            a.wait_vm(('B', k)) if k == 0 else None
            if k+1 < NK: a.wait_vm([('B', k+1), ('A', k+1)])
            a.wait_lg(('Af', k))
            r = 8*(k % 16)
            ar_ = aread_ops(k+1) if k+1 < NK else []
            gs = []
            if NPRE == 16:
                if k >= 2 and k+14 < NK: gs += [(o, ('A', k+14)) for o in self.e_a_ops(k+14)]
            elif k+NPRE < NK: gs += [(o, ('A', k+NPRE)) for o in self.e_a_ops(k+NPRE)]
            if k+DEPTH < NK: gs += [(o, ('B', k+DEPTH)) for o in b_ops(k+DEPTH)]
            i = 0
            for mt in range(2):
                for nt in range(2):
                    d = vr(ACC+(mt*2+nt)*16, 16)
                    it = gs[i] if i < len(gs) else None
                    if it:
                        for x in it[0][0]: a(x)
                    a(mfma(d, vr(AF[k&1]+mt*4,4), vr(r+4*nt,4), '0' if k == 0 else d))
                    if it: a.vmem(it[0][1], it[1])
                    if i < 2:
                        for op in ar_[2*i:2*i+2]: a.lds(op, ('Af', k+1))
                    i += 1
        self.stamp()
        a(f's_lshr_b32 s46, s{S_W}, 1'); a(f's_and_b32 s47, s{S_W}, 1')
        a('s_lshl_b32 s48, s36, 1'); a('s_add_u32 s48, s48, s47')
        a('s_lshl_b32 s49, s37, 2'); a('s_lshl_b32 s50, s46, 1'); a('s_add_u32 s49, s49, s50')
        a('s_lshl_b32 s50, s48, 5'); a('s_add_u32 s50, s50, s49'); a('s_lshl_b32 s50, s50, 10')
        a(f'v_and_b32 v2, 31, v{L}'); a('v_lshlrev_b32 v2, 10, v2'); a(f'v_lshrrev_b32 v3, 5, v{L}'); a('v_lshlrev_b32 v4, 4, v3'); a('v_add_u32 v2, v2, v4')
        a('s_lshl_b32 s51, s48, 15'); a('s_lshl_b32 s33, s49, 5'); a('s_add_u32 s51, s51, s33')
        for t in range(2):
            a(f'buffer_load_dwordx4 v[{8+4*t}:{11+4*t}], v{LOFF}, s[24:27], s50 offen offset:{1024*t} sc1')
        a.nop(12)
        a('s_waitcnt lgkmcnt(0)'); a('s_barrier')
        a(f's_lshl_b32 s33, s{S_W}, 14'); a(f'v_add_u32 v5, s33, v{LOFF}')
        for tile in range(4):
            for r4 in range(4):
                r = ACC + tile*16 + r4*4
                a(f'ds_write_b128 v5, v[{r}:{r+3}] offset:{(tile*4+r4)*1024}')
        a('s_waitcnt lgkmcnt(0)'); a('s_barrier')
        a(f's_lshl_b32 s33, s{S_W}, 12'); a(f'v_add_u32 v5, s33, v{LOFF}')
        for wv in range(4):
            for r4 in range(4):
                r = 32 + wv*16 + r4*4
                a(f'ds_read_b128 v[{r}:{r+3}], v5 offset:{wv*16384 + r4*1024}')
        a('v_lshlrev_b32 v6, 4, v3'); a('s_lshl_b32 s33, s46, 7'); a('s_lshl_b32 s34, s37, 8'); a('s_add_u32 s33, s33, s34'); a(f's_add_u32 s33, s33, {T2B+6144}'); a('v_add_u32 v6, s33, v6')
        for g in range(4): a(f'ds_read_b128 v[{16+4*g}:{19+4*g}], v6 offset:{32*g}')
        a('s_waitcnt lgkmcnt(0)')
        for r in range(16):
            a(f'v_add_f32 v{32+r}, v{32+r}, v{48+r}'); a(f'v_add_f32 v{64+r}, v{64+r}, v{80+r}')
        for r in range(16): a(f'v_add_f32 v{32+r}, v{32+r}, v{64+r}')
        for r in range(0, 16, 2):
            a(f'v_cvt_pk_bf16_f32 v100, v{32+r}, v{33+r}'); a(f'v_lshlrev_b32 v{32+r}, 16, v100'); a(f'v_and_b32 v{33+r}, 0xffff0000, v100')
            a(f'v_mul_f32 v{32+r}, v{32+r}, v{16+r}'); a(f'v_mul_f32 v{33+r}, v{33+r}, v{17+r}')
            a(f'v_cvt_pk_bf16_f32 v100, v{32+r}, v{33+r}'); a(f'v_lshlrev_b32 v{32+r}, 16, v100'); a(f'v_and_b32 v{33+r}, 0xffff0000, v100')
        a('s_waitcnt vmcnt(0)')
        for k in range(8):
            a(f'v_lshlrev_b32 v101, 16, v{8+k}'); a(f'v_and_b32 v102, 0xffff0000, v{8+k}')
            a(f'v_add_f32 v{32+2*k}, v{32+2*k}, v101'); a(f'v_add_f32 v{33+2*k}, v{33+2*k}, v102')
            a(f'v_cvt_pk_bf16_f32 v{104+k}, v{32+2*k}, v{33+2*k}')
        a('s_nop 1')
        for gp in range(2):
            b = 104+4*gp
            a(f'v_permlane32_swap_b32 v{b}, v{b+2}'); a(f'v_permlane32_swap_b32 v{b+1}, v{b+3}')
        a('s_nop 1')
        for gp in range(2):
            b = 104+4*gp
            a(f'buffer_store_dwordx4 v[{b}:{b+3}], v2, s[28:31], s51 offen offset:{32*gp}')

    def build(self):
        a = self.a
        a.raw(kernel_head(KN))
        a('s_cmp_ge_u32 s2, 256'); a('s_cbranch_scc1 K_END')
        self.front()
        self.attention()
        self.phase_c()
        self.stamp()
        a('s_cmp_ge_u32 s2, 224'); a('s_cbranch_scc1 NO_DS')
        self.d_setup()
        a.label('NO_DS')
        self.phase_r()
        a('s_cmp_ge_u32 s2, 224'); a('s_cbranch_scc1 E_PRE')
        a(f'v_lshlrev_b32 v209, 4, v{LANE}')
        self.phase_d()
        a.label('E_PRE')
        self.e_setup()
        a('s_waitcnt lgkmcnt(0)'); a('s_barrier')
        def pre(track):
            for k in range(M['e_prea']):
                for o in self.e_a_ops(k):
                    for x in o[0]: a(x)
                    if track: a.vmem(o[1], ('A', k))
                    else: a(o[1])
        a('s_lshr_b32 s70, s36, 1'); a(f's_add_u32 s70, s70, {C_CA}'); a('s_lshl_b32 s70, s70, 8')
        a(f's_mov_b32 s71, {103*256}'); a('s_cmp_ge_u32 s2, 224'); a('s_cselect_b32 s74, s71, s74')
        self.stamp()
        self.handoff(74, [(70, 1, 14)], pre=pre, npre=2*M['e_prea'])
        self.stamp()
        self.phase_e()
        if M['stamp']:
            a('s_waitcnt vmcnt(0)'); self.stamp()
            a.srd(44, 4, WS_STAMP, 262144)
            a(f'v_lshlrev_b32 v0, 2, v{LANE}'); a('s_lshl_b32 s48, s2, 9'); a(f's_lshl_b32 s49, s{S_W}, 7'); a('s_add_u32 s48, s48, s49')
            a('s_mov_b64 exec, 0xffffffff')
            a(f'buffer_store_dword v{STV}, v0, s[44:47], s48 offen')
            a('s_add_u32 s48, s48, 131072'); a('buffer_store_dword v254, v0, s[44:47], s48 offen')
        a('s_waitcnt vmcnt(0)')
        a.label('K_END'); a('s_endpgm')
        for st, bk, p in self.stubs:
            a.label(st); a(f's_call_b64 s[{S_RET}:{S_RET+1}], RARE_{p}'); a(f's_branch {bk}')
        gen_rare(a, 0); gen_rare(a, 1)
        return a.text()

def make(path, **kw):
    M.update({k: v for k, v in kw.items() if k in M or k.startswith('c_')})
    B.CFG.update({k: v for k, v in kw.items() if k in B.CFG})
    m = Mega(); text = m.build()
    head = open('adaLN_cond__mha_block_cached__swiglu_ffn__prompt.s.ref').read().split('; Override launch')[0]
    s = head + f'; @launch grid=(256,1,1) block=(256,1,1) lds={M["lds"]}\n.amdgcn_target "amdgcn-amd-amdhsa--gfx950"\n' + text
    s += '.section .rodata,"a"\n' + kernel_desc(KN, 512, 102, 256)
    open(path, 'w').write(s)
    return m.nst
if __name__ == '__main__':
    import sys
    kw = {}
    for kv in sys.argv[2:]:
        k, v = kv.split('=', 1); kw[k] = eval(v)
    print('stamps', make(sys.argv[1], **kw))
```

```python
class Asm:
    def __init__(self):
        self.lines = []
        self.vm = []
        self.lg = []
        self.uid = 0
        self.fake = 0
    def __call__(self, s):
        for ln in s.strip('\n').split('\n'):
            ln = ln.strip()
            if ln: self.lines.append('  ' + ln)
    def label(self, l): self.lines.append(l + ':')
    def c(self, s): self.lines.append('  ; ' + s)
    def raw(self, s): self.lines.append(s)
    def newlabel(self, p='L'):
        self.uid += 1
        return f'{p}_{self.uid}'
    def vmem(self, s, tag=None):
        if len(self.vm) >= 62:
            self('s_waitcnt vmcnt(56)'); self.vm = self.vm[len(self.vm)-56:]
        self(s); self.vm.append(tag)
    def lds(self, s, tag=None):
        self(s); self.lg.append(tag)
    def _cnt(self, q, tags):
        if not isinstance(tags, (list, set)): tags = [tags]
        idx = -1
        for i, t in enumerate(q):
            if t in tags: idx = i
        return idx
    def wait_vm(self, tags):
        i = self._cnt(self.vm, tags)
        if i < 0: return
        n = len(self.vm) - 1 - i
        if getattr(self, 'fake', 0):
            l1 = self.newlabel('FW'); l2 = self.newlabel('FW')
            self('s_cmp_eq_u32 s3, 0'); self(f's_cbranch_scc1 {l1}')
            self(f's_waitcnt vmcnt({min(n + self.fake - 1, 63)})'); self(f's_branch {l2}')
            self.label(l1); self(f's_waitcnt vmcnt({min(n,63)})'); self.label(l2)
            self.vm = self.vm[i+1:]
            return
        self(f's_waitcnt vmcnt({min(n,63)})')
        self.vm = self.vm[i+1:] if n <= 63 else self.vm[len(self.vm)-63:]
    def wait_lg(self, tags):
        i = self._cnt(self.lg, tags)
        if i < 0: return
        n = len(self.lg) - 1 - i
        self(f's_waitcnt lgkmcnt({min(n,15)})')
        self.lg = self.lg[i+1:] if n <= 15 else self.lg[len(self.lg)-15:]
    def wait_all(self):
        self('s_waitcnt vmcnt(0) lgkmcnt(0)'); self.vm = []; self.lg = []
    def wait_vm0(self):
        self('s_waitcnt vmcnt(0)'); self.vm = []
    def wait_lg0(self):
        self('s_waitcnt lgkmcnt(0)'); self.lg = []
    def nop(self, n):
        while n > 0:
            k = min(n, 16); self(f's_nop {k-1}'); n -= k
    def srd(self, d, ptr, off, size):
        if off == 0:
            self(f's_mov_b32 s{d}, s{ptr}'); self(f's_mov_b32 s{d+1}, s{ptr+1}')
        elif isinstance(off, int):
            self(f's_add_u32 s{d}, s{ptr}, {off}'); self(f's_addc_u32 s{d+1}, s{ptr+1}, 0')
        else:
            self(f's_add_u32 s{d}, s{ptr}, {off}'); self(f's_addc_u32 s{d+1}, s{ptr+1}, 0')
        self(f's_mov_b32 s{d+2}, {size}'); self(f's_mov_b32 s{d+3}, 0x00020000')
    def text(self): return '\n'.join(self.lines) + '\n'

def vr(a, n=1): return f'v{a}' if n == 1 else f'v[{a}:{a+n-1}]'
def ar(a, n=1): return f'a{a}' if n == 1 else f'a[{a}:{a+n-1}]'
def sr(a, n=1): return f's{a}' if n == 1 else f's[{a}:{a+n-1}]'

def kernel_desc(name, vgpr, sgpr, accum):
    return f'''.p2align 6
.amdhsa_kernel {name}
  .amdhsa_next_free_vgpr {vgpr}
  .amdhsa_next_free_sgpr {sgpr}
  .amdhsa_accum_offset {accum}
  .amdhsa_group_segment_fixed_size 0
  .amdhsa_kernarg_size 112
  .amdhsa_user_sgpr_count 2
  .amdhsa_user_sgpr_kernarg_segment_ptr 1
  .amdhsa_system_sgpr_workgroup_id_x 1
.end_amdhsa_kernel
'''

def kernel_head(name):
    return f'''.text
.globl {name}
.p2align 8
.type {name},@function
{name}:
'''
```

```python
from asmlib import *
import gen
from gen import f2u, round_bf16, xhalf_sum, wave_allreduce_add, LOG2E, KA_X, KA_K, KA_V, KA_WQ, KA_WO, KA_WG, KA_WU, KA_WD, KA_C, KA_WMOD, KA_OUT, KA_DBG, KA_WS
import gen_b as B
from gen_b import mfma, S, NEGM, P, T, KAD, VAD, VOK, VOV, LT, LR, LANE, TMP, OA, QF, KF, VF, k_read, v_read, gen_iter, gen_rare
from gen_b import S_W, S_H, S_QB, S_RT, S_KOFF, S_VOFF, S_M0, S_CNT, S_T, S_THR, S_RET, S_PF, S_PFM, SRD_K, SRD_V, SRD_WQ, SRD_XN, SRD_O, SRD_MP, VBASE, OFFSET, THR
KN = 'adaLN_cond__mha_block_cached__swiglu_ffn__prompt_kernel'

WS_M1 = 0x0; WS_XN = 0x10000; WS_M2 = 0x220000; WS_SYNC = 0x300000
WS_O = 0x400000; WS_X1 = 0x1400000; WS_H2 = 0x1600000; WS_ACT = 0x1800000; WS_STAMP = 0x2000000; WS_P = 0x3000000
C_FG, C_M2, C_CO, C_CP, C_CH, C_CA, C_FG2 = 0, 8, 16, 48, 64, 80, 96
SCR = 131072
GSBASE = SCR + 24576
T2B = SCR + 8192
TID = 255; STV = 253
SRD_SY = 60
M = dict(stamp=False, lds=147456, e_prea=16, kvpf=True, kv_from=0, ldsc='sc1', w_early=16, la=2, tr_cap=3, c_prew=8, c_nv=2, c_prex=12, d_prex=12, e_depth=10, pre_x=10, qp_slots=(0, 2, 4, 6), spin=200000)

def allreduce_multi(a, xs, ts):
    pad = max(0, 2 - (len(xs)-1))
    for r in (8, 4, 2, 1):
        if pad: a(f's_nop {pad-1}')
        for x in xs: a(f'v_add_f32_dpp v{x}, v{x}, v{x} row_ror:{r} row_mask:0xf bank_mask:0xf')
    for op in ('v_permlane16_swap_b32', 'v_permlane32_swap_b32'):
        for x, t in zip(xs, ts): a(f'v_mov_b32 v{t}, v{x}')
        if pad: a(f's_nop {pad}')
        for x, t in zip(xs, ts): a(f'{op} v{t}, v{x}')
        a('s_nop 1')
        for x, t in zip(xs, ts): a(f'v_add_f32 v{x}, v{x}, v{t}')

class Mega:
    def __init__(self):
        self.a = Asm(); self.nst = 0
    def stamp(self):
        a = self.a
        if M['stamp']:
            a('s_memrealtime s[72:73]'); a('s_memtime s[100:101]'); a('s_waitcnt lgkmcnt(0)')
            a(f'v_writelane_b32 v{STV}, s72, {self.nst}'); a(f'v_writelane_b32 v254, s100, {self.nst}'); self.nst += 1
    def signal(self, idx_list, vm_allow=0):
        a = self.a
        a(f's_waitcnt vmcnt({vm_allow})'); a('s_barrier')
        l = a.newlabel('SIG')
        a(f's_cmp_lg_u32 s{S_W}, 0'); a(f's_cbranch_scc1 {l}')
        a('s_mov_b64 exec, 1')
        a('v_mov_b32 v251, 1')
        for s_ in idx_list:
            a(f'v_mov_b32 v252, s{s_}')
            a(f'buffer_atomic_add v251, v252, s[{SRD_SY}:{SRD_SY+3}], 0 offen sc1')
        a('s_mov_b64 exec, -1')
        a.label(l)
    def wait(self, specs):
        a = self.a
        l = a.newlabel('WDONE')
        a(f's_cmp_lg_u32 s{S_W}, 0'); a(f's_cbranch_scc1 {l}')
        for so, nl, target in specs:
            lp = a.newlabel('POLL'); ok = a.newlabel('POK')
            a(f's_mov_b64 exec, {(1 << nl)-1}')
            a(f'v_and_b32 v252, 63, v{TID}'); a('v_lshlrev_b32 v252, 8, v252'); a(f'v_add_u32 v252, s{so}, v252')
            a('s_mov_b32 s68, 0')
            a.label(lp)
            a(f'buffer_load_dword v251, v252, s[{SRD_SY}:{SRD_SY+3}], 0 offen sc1')
            a('s_waitcnt vmcnt(0)')
            a(f'v_cmp_le_u32 vcc, {target}, v251')
            a('s_add_u32 s68, s68, 1')
            a(f's_cmp_eq_u64 vcc, exec'); a(f's_cbranch_scc1 {ok}')
            a(f's_cmp_gt_u32 s68, {M["spin"]}'); a(f's_cbranch_scc1 {ok}')
            a('s_sleep 1'); a(f's_branch {lp}')
            a.label(ok)
        a('s_mov_b64 exec, -1')
        a.label(l)
        a('s_barrier')

    def wait_front(self, so):
        a = self.a
        l = a.newlabel('WDONE'); lp = a.newlabel('POLL'); ok = a.newlabel('POK')
        a(f's_cmp_lg_u32 s{S_W}, 0'); a(f's_cbranch_scc1 {l}')
        a('s_mov_b64 exec, 0x1ff')
        a(f'v_and_b32 v252, 63, v{TID}'); a(f'v_add_u32 v252, {C_M2-1}, v252'); a('v_lshlrev_b32 v252, 8, v252')
        a(f'v_mov_b32 v251, s{so}'); a(f'v_writelane_b32 v252, s{so}, 0')
        a('s_mov_b32 s68, 0')
        a.label(lp)
        a(f'buffer_load_dword v251, v252, s[{SRD_SY}:{SRD_SY+3}], 0 offen sc1')
        a('s_waitcnt vmcnt(0)')
        a('v_cmp_le_u32 vcc, 32, v251')
        a('s_add_u32 s68, s68, 1')
        a('s_cmp_eq_u64 vcc, exec'); a(f's_cbranch_scc1 {ok}')
        a(f's_cmp_gt_u32 s68, {M["spin"]}'); a(f's_cbranch_scc1 {ok}')
        a('s_sleep 1'); a(f's_branch {lp}')
        a.label(ok)
        a('s_mov_b64 exec, -1')
        a.label(l)
        a('s_barrier')

    def handoff(self, sig, specs, pre=None, npre=0, skip_cond=None, defer=False):
        a = self.a
        a('s_waitcnt vmcnt(0)'); a('s_barrier'); a.vm = []
        l = a.newlabel('HW'); lo = a.newlabel('HO')
        a(f's_cmp_lg_u32 s{S_W}, 0'); a(f's_cbranch_scc1 {lo}')
        if sig is not None:
            a('s_mov_b64 exec, 1'); a('v_mov_b32 v251, 1'); a(f'v_mov_b32 v252, s{sig}')
            a(f'buffer_atomic_add v251, v252, s[{SRD_SY}:{SRD_SY+3}], 0 offen sc1')
        self.stamp_w0()
        for sp in specs:
            lp = a.newlabel('POLL'); ok = a.newlabel('POK')
            if sp[0] == 'multi':
                a('s_mov_b64 exec, 0x1ff')
                a(f'v_and_b32 v252, 63, v{TID}'); a(f'v_add_u32 v252, {C_M2-1}, v252'); a('v_lshlrev_b32 v252, 8, v252'); a(f'v_writelane_b32 v252, s{sp[1]}, 0')
                a('v_mov_b32 v250, 32'); a(f's_mov_b32 s69, {sp[2]}'); a('s_nop 0'); a('v_writelane_b32 v250, s69, 0')
                tgt = 'v250'
            else:
                a('s_mov_b64 exec, 1'); a(f'v_mov_b32 v252, s{sp[0]}'); tgt = None
            a('s_mov_b32 s68, 0')
            a.label(lp)
            a(f'buffer_load_dword v251, v252, s[{SRD_SY}:{SRD_SY+3}], 0 offen sc1')
            a('s_waitcnt vmcnt(0)')
            a(f'v_cmp_le_u32 vcc, {tgt if tgt else sp[2]}, v251')
            a('s_add_u32 s68, s68, 1')
            a('s_cmp_eq_u64 vcc, exec'); a(f's_cbranch_scc1 {ok}')
            a(f's_cmp_gt_u32 s68, {M["spin"]}'); a(f's_cbranch_scc1 {ok}')
            a('s_sleep 1'); a(f's_branch {lp}')
            a.label(ok)
        a('s_mov_b64 exec, -1')
        a(f's_branch {l}')
        a.label(lo)
        if pre:
            if skip_cond: a(skip_cond); a(f's_cbranch_scc1 {l}')
            pre(True)
        a.label(l)
        if specs: a('s_barrier')
        def late():
            if pre:
                l2 = a.newlabel('HL')
                a(f's_cmp_lg_u32 s{S_W}, 0'); a(f's_cbranch_scc1 {l2}')
                if skip_cond: a(skip_cond); a(f's_cbranch_scc1 {l2}')
                pre(False)
                a.label(l2)
        if defer: return late
        late()
    def stamp_w0(self):
        pass

    def front(self):
        a = self.a; L = LANE
        a(f's_load_dwordx2 s[4:5], s[0:1], {KA_WS}')
        a(f's_load_dwordx2 s[6:7], s[0:1], {KA_C}'); a(f's_load_dwordx2 s[8:9], s[0:1], {KA_WMOD}'); a(f's_load_dwordx2 s[10:11], s[0:1], {KA_X}')
        a(f's_load_dwordx2 s[74:75], s[0:1], {KA_WQ}'); a(f's_load_dwordx2 s[76:77], s[0:1], {KA_DBG}')
        a(f's_load_dwordx2 s[78:79], s[0:1], {KA_K}'); a(f's_load_dwordx2 s[90:91], s[0:1], {KA_V}')
        a(f'v_mov_b32 v{TID}, v0')
        a('v_lshrrev_b32 v1, 6, v0'); a(f'v_and_b32 v{LANE}, 63, v0'); a('s_nop 0'); a(f'v_readfirstlane_b32 s{S_W}, v1')
        if M['stamp']: a(f'v_mov_b32 v{STV}, 0'); a('v_mov_b32 v254, 0')
        a(f's_and_b32 s{S_H}, s2, 31'); a(f's_lshr_b32 s{S_QB}, s2, 5')
        a(f'v_lshlrev_b32 v3, 4, v{LANE}')
        a(f'v_and_b32 v4, 3, v{TID}'); a('v_lshlrev_b32 v4, 4, v4'); a(f'v_lshrrev_b32 v5, 2, v{TID}')
        a('v_mul_u32_u24 v6, 49152, v5'); a('v_add_u32 v6, v6, v4'); a('v_lshlrev_b32 v7, 4, v5')
        a(f's_and_b32 s82, s{S_H}, 7'); a('s_lshl_b32 s82, s82, 2'); a(f's_lshr_b32 s83, s{S_H}, 3'); a('s_add_u32 s82, s82, s83')
        a('s_and_b32 s83, s2, 7'); a('s_lshl_b32 s83, s83, 5'); a('s_lshr_b32 s85, s2, 3'); a('s_add_u32 s83, s83, s85')
        a('s_lshl_b32 s84, s82, 6')
        a(f'v_mul_u32_u24 v67, 6144, v{TID}'); a('s_lshl_b32 s87, s83, 4'); a('s_add_u32 s87, s87, 2048'); a(f'v_lshlrev_b32 v68, 1, v{TID}')
        a('s_lshl_b32 s80, s2, 3'); a(f's_lshl_b32 s81, s{S_W}, 1'); a('s_add_u32 s80, s80, s81'); a('s_lshl_b32 s80, s80, 10')
        a('s_waitcnt lgkmcnt(0)')
        self.stamp()
        a.srd(12, 6, 0, 1024); a.srd(16, 8, 0, 3145728); a.srd(28, 10, 0, 2097152)
        a.vmem('buffer_load_dwordx4 v[16:19], v7, s[12:15], 0 offen', 'c1')
        for i in range(8):
            a(f's_add_u32 s86, s84, {i*6144}'); a.vmem(f'buffer_load_dwordx4 v[{20+4*i}:{23+4*i}], v6, s[16:19], s86 offen', 'w1')
        a.vmem('buffer_load_dwordx4 v[8:11], v3, s[28:31], s80 offen', 'x'); a.vmem('buffer_load_dwordx4 v[12:15], v3, s[28:31], s80 offen offset:1024', 'x')
        a.vmem('buffer_load_ushort v52, v68, s[12:15], 0 offen', 'c2'); a.vmem('buffer_load_ushort v53, v68, s[12:15], 0 offen offset:512', 'c2')
        for i in range(2):
            a(f's_add_u32 s86, s87, {i*256*6144}'); a.vmem(f'buffer_load_dwordx4 v[{56+4*i}:{59+4*i}], v67, s[16:19], s86 offen', 'w2')
        a.srd(SRD_WQ, 74, 0, 4194304)
        a(f's_cmp_eq_u32 s{S_W}, 0'); a('s_cbranch_scc1 F_NOW')
        a(f'v_lshrrev_b32 v70, 4, v{L}'); a(f'v_and_b32 v71, 15, v{L}'); a('v_lshlrev_b32 v72, 2, v70'); a('v_xor_b32 v72, v71, v72'); a('v_lshlrev_b32 v72, 4, v72')
        a('v_lshlrev_b32 v222, 13, v70'); a('v_add_u32 v222, v222, v72')
        a(f's_sub_u32 s89, s{S_W}, 1'); a('s_lshl_b32 s99, s89, 15'); a('s_lshl_b32 s89, s89, 10'); a(f's_lshl_b32 s{S_T}, s{S_H}, 8'); a(f's_add_u32 s99, s99, s{S_T}')
        for k in range(43):
            if k == 42:
                a(f's_cmp_eq_u32 s{S_W}, 3'); a('s_cbranch_scc1 F_NOW')
            a(f's_add_u32 m0, s89, {k*3072}'); a(f's_add_u32 s{S_T}, s99, {k*3*32768}')
            a(f'buffer_load_dwordx4 v222, s[{SRD_WQ}:{SRD_WQ+3}], s{S_T} offen lds')
        a.label('F_NOW')
        a.fake = 43
        if M['kvpf']:
            a(f's_lshl_b32 s44, s{S_H}, 19'); a(f's_lshl_b32 s45, s{S_QB}, 13'); a(f's_lshl_b32 s46, s{S_W}, 11'); a('s_add_u32 s45, s45, s46')
            a.srd(20, 78, 's44', 524288)
            a.vmem('buffer_load_dwordx4 v[148:151], v3, s[20:23], s45 offen', 'pf'); a.vmem('buffer_load_dwordx4 v[152:155], v3, s[20:23], s45 offen offset:1024', 'pf')
            a(f's_mul_i32 s45, s{S_QB}, 6144'); a(f's_mul_i32 s46, s{S_W}, 1536'); a('s_add_u32 s45, s45, s46')
            a.srd(20, 90, 's44', 524288)
            a.vmem('buffer_load_dwordx4 v[156:159], v3, s[20:23], s45 offen', 'pf'); a.vmem('buffer_load_dwordx4 v[160:163], v3, s[20:23], s45 offen offset:512', 'pf')
        a.srd(SRD_SY, 4, WS_SYNC, 28672); a.srd(64, 76, 0, 256); a.srd(SRD_XN, 4, WS_XN, 2097152); a.srd(SRD_WQ, 74, 0, 4194304)
        a.srd(SRD_MP, 4, 0, WS_M2 + 8192)
        a('s_cmp_lg_u32 s2, 0'); a('s_cbranch_scc1 F_NOZ')
        for k in range(4): a(f'v_mov_b32 v{72+k}, 0')
        a(f'v_lshlrev_b32 v76, 4, v{TID}')
        for k in range(7):
            a(f's_mov_b32 s{S_T}, {k*4096}'); a(f'buffer_store_dwordx4 v[72:75], v76, s[{SRD_SY}:{SRD_SY+3}], s{S_T} offen sc1')
        a('s_waitcnt vmcnt(0)'); a('s_barrier')
        a(f's_cmp_lg_u32 s{S_W}, 0'); a('s_cbranch_scc1 F_NOZ')
        a('s_mov_b64 exec, 1'); a('v_mov_b32 v72, 1'); a('v_mov_b32 v73, 0'); a('buffer_store_dword v72, v73, s[64:67], 0 offen sc1'); a('s_mov_b64 exec, -1')
        a.label('F_NOZ')
        def silu(vals):
            for i, r in enumerate(vals): a(f'v_mul_f32 v{124+i}, {f2u(-LOG2E)}, v{r}')
            for i, r in enumerate(vals): a(f'v_exp_f32 v{124+i}, v{124+i}')
            a('s_nop 0')
            for i, r in enumerate(vals): a(f'v_add_f32 v{124+i}, 1.0, v{124+i}')
            for i, r in enumerate(vals): a(f'v_rcp_f32 v{124+i}, v{124+i}')
            a('s_nop 0')
            for i, r in enumerate(vals): a(f'v_mul_f32 v{r}, v{r}, v{124+i}')
            for r in vals: round_bf16(a, r, 132)
        a.wait_vm('c1')
        for k in range(4):
            a(f'v_lshlrev_b32 v{100+2*k}, 16, v{16+k}'); a(f'v_and_b32 v{101+2*k}, 0xffff0000, v{16+k}')
        silu(list(range(100, 108)))
        a.wait_vm('w1')
        for i in range(8):
            for j in range(4):
                w = 20+4*i+j
                a(f'v_lshlrev_b32 v108, 16, v{w}'); a(f'v_and_b32 v109, 0xffff0000, v{w}')
                if i == 0: a(f'v_mul_f32 v{110+2*j}, v108, v100'); a(f'v_mul_f32 v{111+2*j}, v109, v100')
                else: a(f'v_fmac_f32 v{110+2*j}, v108, v{100+i}'); a(f'v_fmac_f32 v{111+2*j}, v109, v{100+i}')
        a('v_lshlrev_b32 v108, 7, v5'); a('v_lshlrev_b32 v109, 1, v4'); a('v_add_u32 v108, v108, v109'); a(f'v_add_u32 v108, {SCR}, v108')
        for j in range(4): a(f'ds_write_b64 v108, v[{110+2*j}:{111+2*j}] offset:{8*j}')
        a('s_waitcnt lgkmcnt(0)'); a('s_barrier')
        a(f's_cmp_lg_u32 s{S_W}, 0'); a('s_cbranch_scc1 F_NOT0')
        a(f'v_and_b32 v70, 31, v{L}'); a('v_lshlrev_b32 v70, 2, v70'); a(f'v_lshrrev_b32 v71, 5, v{L}'); a('v_lshlrev_b32 v71, 12, v71'); a('v_add_u32 v71, v71, v70'); a(f'v_add_u32 v71, {SCR}, v71')
        for r in range(32): a(f'ds_read_b32 v{20+r}, v71 offset:{128*r}')
        a('s_waitcnt lgkmcnt(0)')
        n = 32
        while n > 1:
            for r in range(n//2): a(f'v_add_f32 v{20+r}, v{20+r}, v{20+r+n//2}')
            n //= 2
        xhalf_sum(a, 20, 21)
        a(f's_lshl_b32 s44, s{S_QB}, 12'); a('s_lshl_b32 s45, s82, 7'); a('s_add_u32 s44, s44, s45')
        a('s_mov_b64 exec, 0xffffffff'); a(f'buffer_store_dword v20, v70, s[{SRD_MP}:{SRD_MP+3}], s44 offen sc1')
        a('s_mov_b64 exec, 1'); a('v_mov_b32 v252, 0'); a('s_mov_b32 s68, 0')
        a.label('F_ZP')
        a('buffer_load_dword v251, v252, s[64:67], 0 offen sc1'); a('s_waitcnt vmcnt(0)'); a('v_readfirstlane_b32 s69, v251')
        a('s_add_u32 s68, s68, 1'); a('s_cmp_lg_u32 s69, 0'); a('s_cbranch_scc1 F_ZD')
        a(f's_cmp_gt_u32 s68, {M["spin"]}'); a('s_cbranch_scc1 F_ZD'); a('s_sleep 1'); a('s_branch F_ZP')
        a.label('F_ZD')
        a(f's_lshl_b32 s70, s{S_QB}, 8'); a('v_mov_b32 v251, 1'); a('v_mov_b32 v252, s70')
        a(f'buffer_atomic_add v251, v252, s[{SRD_SY}:{SRD_SY+3}], 0 offen sc1')
        a('s_mov_b64 exec, -1')
        a.label('F_NOT0')
        self.stamp()
        a.wait_vm('x')
        for r in range(2):
            src = 8+4*r; X = 100+8*r
            for k in range(4):
                a(f'v_lshlrev_b32 v{X+2*k}, 16, v{src+k}'); a(f'v_and_b32 v{X+2*k+1}, 0xffff0000, v{src+k}')
            m = 116+r
            a(f'v_add_f32 v{m}, v{X}, v{X+1}')
            for k in range(2, 8): a(f'v_add_f32 v{m}, v{m}, v{X+k}')
        allreduce_multi(a, [116, 117], [118, 119])
        for r in range(2):
            X = 100+8*r; m = 116+r; v = 120+r
            a(f'v_mul_f32 v{m}, {f2u(1/512)}, v{m}')
            a(f'v_sub_f32 v118, v{X}, v{m}'); a(f'v_mul_f32 v{v}, v118, v118')
            for k in range(1, 8):
                a(f'v_sub_f32 v118, v{X+k}, v{m}'); a(f'v_fmac_f32 v{v}, v118, v118')
        allreduce_multi(a, [120, 121], [118, 119])
        for r in range(2):
            X = 100+8*r; m = 116+r; v = 120+r
            a(f'v_mul_f32 v{v}, {f2u(1/512)}, v{v}')
            round_bf16(a, v, 118); a(f'v_add_f32 v{v}, {f2u(1e-5)}, v{v}'); round_bf16(a, v, 118)
            a(f'v_sqrt_f32 v{v}, v{v}'); a('s_nop 0'); round_bf16(a, v, 118)
            a(f'v_rcp_f32 v{v}, v{v}'); round_bf16(a, m, 118)
            for k in range(4):
                a(f'v_sub_f32 v118, v{X+2*k}, v{m}'); a(f'v_sub_f32 v119, v{X+2*k+1}, v{m}')
                a('v_cvt_pk_bf16_f32 v122, v118, v119'); a('v_lshlrev_b32 v118, 16, v122'); a('v_and_b32 v119, 0xffff0000, v122')
                a(f'v_mul_f32 v118, v118, v{v}'); a(f'v_mul_f32 v119, v119, v{v}')
                a('v_cvt_pk_bf16_f32 v122, v118, v119'); a(f'v_lshlrev_b32 v{X+2*k}, 16, v122'); a(f'v_and_b32 v{X+2*k+1}, 0xffff0000, v122')
        a.vm = []
        self.stamp()
        a.fake = 0; a.vm = []
        a(f's_lshl_b32 s70, s{S_QB}, 8')
        self.wait([(70, 1, 32)])
        self.stamp()
        a(f'v_lshlrev_b32 v70, 5, v{L}'); a(f's_lshl_b32 s44, s{S_QB}, 12')
        a.vmem(f'buffer_load_dwordx4 v[20:23], v70, s[{SRD_MP}:{SRD_MP+3}], s44 offen sc1', 'g'); a.vmem(f'buffer_load_dwordx4 v[24:27], v70, s[{SRD_MP}:{SRD_MP+3}], s44 offen offset:16 sc1', 'g')
        a.vmem(f'buffer_load_dwordx4 v[28:31], v70, s[{SRD_MP}:{SRD_MP+3}], s44 offen offset:2048 sc1', 'g'); a.vmem(f'buffer_load_dwordx4 v[32:35], v70, s[{SRD_MP}:{SRD_MP+3}], s44 offen offset:2064 sc1', 'g')
        a.wait_vm('g')
        cs = 128**-0.5 * LOG2E
        for k in range(8):
            round_bf16(a, 20+k, 36); round_bf16(a, 28+k, 36)
            a(f'v_add_f32 v{28+k}, 1.0, v{28+k}'); round_bf16(a, 28+k, 36)
        for r in range(2):
            X = 100+8*r
            for k in range(8): a(f'v_fma_f32 v{X+k}, v{X+k}, v{28+k}, v{20+k}')
            for k in range(4): a(f'v_cvt_pk_bf16_f32 v{8+4*r+k}, v{X+2*k}, v{X+2*k+1}')
        a(f'v_lshlrev_b32 v118, 7, v{L}'); a(f's_lshl_b32 s44, s{S_W}, 5'); a(f's_add_u32 s44, s44, {SCR+8192}'); a('v_add_u32 v118, s44, v118')
        a('ds_write_b128 v118, v[8:11]'); a('ds_write_b128 v118, v[12:15] offset:16')
        a('s_waitcnt lgkmcnt(0)'); a('s_barrier')
        a(f'v_lshlrev_b32 v118, 4, v{TID}'); a(f'v_add_u32 v119, {SCR+8192}, v118')
        a('ds_read_b128 v[8:11], v119'); a('ds_read_b128 v[12:15], v119 offset:4096')
        a(f'v_lshrrev_b32 v119, 3, v{TID}'); a('v_lshlrev_b32 v119, 9, v119'); a(f'v_and_b32 v120, 7, v{TID}'); a('v_lshlrev_b32 v120, 4, v120'); a('v_add_u32 v119, v119, v120')
        a('s_lshr_b32 s44, s2, 2'); a('s_lshl_b32 s44, s44, 15'); a('s_and_b32 s45, s2, 3'); a('s_lshl_b32 s45, s45, 7'); a('s_add_u32 s44, s44, s45'); a('s_add_u32 s45, s44, 16384')
        a('s_waitcnt lgkmcnt(0)')
        a(f'buffer_store_dwordx4 v[8:11], v119, s[{SRD_XN}:{SRD_XN+3}], s44 offen sc1'); a(f'buffer_store_dwordx4 v[12:15], v119, s[{SRD_XN}:{SRD_XN+3}], s45 offen sc1')
        a(f's_add_u32 s70, s{S_QB}, {C_FG2}'); a('s_lshl_b32 s70, s70, 8')
        self.signal([70], vm_allow=0); a.vm = []
        a('v_lshlrev_b32 v134, 16, v52'); a('v_lshlrev_b32 v135, 16, v53')
        silu([134, 135])
        for i in range(2):
            for j in range(4):
                w = 56+4*i+j
                a(f'v_lshlrev_b32 v136, 16, v{w}'); a(f'v_and_b32 v137, 0xffff0000, v{w}')
                if i == 0: a(f'v_mul_f32 v{140+2*j}, v136, v134'); a(f'v_mul_f32 v{141+2*j}, v137, v134')
                else: a(f'v_fmac_f32 v{140+2*j}, v136, v135'); a(f'v_fmac_f32 v{141+2*j}, v137, v135')
        a('s_nop 1'); allreduce_multi(a, list(range(140, 148)), list(range(124, 132)))
        a(f's_lshl_b32 s44, s{S_W}, 5'); a(f's_add_u32 s44, s44, {SCR+4096}'); a('v_mov_b32 v136, s44')
        a('s_mov_b64 exec, 1'); a('ds_write_b128 v136, v[140:143]'); a('ds_write_b128 v136, v[144:147] offset:16'); a('s_mov_b64 exec, -1')
        a('s_waitcnt lgkmcnt(0)'); a('s_barrier')
        a(f's_cmp_lg_u32 s{S_W}, 1'); a('s_cbranch_scc1 F_NOT1')
        a(f'v_and_b32 v70, 7, v{L}'); a('v_lshlrev_b32 v70, 2, v70'); a(f'v_add_u32 v71, {SCR+4096}, v70')
        for w in range(4): a(f'ds_read_b32 v{20+w}, v71 offset:{32*w}')
        a('s_waitcnt lgkmcnt(0)')
        a('v_add_f32 v20, v20, v21'); a('v_add_f32 v22, v22, v23'); a('v_add_f32 v20, v20, v22')
        a('s_lshl_b32 s44, s83, 5'); a(f's_add_u32 s44, s44, {WS_M2}')
        a('s_mov_b64 exec, 0xff'); a(f'buffer_store_dword v20, v70, s[{SRD_MP}:{SRD_MP+3}], s44 offen sc1')
        a('s_mov_b64 exec, 1'); a('v_mov_b32 v252, 0'); a('s_mov_b32 s68, 0')
        a.label('F_ZP1')
        a('buffer_load_dword v251, v252, s[64:67], 0 offen sc1'); a('s_waitcnt vmcnt(0)'); a('v_readfirstlane_b32 s69, v251')
        a('s_add_u32 s68, s68, 1'); a('s_cmp_lg_u32 s69, 0'); a('s_cbranch_scc1 F_ZD1')
        a(f's_cmp_gt_u32 s68, {M["spin"]}'); a('s_cbranch_scc1 F_ZD1'); a('s_sleep 1'); a('s_branch F_ZP1')
        a.label('F_ZD1')
        a('s_and_b32 s71, s2, 7'); a(f's_add_u32 s71, s71, {C_M2}'); a('s_lshl_b32 s71, s71, 8'); a('v_mov_b32 v251, 1'); a('v_mov_b32 v252, s71')
        a(f'buffer_atomic_add v251, v252, s[{SRD_SY}:{SRD_SY+3}], 0 offen sc1')
        a('s_mov_b64 exec, -1')
        a.label('F_NOT1')
        self.stamp()

    def attention(self):
        a = self.a; L = LANE
        a(f's_load_dwordx2 s[6:7], s[0:1], {KA_K}'); a(f's_load_dwordx2 s[8:9], s[0:1], {KA_V}')
        a(f's_load_dwordx2 s[56:57], s[0:1], {KA_WO}'); a(f's_load_dwordx2 s[90:91], s[0:1], {KA_WG}'); a(f's_load_dwordx2 s[92:93], s[0:1], {KA_WU}'); a(f's_load_dwordx2 s[94:95], s[0:1], {KA_WD}')
        a(f's_lshl_b32 s{S_RT}, s{S_QB}, 3'); a(f's_lshl_b32 s{S_T}, s{S_W}, 1'); a(f's_add_u32 s{S_RT}, s{S_RT}, s{S_T}')
        a(f's_lshl_b32 s{S_M0}, s{S_W}, 12'); a(f's_mov_b32 s{S_THR}, {f2u(THR)}')
        a('s_mov_b32 s58, 4194304'); a('s_mov_b32 s59, 0x00020000')
        a('s_mov_b32 s96, 1835008'); a('s_mov_b32 s97, 1835008'); a('s_mov_b32 s98, 1835008')
        a(f's_lshl_b32 s{S_PF}, s2, 12'); a(f's_lshl_b32 s{S_PFM}, s{S_W}, 10'); a(f's_add_u32 s{S_PF}, s{S_PF}, s{S_PFM}'); a(f's_add_u32 s{S_PFM}, s{S_PFM}, {SCR}')
        vg, vhf, vch, vrr, vc, vt, vu = 200, 201, 202, 203, 204, 205, 206
        a(f'v_lshrrev_b32 v{vg}, 4, v{L}'); a(f'v_lshrrev_b32 v{vhf}, 5, v{L}'); a(f'v_and_b32 v{vch}, 1, v{vg}'); a(f'v_bfe_u32 v{vrr}, v{L}, 2, 2'); a(f'v_and_b32 v{vc}, 3, v{L}')
        a(f'v_and_b32 v{vt}, 15, v{L}'); a(f'v_lshlrev_b32 v{vu}, 2, v{vg}'); a(f'v_xor_b32 v{vu}, v{vt}, v{vu}'); a(f'v_lshlrev_b32 v{vu}, 4, v{vu}')
        a(f'v_lshlrev_b32 v{VOV}, 8, v{vg}'); a(f'v_add_u32 v{VOV}, v{VOV}, v{vu}')
        for i in range(4):
            a(f'v_add_u32 v{vu}, {4*i}, v{vg}'); a(f'v_xor_b32 v{vu}, v{vt}, v{vu}'); a(f'v_lshlrev_b32 v{vu}, 4, v{vu}')
            a(f'v_lshlrev_b32 v{VOK+i}, 8, v{vg}'); a(f'v_add_u32 v{VOK+i}, v{VOK+i}, v{vu}')
        a(f'v_and_b32 v{vt}, 31, v{L}')
        for s in range(8):
            a(f'v_add_u32 v{vu}, {2*s}, v{vhf}'); a(f'v_and_b32 v{KAD+s}, 15, v{vt}'); a(f'v_xor_b32 v{vu}, v{vu}, v{KAD+s}'); a(f'v_lshlrev_b32 v{vu}, 4, v{vu}')
            a(f'v_lshlrev_b32 v{KAD+s}, 8, v{vt}'); a(f'v_add_u32 v{KAD+s}, v{KAD+s}, v{vu}')
        WAD = 246
        for dt in range(4):
            a(f'v_xor_b32 v{vt}, {dt}, v{vrr}'); a(f'v_lshlrev_b32 v{vt}, 2, v{vt}'); a(f'v_lshlrev_b32 v{vu}, 1, v{vch}'); a(f'v_add_u32 v{vt}, v{vt}, v{vu}')
            a(f'v_lshrrev_b32 v{vu}, 1, v{vc}'); a(f'v_add_u32 v{vu}, v{vt}, v{vu}'); a(f'v_lshlrev_b32 v{vu}, 4, v{vu}')
            a(f'v_and_b32 v207, 1, v{vc}'); a('v_lshlrev_b32 v207, 3, v207'); a(f'v_add_u32 v{vu}, v{vu}, v207')
            a(f'v_lshlrev_b32 v207, 2, v{vhf}'); a(f'v_add_u32 v207, v207, v{vrr}'); a('v_lshlrev_b32 v207, 8, v207'); a(f'v_add_u32 v{vu}, v{vu}, v207')
            a(f'v_add_u32 v{VAD+dt}, {VBASE}, v{vu}')
            a(f'v_and_b32 v{vu}, 1, v{vc}'); a(f'v_add_u32 v{vu}, v{vt}, v{vu}'); a(f'v_lshlrev_b32 v{vu}, 4, v{vu}')
            a(f'v_lshrrev_b32 v207, 1, v{vc}'); a('v_lshlrev_b32 v207, 3, v207'); a(f'v_add_u32 v{vu}, v{vu}, v207')
            a(f'v_lshlrev_b32 v207, 3, v{vhf}'); a(f'v_add_u32 v207, v207, v{vrr}'); a('v_lshlrev_b32 v207, 8, v207'); a(f'v_add_u32 v{WAD+dt}, v{vu}, v207')
        XOFF = 221
        a(f'v_lshlrev_b32 v{XOFF}, 4, v{L}')
        a('s_waitcnt lgkmcnt(0)')
        a(f's_lshl_b32 s{S_T}, s{S_H}, 19')
        a.srd(SRD_K, 6, f's{S_T}', 524288); a.srd(SRD_V, 8, f's{S_T}', 524288); a.srd(SRD_O, 4, WS_O, 16777216)
        a(f's_add_u32 s70, s{S_QB}, {C_FG2}'); a('s_lshl_b32 s70, s70, 8')
        self.wait([(70, 1, 32)])
        self.stamp()
        S_XO = 48
        a(f's_lshl_b32 s{S_XO}, s{S_RT}, 15'); a(f's_add_u32 s{S_XO+1}, s{S_XO}, 32768')
        SLOTS = [8*i for i in range(8)] + [192, 200, 208]
        RING = len(SLOTS)
        def x_ops(s, q):
            r = SLOTS[s % RING] + 4*q
            return ([f's_add_u32 s{S_T}, s{S_XO+q}, {(s//4)*4096}'],
                    f'buffer_load_dwordx4 v[{r}:{r+3}], v{XOFF}, s[{SRD_XN}:{SRD_XN+3}], s{S_T} offen offset:{(s%4)*1024} {M["ldsc"]}')
        def kv_ops(which, tile, i):
            base = (0 if which == 'K' else VBASE) + (tile & 3)*16384
            srd = SRD_K if which == 'K' else SRD_V
            vo = VOK+i if which == 'K' else VOV
            return ([f's_add_u32 m0, s{S_M0}, {base}', f's_add_u32 s{S_T}, s{S_M0}, {tile*16384}'],
                    f'buffer_load_dwordx4 v{vo}, s[{srd}:{srd+3}], s{S_T} offen offset:{1024*i} lds')
        def emit_item(ops, tag):
            for x in ops[0]: a(x)
            a.vmem(ops[1], tag)
        PRE_X = min(M['pre_x'], RING)
        for s in range(PRE_X):
            for q in range(2): emit_item(x_ops(s, q), ('X', s))
        LA = 2; WF = [192, 208, 224]
        def QA(q, dt): return 64 + (q*4+dt)*16
        def w_read_ops(s):
            return [f'ds_read_b64_tr_b16 {ar(WF[s % 3] + dt*4 + 2*u,2)}, v{WAD+dt} offset:{(s%16)*4096 + 1024*u}' for dt in range(4) for u in range(2)]
        for s0 in range(LA):
            for op in w_read_ops(s0): a.lds(op, ('Wf', s0))
        BARS = [7, 15, 23, 31]
        Q = []
        for s in range(PRE_X, 32):
            for q in range(2): Q.append((s-1, s-RING+1, ('X', s), x_ops(s, q)))
        for which, tile, av in (('K',0,7),('K',1,7),('K',2,15),('K',3,15),('V',0,23),('V',1,23),('V',2,31)):
            for i in range(4): Q.append((100, max(av, M['kv_from']), (which, tile), kv_ops(which, tile, i)))
        Q.sort(key=lambda x: x[0])
        def pop_q(s):
            for i, it in enumerate(Q):
                if it[1] <= s: return Q.pop(i)
            return None
        bumped = False
        for s in range(32):
            assert not any(it[2] == ('X', s) for it in Q), s
            if s in BARS: a.wait_vm(('X', s)); a.wait_lg0(); a('s_barrier')
            else: a.wait_vm(('X', s)); a.wait_lg(('Wf', s))
            if s+LA == 16:
                for dt in range(4): a(f'v_add_u32 v{WAD+dt}, 65536, v{WAD+dt}')
            wr = w_read_ops(s+LA) if s+LA < 32 else []
            x = SLOTS[s % RING]
            mfs = [mfma(vr(QA(q,dt),16), ar(WF[s % 3]+dt*4,4), vr(x+4*q,4), '0' if s == 0 else vr(QA(q,dt),16)) for dt in range(4) for q in range(2)]
            ri = 0
            for g in range(8):
                it = pop_q(s) if g in M['qp_slots'] else None
                if it:
                    for t_ in it[3][0]: a(t_)
                a(mfs[g])
                if it: a.vmem(it[3][1], it[2])
                else:
                    for op in wr[ri:ri+2]: a.lds(op, ('Wf', s+LA))
                    ri += 2
            for op in wr[ri:]: a.lds(op, ('Wf', s+LA))
        while Q:
            it = Q.pop(0); emit_item(it[3], it[2])
        a(f's_add_u32 s{S_KOFF}, s{S_M0}, {4*16384}'); a(f's_add_u32 s{S_VOFF}, s{S_M0}, {3*16384}')
        self.stamp()
        a(f'v_mov_b32 v250, {f2u(128**-0.5 * LOG2E)}')
        a.nop(14)
        for q in range(2):
            for dt in range(4):
                for k in range(0, 16, 2):
                    r = QA(q,dt)+k
                    a(f'v_pk_mul_f32 v[{r}:{r+1}], v[{r}:{r+1}], v[250:251] op_sel_hi:[1,0]')
                for t in range(2):
                    b = 4*((2*dt+t) % 4)
                    for k in range(4): a(f'v_cvt_pk_bf16_f32 v{b+k}, v{QA(q,dt)+8*t+2*k}, v{QA(q,dt)+8*t+2*k+1}')
                    for k in range(4): a(f'v_accvgpr_write_b32 a{QF(q,2*dt+t)+k}, v{b+k}')
        a(f'v_mov_b32 v{LR[0]}, 0'); a(f'v_mov_b32 v{LR[1]}, 0')
        a.wait_vm(('V', 1)); a('s_barrier')
        for s in range(8): a(k_read(s, 0))
        a('s_waitcnt lgkmcnt(0)')
        for s in range(8):
            for q in range(2):
                d = vr(S[0]+q*16, 16); a(mfma(d, ar(KF(s),4), ar(QF(q,s),4), '0' if s == 0 else d))
        for s in range(8): a(k_read(s, 1))
        a.nop(16)
        m = TMP+1; t2 = TMP+2
        for q in range(2):
            sc = S[0]+q*16
            a(f'v_max3_f32 v{m}, v{sc}, v{sc+1}, v{sc+2}')
            for r in range(3, 15, 2): a(f'v_max3_f32 v{m}, v{m}, v{sc+r}, v{sc+r+1}')
            a(f'v_max_f32 v{m}, v{m}, v{sc+15}')
            a(f'v_mov_b32 v{t2}, v{m}'); a('s_nop 1'); a(f'v_permlane32_swap_b32 v{t2}, v{m}'); a('s_nop 1'); a(f'v_max_f32 v{m}, v{m}, v{t2}')
            a(f'v_add_f32 v{m}, {f2u(OFFSET)}, v{m}')
            for r in range(16):
                a(f'v_sub_f32 v{NEGM+q*16+r}, 0, v{m}'); a(f'v_sub_f32 v{sc+r}, v{sc+r}, v{m}')
        self.stubs = stubs = []
        self.stamp()
        gen_iter(a, 0, do_pv=False, do_vread=False, barrier=63, dmaK=4, lsum_prev=False, stubs=stubs)
        gen_iter(a, 1, dmaV=3, stubs=stubs, pf=True, pv_zero=True)
        a(f's_mov_b32 s{S_CNT}, 7')
        a.raw('.p2align 6')
        a.label('KB_LOOP0')
        for j in range(2, 10):
            T_ = j//2
            if j % 2 == 0: gen_iter(a, j, barrier=18, dmaK=T_+4, stubs=stubs)
            else: gen_iter(a, j, dmaV=T_+3, stubs=stubs, pf=True)
            if j == 8:
                a(f's_sub_u32 s{S_PF}, s{S_PF}, 0x400000')
                a('s_mov_b32 s56, s90'); a('s_mov_b32 s57, s91'); a('s_mov_b32 s90, s92'); a('s_mov_b32 s91, s93'); a('s_mov_b32 s92, s94'); a('s_mov_b32 s93, s95')
                a('s_mov_b32 s58, s96'); a('s_mov_b32 s96, s97'); a('s_mov_b32 s97, s98'); a('s_mov_b32 s98, 0')
        a(f's_sub_u32 s{S_CNT}, s{S_CNT}, 1'); a(f's_cmp_lg_u32 s{S_CNT}, 0'); a('s_cbranch_scc1 KB_LOOP0')
        gen_iter(a, 58, barrier=9, stubs=stubs); gen_iter(a, 59, stubs=stubs)
        gen_iter(a, 60, barrier=0, stubs=stubs); gen_iter(a, 61, stubs=stubs); gen_iter(a, 62, do_kread=False, stubs=stubs)
        gen_iter(a, 63, do_qk=False, do_kread=False, stubs=stubs)
        a(f'v_add_f32 v{LR[0]}, v{LR[0]}, v{LT[0]}'); a(f'v_add_f32 v{LR[1]}, v{LR[1]}, v{LT[1]}')
        for t in range(2):
            for dt in range(4):
                for u in range(2): a(v_read(t, dt, u, 63))
        a('s_waitcnt lgkmcnt(0)')
        for t in range(2):
            for dt in range(4):
                for q in range(2):
                    d = ar(OA(q,dt),16); a(mfma(d, ar(VF(t,dt),4), vr(P[1]+q*8+t*4,4), d))
        a('s_barrier')
        a.vm = []; a.lg = []
        self.stamp()
        for q in range(2):
            xhalf_sum(a, LR[q], TMP); a(f'v_rcp_f32 v{LR[q]}, v{LR[q]}')
        a.nop(16)
        S_WS = 45
        a(f's_lshl_b32 s{S_T}, s{S_RT}, 18'); a(f's_lshl_b32 s{S_WS}, s{S_H}, 13'); a(f's_add_u32 s{S_XO}, s{S_T}, s{S_WS}'); a(f's_add_u32 s{S_XO+1}, s{S_XO}, {256*1024}')
        cnt = 0
        for q in range(2):
            a(f'v_mov_b32 v250, v{LR[q]}')
            for dt in range(4):
                for t in range(2):
                    b = 16*(cnt % 4); cnt += 1
                    for k in range(8): a(f'v_accvgpr_read_b32 v{b+k}, a{OA(q,dt)+8*t+k}')
                    for k in range(0, 8, 2): a(f'v_pk_mul_f32 v[{b+k}:{b+k+1}], v[{b+k}:{b+k+1}], v[250:251] op_sel_hi:[1,0]')
                    for k in range(4): a(f'v_cvt_pk_bf16_f32 v{b+8+k}, v{b+2*k}, v{b+2*k+1}')
                    ks = 2*dt+t
                    a(f's_add_u32 s{S_T}, s{S_XO+q}, {(ks//4)*4096}')
                    a.vmem(f'buffer_store_dwordx4 v[{b+8}:{b+11}], v{XOFF}, s[{SRD_O}:{SRD_O+3}], s{S_T} offen offset:{(ks%4)*1024} sc1', 'ost')

    def lane_consts_vstyle(self, WAD, WOFF, rowstride, tmp):
        a = self.a; L = LANE
        vg, vhf, vch, vrr, vc, vt, vu, vw = range(tmp, tmp+8)
        a(f'v_lshrrev_b32 v{vg}, 4, v{L}'); a(f'v_lshrrev_b32 v{vhf}, 5, v{L}'); a(f'v_and_b32 v{vch}, 1, v{vg}')
        a(f'v_bfe_u32 v{vrr}, v{L}, 2, 2'); a(f'v_and_b32 v{vc}, 3, v{L}')
        a(f'v_and_b32 v{vt}, 15, v{L}'); a(f'v_lshlrev_b32 v{vu}, 2, v{vg}'); a(f'v_xor_b32 v{vu}, v{vt}, v{vu}'); a(f'v_lshlrev_b32 v{vu}, 4, v{vu}')
        a(f'v_mul_u32_u24 v{WOFF}, {rowstride}, v{vg}'); a(f'v_add_u32 v{WOFF}, v{WOFF}, v{vu}')
        for dt in range(4):
            a(f'v_xor_b32 v{vt}, {dt}, v{vrr}'); a(f'v_lshlrev_b32 v{vt}, 2, v{vt}'); a(f'v_lshlrev_b32 v{vu}, 1, v{vch}'); a(f'v_add_u32 v{vt}, v{vt}, v{vu}')
            a(f'v_lshrrev_b32 v{vu}, 1, v{vc}'); a(f'v_add_u32 v{vu}, v{vt}, v{vu}'); a(f'v_lshlrev_b32 v{vu}, 4, v{vu}')
            a(f'v_and_b32 v{vw}, 1, v{vc}'); a(f'v_lshlrev_b32 v{vw}, 3, v{vw}'); a(f'v_add_u32 v{vu}, v{vu}, v{vw}')
            a(f'v_lshlrev_b32 v{vw}, 2, v{vhf}'); a(f'v_add_u32 v{vw}, v{vw}, v{vrr}'); a(f'v_lshlrev_b32 v{vw}, 8, v{vw}')
            a(f'v_add_u32 v{WAD[0]+dt}, v{vu}, v{vw}'); a(f'v_add_u32 v{WAD[1]+dt}, 65536, v{WAD[0]+dt}')

    def shared_gemm(self, NK, NM, nmat, CH, w_dma_ops, x_load_ops, XRING, XR, WF, WAD, ACC, pre_x, nv, npre, LA=2):
        a = self.a
        chunk_bytes = nmat*CH*4096; NSLOT = 131072 // chunk_bytes; NCH = NK // CH
        NB = LA+1
        def emit(ops, tag):
            for x in ops[0]: a(x)
            a.vmem(ops[1], tag)
        for s in range(pre_x): emit(x_load_ops(s), ('X', s))
        a.wait_vm(('W', 0)); a('s_barrier')
        Q = []
        for c in range(npre, NCH):
            av = -1 if c < NSLOT else (c-NSLOT+1)*CH - LA
            for o in w_dma_ops(c): Q.append((c*CH-LA-2*CH, av, ('W', c), o))
        for s in range(pre_x, NK): Q.append((s-0.5-4, s-XRING+1, ('X', s), x_load_ops(s)))
        Q.sort(key=lambda x: x[0])
        def pop_q(s):
            for i, it in enumerate(Q):
                if it[1] <= s: return Q.pop(i)
            return None
        def w_read_ops(s):
            ops = []; c = s//CH; slot = c % NSLOT
            for gu in range(nmat):
                for dt in range(4):
                    for u in range(2):
                        off = slot*chunk_bytes + gu*CH*4096 + (s % CH)*4096 + u*2048
                        ops.append(f'ds_read_b64_tr_b16 {ar(WF[s % NB] + (gu*4+dt)*4 + 2*u,2)}, v{WAD[off>>16]+dt} offset:{off & 65535}')
            return ops
        half = NM
        for s0 in range(LA):
            for i, op in enumerate(w_read_ops(s0)): a.lds(op, ('Wf', s0, i//half))
        for s in range(NK):
            bar = ((s+LA) % CH == 0 and s+LA < NK)
            assert not any(it[2] == ('X', s) for it in Q), s
            if bar:
                c = (s+LA)//CH
                assert not any(it[2] == ('W', c) for it in Q), (s, c)
                a.wait_vm([('W', c), ('X', s)]); a.wait_lg0(); a('s_barrier')
            else:
                a.wait_vm(('X', s)); a.wait_lg(('Wf', s, 0))
            wr = w_read_ops(s+LA) if s+LA < NK else []
            x = XR + 4*(s % XRING)
            items = []
            for _ in range(nv):
                it = pop_q(s)
                if it: items.append(it)
            vg = list(range(0, NM, max(1, NM//max(1, nv))))[:len(items)] if items else []
            vg = [NM-1-g for g in vg]
            free = [g for g in range(NM) if g not in vg]
            nper = {g: 0 for g in range(NM)}
            rem = len(wr)
            cap = M['tr_cap']
            for g in free:
                k = min(cap, rem); nper[g] = k; rem -= k
            gi = 0; sv = sorted(vg) + free
            while rem:
                nper[sv[gi % len(sv)]] += 1; rem -= 1; gi += 1
            ri = 0; vi = 0
            for g in range(NM):
                d = ACC(g)
                if g == NM//2 and not bar: a.wait_lg(('Wf', s, 1))
                it = None
                if g in vg:
                    it = items[vi]; vi += 1
                    for t in it[3][0]: a(t)
                a(mfma(d, ar(WF[s % NB]+g*4,4), vr(x,4), '0' if s == 0 else d))
                if it: a.vmem(it[3][1], it[2])
                for _ in range(nper[g]):
                    a.lds(wr[ri], ('Wf', s+LA, ri//half)); ri += 1
        assert not Q, Q

    def mod2_tables(self):
        a = self.a
        a.srd(64, 4, WS_M2, 65536)
        a(f's_mov_b32 s71, {C_M2*256}')
        self.wait([(71, 8, 32)])
        a(f'v_lshlrev_b32 v136, 3, v{TID}'); a('v_add_u32 v137, 4096, v136')
        B0 = 64
        for e in range(8):
            a(f's_mov_b32 s83, {e*8192}')
            for j in range(4):
                vo = 136 if j < 2 else 137
                a.vmem(f'buffer_load_dwordx2 v[{B0+16*j+2*e}:{B0+16*j+2*e+1}], v{vo}, s[64:67], s83 offen offset:{2048*(j%2)} sc1', 'mod')
        a.wait_vm('mod')
        for j in range(4):
            for c_ in range(2):
                b = B0+16*j+c_
                for st_ in (2, 4, 8):
                    for e in range(0, 16, 2*st_): a(f'v_add_f32 v{b+e}, v{b+e}, v{b+e+st_}')
                round_bf16(a, b, 138)
        for c_ in range(2):
            a(f'v_add_f32 v{B0+32+c_}, 1.0, v{B0+32+c_}'); round_bf16(a, B0+32+c_, 138)
        a(f'v_add_u32 v136, {SCR}, v136')
        a(f'ds_write_b64 v136, v[{B0}:{B0+1}]'); a(f'ds_write_b64 v136, v[{B0+32}:{B0+33}] offset:2048')
        a(f'ds_write_b64 v136, v[{B0+16}:{B0+17}] offset:4096'); a(f'ds_write_b64 v136, v[{B0+48}:{B0+49}] offset:6144')
        a('s_waitcnt lgkmcnt(0)')

    def phase_c(self):
        a = self.a
        S_RB=36; S_CB=37; S_KQ=33; S_TT=38; S_RTc=39; S_WO=41; S_M0c=42; S_XO=45
        SRD_W=12; SRD_X=16; SRD_Oc=20
        WAD=[200, 204]; WOFF=208; LOFF=209
        a(f's_load_dwordx2 s[6:7], s[0:1], {KA_WO}')
        a('s_lshr_b32 s70, s2, 5'); a('s_lshl_b32 s70, s70, 2'); a('s_bfe_u32 s71, s2, 0x20003'); a('s_add_u32 s70, s70, s71'); a(f's_add_u32 s70, s70, {C_CO}'); a('s_lshl_b32 s70, s70, 8')
        a('s_and_b32 s34, s2, 7'); a('s_lshr_b32 s35, s2, 3')
        a(f's_and_b32 s{S_KQ}, s34, 3'); a('s_lshr_b32 s34, s34, 2'); a('s_lshl_b32 s34, s34, 3'); a(f's_and_b32 s{S_RB}, s35, 7'); a(f's_add_u32 s{S_RB}, s{S_RB}, s34')
        a(f's_lshr_b32 s{S_CB}, s35, 3')
        a(f'v_lshlrev_b32 v{LOFF}, 4, v{LANE}')
        self.lane_consts_vstyle(WAD, WOFF, 1024, 128)
        a(f's_lshl_b32 s{S_RTc}, s{S_RB}, 2'); a(f's_add_u32 s{S_RTc}, s{S_RTc}, s{S_W}')
        a(f's_lshl_b32 s{S_WO}, s{S_KQ}, 20'); a(f's_lshl_b32 s{S_TT}, s{S_W}, 12'); a(f's_add_u32 s{S_WO}, s{S_WO}, s{S_TT}')
        a(f's_lshl_b32 s{S_TT}, s{S_CB}, 8'); a(f's_add_u32 s{S_WO}, s{S_WO}, s{S_TT}')
        a(f's_lshl_b32 s{S_M0c}, s{S_W}, 10')
        a(f's_lshl_b32 s{S_XO}, s{S_RTc}, 18'); a(f's_lshl_b32 s{S_TT}, s{S_KQ}, 16'); a(f's_add_u32 s{S_XO}, s{S_XO}, s{S_TT}')
        a(f's_lshr_b32 s71, s{S_RB}, 1'); a('s_lshl_b32 s71, s71, 2'); a(f's_add_u32 s71, s71, s{S_KQ}'); a(f's_add_u32 s71, s71, {C_CO}'); a('s_lshl_b32 s71, s71, 8')
        a('s_waitcnt lgkmcnt(0)')
        a.srd(SRD_W, 6, 0, 4194304); a.srd(SRD_X, 4, WS_O, 16777216); a.srd(SRD_Oc, 4, WS_P, 8388608); a.srd(64, 4, WS_M2, 8192)
        def w_dma_ops(c):
            slot = c % 8
            return [([f's_add_u32 m0, s{S_M0c}, {slot*16384 + m*4096}', f's_add_u32 s{S_TT}, s{S_WO}, {(c*64 + m*16)*1024}'],
                     f'buffer_load_dwordx4 v{WOFF}, s[{SRD_W}:{SRD_W+3}], s{S_TT} offen lds') for m in range(4)]
        XRING = 32
        def x_load_ops(s):
            r = 4*(s % XRING)
            return ([f's_add_u32 s{S_TT}, s{S_XO}, {(s//4)*4096}'],
                    f'buffer_load_dwordx4 v[{r}:{r+3}], v{LOFF}, s[{SRD_X}:{SRD_X+3}], s{S_TT} offen offset:{(s%4)*1024} {M["ldsc"]}')
        NPRE = M['c_prew']
        def pre(track):
            for c in range(NPRE):
                for o in w_dma_ops(c):
                    for x in o[0]: a(x)
                    if track: a.vmem(o[1], ('W', c))
                    else: a(o[1])
        self.handoff(70, [('multi', 71, 8)], pre=pre, npre=4*NPRE)
        self.stamp()
        a(f'v_lshlrev_b32 v210, 3, v{TID}'); a('v_add_u32 v211, 4096, v210')
        a.vmem('buffer_load_dwordx2 v[192:193], v210, s[64:67], 0 offen sc1', 'mod'); a.vmem('buffer_load_dwordx2 v[194:195], v210, s[64:67], 0 offen offset:2048 sc1', 'mod')
        a.vmem('buffer_load_dwordx2 v[196:197], v211, s[64:67], 0 offen sc1', 'mod'); a.vmem('buffer_load_dwordx2 v[198:199], v211, s[64:67], 0 offen offset:2048 sc1', 'mod')
        ACCB = 128
        self.shared_gemm(64, 4, 1, 4, w_dma_ops, x_load_ops, XRING, 0, [0, 16, 32], WAD, lambda g: vr(ACCB+16*g, 16), pre_x=M['c_prex'], nv=M['c_nv'], npre=NPRE, LA=M['la'])
        for c_ in range(2):
            for r in (192, 194, 196, 198): round_bf16(a, r+c_, 212)
            a(f'v_add_f32 v{196+c_}, 1.0, v{196+c_}'); round_bf16(a, 196+c_, 212)
        a(f'v_add_u32 v210, {T2B}, v210')
        a('ds_write_b64 v210, v[192:193]'); a('ds_write_b64 v210, v[196:197] offset:2048'); a('ds_write_b64 v210, v[194:195] offset:4096'); a('ds_write_b64 v210, v[198:199] offset:6144')
        a('s_waitcnt lgkmcnt(0)')
        a('s_barrier')
        self.stamp()
        a(f's_lshl_b32 s{S_XO}, s{S_KQ}, 21'); a(f's_lshl_b32 s{S_TT}, s{S_RTc}, 15'); a(f's_add_u32 s{S_XO}, s{S_XO}, s{S_TT}')
        a(f's_lshl_b32 s{S_TT}, s{S_CB}, 13'); a(f's_add_u32 s{S_XO}, s{S_XO}, s{S_TT}')
        for mt in range(4):
            if mt % 2 == 0: a(f's_add_u32 s{S_TT}, s{S_XO}, {(mt//2)*4096}')
            for t in range(2):
                b = 4*(2*mt+t)
                for k in range(4):
                    r = ACCB + 16*mt + 8*t + 2*k
                    a(f'v_cvt_pk_bf16_f32 v{b+k}, v{r}, v{r+1}')
                a.vmem(f'buffer_store_dwordx4 v[{b}:{b+3}], v{LOFF}, s[{SRD_Oc}:{SRD_Oc+3}], s{S_TT} offen offset:{1024*((2*mt+t)%4)} sc1', 'pst')
        a(f's_add_u32 s74, s{S_RB}, {C_CP}'); a('s_lshl_b32 s74, s74, 8')

    def d_setup(self):
        a = self.a
        d = self.d = dict(S_RB=36, S_FG=37, S_TT=38, S_RT=39, S_GO=41, S_M0=42, S_XO=45, SRD_G=12, SRD_U=16, SRD_X=20, SRD_O=28, WAD=[200, 204], WOFF=208, LOFF=209)
        a(f's_load_dwordx2 s[6:7], s[0:1], {KA_WG}'); a(f's_load_dwordx2 s[8:9], s[0:1], {KA_WU}')
        a('s_and_b32 s33, s2, 7'); a('s_lshr_b32 s34, s2, 3')
        a(f's_and_b32 s36, s34, 3'); a('s_lshr_b32 s35, s33, 1'); a('s_lshl_b32 s35, s35, 2'); a('s_add_u32 s36, s36, s35')
        a(f's_lshr_b32 s37, s34, 2'); a('s_and_b32 s35, s33, 1'); a('s_mul_i32 s35, s35, 7'); a('s_add_u32 s37, s37, s35')
        self.lane_consts_vstyle(d['WAD'], d['WOFF'], 3584, 128)
        a(f's_lshl_b32 s39, s36, 2'); a(f's_add_u32 s39, s39, s{S_W}')
        a(f's_lshl_b32 s41, s37, 8'); a(f's_mul_i32 s38, s{S_W}, {4*3584}'); a('s_add_u32 s41, s41, s38')
        a(f's_lshl_b32 s42, s{S_W}, 10'); a('s_lshl_b32 s45, s39, 15')
        a('s_waitcnt lgkmcnt(0)')
        a.srd(12, 6, 0, 512*3584); a.srd(16, 8, 0, 512*3584)
    def d_w_dma_ops(self, c):
        slot = c % 4; ops = []
        for m in range(4):
            for gu in range(2):
                srd = 12 if gu == 0 else 16
                ops.append(([f's_add_u32 m0, s42, {slot*32768 + gu*16384 + m*4096}', f's_add_u32 s38, s41, {(c*64 + m*16)*3584}'],
                            f'buffer_load_dwordx4 v208, s[{srd}:{srd+3}], s38 offen lds'))
        return ops

    def wait_P(self):
        a = self.a
        l1 = a.newlabel('WP'); l2 = a.newlabel('WP')
        a(f's_cmp_lg_u32 s{S_W}, 0'); a(f's_cbranch_scc1 {l1}'); a('s_cmp_ge_u32 s2, 224'); a(f's_cbranch_scc1 {l1}')
        a('s_waitcnt vmcnt(32)'); a(f's_branch {l2}')
        a.label(l1); a('s_waitcnt vmcnt(0)')
        a.label(l2); a.vm = []
    def phase_r(self):
        a = self.a
        S_TT = 38
        SRD_P=44; SRD_X=48; SRD_MPr=52; SRD_X1=64; SRD_H=76
        TB0 = T2B
        a(f's_load_dwordx2 s[6:7], s[0:1], {KA_X}')
        a(f'v_and_b32 v2, 7, v{TID}'); a(f'v_bfe_u32 v3, v{TID}, 3, 1'); a(f'v_lshrrev_b32 v4, 4, v{TID}')
        a('s_lshr_b32 s80, s2, 2'); a('s_and_b32 s81, s2, 3'); a('s_lshl_b32 s81, s81, 3')
        a('v_lshlrev_b32 v5, 5, v3'); a('v_add_u32 v5, v5, v2'); a('v_add_u32 v5, s81, v5'); a('v_lshlrev_b32 v5, 4, v5')
        a('v_lshlrev_b32 v6, 10, v4'); a('v_add_u32 v6, v6, v5'); a('v_lshlrev_b32 v7, 11, v4'); a('v_add_u32 v7, v7, v5')
        a('v_add_u32 v8, s81, v2'); a('v_lshlrev_b32 v8, 10, v8'); a('v_lshlrev_b32 v9, 5, v4'); a('v_add_u32 v8, v8, v9'); a('v_lshlrev_b32 v9, 3, v3'); a('v_add_u32 v8, v8, v9')
        a(f'v_lshlrev_b32 v10, 3, v{TID}')
        a('s_waitcnt lgkmcnt(0)')
        a.srd(20, 4, WS_P, 8388608); a.srd(24, 6, 0, 2097152); a.srd(28, 4, WS_M2, 65536); a.srd(64, 4, WS_X1, 2097152); a.srd(76, 4, WS_H2, 2097152)
        a('s_lshl_b32 s82, s80, 15')
        for i in range(2):
            a(f's_add_u32 s83, s82, {i*512}')
            a.vmem(f'buffer_load_dwordx2 v[{112+4*i}:{113+4*i}], v8, s[24:27], s83 offen', 'x')
            a.vmem(f'buffer_load_dwordx2 v[{114+4*i}:{115+4*i}], v8, s[24:27], s83 offen offset:16', 'x')
        a('v_lshlrev_b32 v12, 6, v4'); a('v_lshlrev_b32 v13, 4, v3'); a('v_add_u32 v12, v12, v13'); a(f'v_add_u32 v12, {TB0}, v12')
        TB = 120
        for j in range(3):
            for i in range(2):
                for h in range(2):
                    r = TB + 16*j + 8*i + 4*h
                    a(f'ds_read_b128 v[{r}:{r+3}], v12 offset:{2048*j + 1024*i + 32*h}')
        a('s_lshr_b32 s70, s2, 4'); a(f's_add_u32 s70, s70, {C_CP}'); a('s_lshl_b32 s70, s70, 8')
        def pre(track):
            for c in range(4):
                for o in self.d_w_dma_ops(c):
                    for x in o[0]: a(x)
                    if track: a.vmem(o[1], ('W', c))
                    else: a(o[1])
        late = self.handoff(74, [(70, 1, 16)], pre=pre, npre=32, skip_cond='s_cmp_ge_u32 s2, 224', defer=True)
        a.vm = []
        self.stamp()
        a('s_lshl_b32 s84, s80, 15')
        for i in range(2):
            for kq in range(4):
                a(f's_add_u32 s83, s84, {kq*2097152 + i*16384}')
                r = 80 + (i*4+kq)*4
                a.vmem(f'buffer_load_dwordx4 v[{r}:{r+3}], v6, s[20:23], s83 offen sc1', 'P')
        late()
        a('s_waitcnt vmcnt(32)') if False else None
        self.wait_P()
        a('s_waitcnt lgkmcnt(0)')
        for i in range(2):
            b = 48 + i*32
            for k in range(4):
                for kq in range(4):
                    r = 80 + (i*4+kq)*4 + k
                    if kq == 0:
                        a(f'v_lshlrev_b32 v{b+2*k}, 16, v{r}'); a(f'v_and_b32 v{b+2*k+1}, 0xffff0000, v{r}')
                    else:
                        a(f'v_lshlrev_b32 v41, 16, v{r}'); a(f'v_and_b32 v42, 0xffff0000, v{r}')
                        a(f'v_add_f32 v{b+2*k}, v{b+2*k}, v41'); a(f'v_add_f32 v{b+2*k+1}, v{b+2*k+1}, v42')
        for i in range(2):
            b = 48 + i*32
            for k in range(4):
                A0, A1 = b+2*k, b+2*k+1
                a(f'v_cvt_pk_bf16_f32 v40, v{A0}, v{A1}'); a(f'v_lshlrev_b32 v{A0}, 16, v40'); a(f'v_and_b32 v{A1}, 0xffff0000, v40')
                a(f'v_mul_f32 v{A0}, v{A0}, v{TB+8*i+2*k}'); a(f'v_mul_f32 v{A1}, v{A1}, v{TB+8*i+2*k+1}')
                a(f'v_cvt_pk_bf16_f32 v40, v{A0}, v{A1}'); a(f'v_lshlrev_b32 v{A0}, 16, v40'); a(f'v_and_b32 v{A1}, 0xffff0000, v40')
                xr = 112+4*i+k
                a(f'v_lshlrev_b32 v41, 16, v{xr}'); a(f'v_and_b32 v42, 0xffff0000, v{xr}')
                a(f'v_add_f32 v{A0}, v{A0}, v41'); a(f'v_add_f32 v{A1}, v{A1}, v42')
                a(f'v_cvt_pk_bf16_f32 v{32+4*i+k}, v{A0}, v{A1}')
                a(f'v_lshlrev_b32 v{16+8*i+2*k}, 16, v{32+4*i+k}'); a(f'v_and_b32 v{17+8*i+2*k}, 0xffff0000, v{32+4*i+k}')
        a('s_lshl_b32 s82, s80, 15'); a('s_add_u32 s83, s82, 16384')
        a.vmem('buffer_store_dwordx4 v[32:35], v6, s[64:67], s82 offen sc1', 'st'); a.vmem('buffer_store_dwordx4 v[36:39], v6, s[64:67], s83 offen sc1', 'st')
        def rowreduce(x, t, ldsoff):
            a('s_nop 1'); a(f'v_add_f32_dpp v{x}, v{x}, v{x} row_ror:8 row_mask:0xf bank_mask:0xf')
            a(f'v_mov_b32 v{t}, v{x}'); a('s_nop 1'); a(f'v_permlane16_swap_b32 v{t}, v{x}'); a('s_nop 1'); a(f'v_add_f32 v{x}, v{x}, v{t}')
            a(f'v_mov_b32 v{t}, v{x}'); a('s_nop 1'); a(f'v_permlane32_swap_b32 v{t}, v{x}'); a('s_nop 1'); a(f'v_add_f32 v{x}, v{x}, v{t}')
            a(f'ds_write_b32 v44, v{x} offset:{ldsoff}'); a('s_waitcnt lgkmcnt(0)'); a('s_barrier')
            for w in range(4): a(f'ds_read_b32 v{168+w}, v45 offset:{ldsoff+32*w}')
            a('s_waitcnt lgkmcnt(0)')
            a('v_add_f32 v168, v168, v169'); a('v_add_f32 v170, v170, v171'); a(f'v_add_f32 v{x}, v168, v170')
        a('v_lshlrev_b32 v45, 2, v2'); a(f'v_add_u32 v45, {SCR+4096}, v45'); a(f's_lshl_b32 s85, s{S_W}, 5'); a('v_add_u32 v44, s85, v45')
        a('v_add_f32 v46, v16, v17')
        for k in range(2, 16): a(f'v_add_f32 v46, v46, v{16+k}')
        rowreduce(46, 47, 0)
        a(f'v_mul_f32 v46, {f2u(1/512)}, v46')
        a('v_sub_f32 v41, v16, v46'); a('v_mul_f32 v43, v41, v41')
        for k in range(1, 16):
            a(f'v_sub_f32 v41, v{16+k}, v46'); a('v_fmac_f32 v43, v41, v41')
        rowreduce(43, 47, 256)
        a(f'v_mul_f32 v43, {f2u(1/512)}, v43')
        round_bf16(a, 43, 47); a(f'v_add_f32 v43, {f2u(1e-5)}, v43'); round_bf16(a, 43, 47)
        a('v_sqrt_f32 v43, v43'); a('s_nop 0'); round_bf16(a, 43, 47); a('v_rcp_f32 v43, v43'); round_bf16(a, 46, 47)
        for i in range(2):
            for k in range(4):
                e0, e1 = 16+8*i+2*k, 17+8*i+2*k
                a(f'v_sub_f32 v41, v{e0}, v46'); a(f'v_sub_f32 v42, v{e1}, v46')
                a('v_cvt_pk_bf16_f32 v40, v41, v42'); a('v_lshlrev_b32 v41, 16, v40'); a('v_and_b32 v42, 0xffff0000, v40')
                a('v_mul_f32 v41, v41, v43'); a('v_mul_f32 v42, v42, v43')
                a('v_cvt_pk_bf16_f32 v40, v41, v42'); a('v_lshlrev_b32 v41, 16, v40'); a('v_and_b32 v42, 0xffff0000, v40')
                a(f'v_mul_f32 v41, v41, v{TB+16+8*i+2*k}'); a(f'v_mul_f32 v42, v42, v{TB+16+8*i+2*k+1}')
                a('v_cvt_pk_bf16_f32 v40, v41, v42'); a('v_lshlrev_b32 v41, 16, v40'); a('v_and_b32 v42, 0xffff0000, v40')
                a(f'v_add_f32 v41, v41, v{TB+32+8*i+2*k}'); a(f'v_add_f32 v42, v42, v{TB+32+8*i+2*k+1}')
                a(f'v_cvt_pk_bf16_f32 v{48+4*i+k}, v41, v42')
        a.vmem('buffer_store_dwordx4 v[48:51], v6, s[76:79], s82 offen sc1', 'st'); a.vmem('buffer_store_dwordx4 v[52:55], v6, s[76:79], s83 offen sc1', 'st')
        a('s_lshr_b32 s70, s2, 4'); a(f's_add_u32 s70, s70, {C_CH}'); a('s_lshl_b32 s70, s70, 8')
        self.signal([70], vm_allow=0); a.vm = []
        self.stamp()

    def phase_d(self):
        a = self.a
        LOFF = 209
        a.srd(20, 4, WS_H2, 2097152); a.srd(28, 4, WS_ACT, 64*112*1024)
        a(f's_add_u32 s70, s36, {C_CH}'); a('s_lshl_b32 s70, s70, 8')
        self.wait([(70, 1, 16)])
        self.stamp()
        def x_load_ops(s):
            return ([f's_add_u32 s38, s45, {(s//4)*4096}'],
                    f'buffer_load_dwordx4 v[{4*s}:{4*s+3}], v{LOFF}, s[20:23], s38 offen offset:{(s%4)*1024} {M["ldsc"]}')
        self.shared_gemm(32, 8, 2, 4, self.d_w_dma_ops, x_load_ops, 32, 0, [128, 160, 192], [200, 204], lambda g: ar(16*g, 16), pre_x=M['d_prex'], nv=3, npre=4, LA=M['la'])
        self.stamp()
        a.nop(16)
        a(f's_mul_i32 s45, s39, {112*1024}'); a('s_lshl_b32 s38, s37, 13'); a('s_add_u32 s45, s45, s38')
        a(f's_mov_b32 s40, {f2u(-LOG2E)}')
        cnt = 0
        for mt in range(4):
            for t in range(2):
                b = 32*(cnt % 2); cnt += 1
                G = b; U = b+8; E = b+16; O_ = b+24
                for k in range(8): a(f'v_accvgpr_read_b32 v{G+k}, a{16*mt+8*t+k}')
                for k in range(8): a(f'v_accvgpr_read_b32 v{U+k}, a{16*(4+mt)+8*t+k}')
                for k in range(8): a(f'v_mul_f32 v{E+k}, s40, v{G+k}')
                for k in range(8): a(f'v_exp_f32 v{E+k}, v{E+k}')
                for k in range(8): a(f'v_mul_f32 v{U+k}, v{G+k}, v{U+k}')
                for k in range(8): a(f'v_add_f32 v{E+k}, 1.0, v{E+k}')
                for k in range(8): a(f'v_rcp_f32 v{E+k}, v{E+k}')
                a('s_nop 0')
                for k in range(8): a(f'v_mul_f32 v{U+k}, v{U+k}, v{E+k}')
                for k in range(4): a(f'v_cvt_pk_bf16_f32 v{O_+k}, v{U+2*k}, v{U+2*k+1}')
                ks = 2*mt+t
                a(f's_add_u32 s38, s45, {(ks//4)*4096}')
                a.vmem(f'buffer_store_dwordx4 v[{O_}:{O_+3}], v{LOFF}, s[28:31], s38 offen offset:{(ks%4)*1024} sc1', 'ast')
        a(f's_add_u32 s74, s36, {C_CA}'); a('s_lshl_b32 s74, s74, 8')

    def e_setup(self):
        a = self.a; L = LANE
        NKT = 112; NK = 28
        e = self.e = dict(S_RB=36, S_CB=37, S_T=38, S_AO=39, S_B0=40, S_B1=41, S_M0=42, SRD_W=12, SRD_B=16, SRD_MP=20, SRD_X=24, SRD_O=28,
                          AF=[192, 200], AAD=208, VOA=210, VOB=211, LOFF=212, NK=NK, NKT=NKT)
        a(f's_load_dwordx2 s[6:7], s[0:1], {KA_WD}'); a(f's_load_dwordx2 s[8:9], s[0:1], {KA_OUT}')
        a('s_and_b32 s33, s2, 7'); a('s_lshr_b32 s34, s2, 3'); a('s_and_b32 s36, s34, 3'); a('s_lshl_b32 s33, s33, 2'); a('s_add_u32 s36, s36, s33'); a('s_lshr_b32 s37, s34, 2')
        a(f'v_lshrrev_b32 v2, 3, v{L}'); a('v_lshlrev_b32 v2, 10, v2'); a(f'v_bfe_u32 v3, v{L}, 4, 1'); a('v_lshlrev_b32 v3, 2, v3')
        a(f'v_and_b32 v4, 7, v{L}'); a('v_xor_b32 v3, v3, v4'); a('v_lshlrev_b32 v3, 4, v3')
        a('v_add_u32 v210, v2, v3'); a('v_add_u32 v211, 7168, v210'); a(f'v_lshlrev_b32 v212, 4, v{L}')
        a(f'v_lshrrev_b32 v2, 5, v{L}'); a(f'v_bfe_u32 v3, v{L}, 4, 1'); a(f'v_bfe_u32 v4, v{L}, 2, 2'); a(f'v_and_b32 v5, 3, v{L}')
        a('v_lshlrev_b32 v6, 2, v2'); a('v_add_u32 v6, v6, v4'); a('v_lshlrev_b32 v6, 7, v6'); a('v_and_b32 v7, 1, v5'); a('v_lshlrev_b32 v7, 3, v7'); a('v_add_u32 v6, v6, v7')
        a('v_lshrrev_b32 v7, 1, v5'); a('v_lshlrev_b32 v8, 1, v3'); a('v_add_u32 v7, v7, v8'); a('v_lshrrev_b32 v8, 1, v4')
        a(f's_lshl_b32 s42, s{S_W}, 15')
        for mt in range(2):
            a(f'v_xor_b32 v9, {mt}, v8'); a('v_lshlrev_b32 v9, 2, v9'); a('v_add_u32 v9, v9, v7'); a('v_lshlrev_b32 v9, 4, v9')
            a(f'v_add_u32 v{208+mt}, v6, v9'); a(f'v_add_u32 v{208+mt}, s42, v{208+mt}')
        a(f's_mul_i32 s39, s{S_W}, {NK*16384}'); a('s_lshl_b32 s38, s37, 7'); a('s_add_u32 s39, s39, s38')
        a(f's_mul_i32 s40, s36, {2*NKT*1024}'); a(f's_mul_i32 s38, s{S_W}, {NK*1024}'); a('s_add_u32 s40, s40, s38'); a(f's_add_u32 s41, s40, {NKT*1024}')
        a('s_waitcnt lgkmcnt(0)')
        a.srd(12, 6, 0, NKT*16*1024); a.srd(16, 4, WS_ACT, 64*NKT*1024); a.srd(20, 4, WS_M2, 65536); a.srd(24, 4, WS_X1, 2097152); a.srd(28, 8, 0, 2097152)
    def e_a_ops(self, k):
        slot = k % 16
        return [([f's_add_u32 m0, s42, {slot*2048}', f's_add_u32 s38, s39, {k*16384}'], f'buffer_load_dwordx4 v210, s[12:15], s38 offen lds'),
                ([], f'buffer_load_dwordx4 v211, s[12:15], s38 offen offset:1024 lds')]
    def phase_e(self):
        a = self.a; L = LANE
        NK = 28; DEPTH = M['e_depth']; AF = [192, 200]; ACC = 128; LOFF = 212; GT = SCR
        def b_ops(k):
            r = 8*(k % 16)
            return [([f's_add_u32 s43, s40, {(k//4)*4096}'], f'buffer_load_dwordx4 v[{r}:{r+3}], v{LOFF}, s[16:19], s43 offen offset:{(k%4)*1024} {M["ldsc"]}'),
                    ([f's_add_u32 s43, s41, {(k//4)*4096}'], f'buffer_load_dwordx4 v[{r+4}:{r+7}], v{LOFF}, s[16:19], s43 offen offset:{(k%4)*1024} {M["ldsc"]}')]
        def emit(o, tag):
            for x in o[0]: a(x)
            a.vmem(o[1], tag)
        for k in range(DEPTH):
            for o in b_ops(k): emit(o, ('B', k))
        def aread_ops(k):
            slot = k % 16
            return [f'ds_read_b64_tr_b16 {vr(AF[k&1] + mt*4 + 2*u,2)}, v{208+mt} offset:{slot*2048 + u*1024}' for mt in range(2) for u in range(2)]
        a.wait_vm(('A', 0))
        for op in aread_ops(0): a.lds(op, ('Af', 0))
        NPRE = M['e_prea']
        for k in range(NK):
            a.wait_vm(('B', k)) if k == 0 else None
            if k+1 < NK: a.wait_vm([('B', k+1), ('A', k+1)])
            a.wait_lg(('Af', k))
            r = 8*(k % 16)
            ar_ = aread_ops(k+1) if k+1 < NK else []
            gs = []
            if NPRE == 16:
                if k >= 2 and k+14 < NK: gs += [(o, ('A', k+14)) for o in self.e_a_ops(k+14)]
            elif k+NPRE < NK: gs += [(o, ('A', k+NPRE)) for o in self.e_a_ops(k+NPRE)]
            if k+DEPTH < NK: gs += [(o, ('B', k+DEPTH)) for o in b_ops(k+DEPTH)]
            i = 0
            for mt in range(2):
                for nt in range(2):
                    d = vr(ACC+(mt*2+nt)*16, 16)
                    it = gs[i] if i < len(gs) else None
                    if it:
                        for x in it[0][0]: a(x)
                    a(mfma(d, vr(AF[k&1]+mt*4,4), vr(r+4*nt,4), '0' if k == 0 else d))
                    if it: a.vmem(it[0][1], it[1])
                    if i < 2:
                        for op in ar_[2*i:2*i+2]: a.lds(op, ('Af', k+1))
                    i += 1
        self.stamp()
        a(f's_lshr_b32 s46, s{S_W}, 1'); a(f's_and_b32 s47, s{S_W}, 1')
        a('s_lshl_b32 s48, s36, 1'); a('s_add_u32 s48, s48, s47')
        a('s_lshl_b32 s49, s37, 2'); a('s_lshl_b32 s50, s46, 1'); a('s_add_u32 s49, s49, s50')
        a('s_lshl_b32 s50, s48, 5'); a('s_add_u32 s50, s50, s49'); a('s_lshl_b32 s50, s50, 10')
        a(f'v_and_b32 v2, 31, v{L}'); a('v_lshlrev_b32 v2, 10, v2'); a(f'v_lshrrev_b32 v3, 5, v{L}'); a('v_lshlrev_b32 v4, 4, v3'); a('v_add_u32 v2, v2, v4')
        a('s_lshl_b32 s51, s48, 15'); a('s_lshl_b32 s33, s49, 5'); a('s_add_u32 s51, s51, s33')
        for t in range(2):
            a(f'buffer_load_dwordx4 v[{8+4*t}:{11+4*t}], v{LOFF}, s[24:27], s50 offen offset:{1024*t} sc1')
        a.nop(12)
        a('s_waitcnt lgkmcnt(0)'); a('s_barrier')
        a(f's_lshl_b32 s33, s{S_W}, 14'); a(f'v_add_u32 v5, s33, v{LOFF}')
        for tile in range(4):
            for r4 in range(4):
                r = ACC + tile*16 + r4*4
                a(f'ds_write_b128 v5, v[{r}:{r+3}] offset:{(tile*4+r4)*1024}')
        a('s_waitcnt lgkmcnt(0)'); a('s_barrier')
        a(f's_lshl_b32 s33, s{S_W}, 12'); a(f'v_add_u32 v5, s33, v{LOFF}')
        for wv in range(4):
            for r4 in range(4):
                r = 32 + wv*16 + r4*4
                a(f'ds_read_b128 v[{r}:{r+3}], v5 offset:{wv*16384 + r4*1024}')
        a('v_lshlrev_b32 v6, 4, v3'); a('s_lshl_b32 s33, s46, 7'); a('s_lshl_b32 s34, s37, 8'); a('s_add_u32 s33, s33, s34'); a(f's_add_u32 s33, s33, {T2B+6144}'); a('v_add_u32 v6, s33, v6')
        for g in range(4): a(f'ds_read_b128 v[{16+4*g}:{19+4*g}], v6 offset:{32*g}')
        a('s_waitcnt lgkmcnt(0)')
        for r in range(16):
            a(f'v_add_f32 v{32+r}, v{32+r}, v{48+r}'); a(f'v_add_f32 v{64+r}, v{64+r}, v{80+r}')
        for r in range(16): a(f'v_add_f32 v{32+r}, v{32+r}, v{64+r}')
        for r in range(0, 16, 2):
            a(f'v_cvt_pk_bf16_f32 v100, v{32+r}, v{33+r}'); a(f'v_lshlrev_b32 v{32+r}, 16, v100'); a(f'v_and_b32 v{33+r}, 0xffff0000, v100')
            a(f'v_mul_f32 v{32+r}, v{32+r}, v{16+r}'); a(f'v_mul_f32 v{33+r}, v{33+r}, v{17+r}')
            a(f'v_cvt_pk_bf16_f32 v100, v{32+r}, v{33+r}'); a(f'v_lshlrev_b32 v{32+r}, 16, v100'); a(f'v_and_b32 v{33+r}, 0xffff0000, v100')
        a('s_waitcnt vmcnt(0)')
        for k in range(8):
            a(f'v_lshlrev_b32 v101, 16, v{8+k}'); a(f'v_and_b32 v102, 0xffff0000, v{8+k}')
            a(f'v_add_f32 v{32+2*k}, v{32+2*k}, v101'); a(f'v_add_f32 v{33+2*k}, v{33+2*k}, v102')
            a(f'v_cvt_pk_bf16_f32 v{104+k}, v{32+2*k}, v{33+2*k}')
        a('s_nop 1')
        for gp in range(2):
            b = 104+4*gp
            a(f'v_permlane32_swap_b32 v{b}, v{b+2}'); a(f'v_permlane32_swap_b32 v{b+1}, v{b+3}')
        a('s_nop 1')
        for gp in range(2):
            b = 104+4*gp
            a(f'buffer_store_dwordx4 v[{b}:{b+3}], v2, s[28:31], s51 offen offset:{32*gp}')

    def build(self):
        a = self.a
        a.raw(kernel_head(KN))
        a('s_cmp_ge_u32 s2, 256'); a('s_cbranch_scc1 K_END')
        self.front()
        self.attention()
        self.phase_c()
        self.stamp()
        a('s_cmp_ge_u32 s2, 224'); a('s_cbranch_scc1 NO_DS')
        self.d_setup()
        a.label('NO_DS')
        self.phase_r()
        a('s_cmp_ge_u32 s2, 224'); a('s_cbranch_scc1 E_PRE')
        a(f'v_lshlrev_b32 v209, 4, v{LANE}')
        self.phase_d()
        a.label('E_PRE')
        self.e_setup()
        a('s_waitcnt lgkmcnt(0)'); a('s_barrier')
        def pre(track):
            for k in range(M['e_prea']):
                for o in self.e_a_ops(k):
                    for x in o[0]: a(x)
                    if track: a.vmem(o[1], ('A', k))
                    else: a(o[1])
        a('s_lshr_b32 s70, s36, 1'); a(f's_add_u32 s70, s70, {C_CA}'); a('s_lshl_b32 s70, s70, 8')
        a(f's_mov_b32 s71, {103*256}'); a('s_cmp_ge_u32 s2, 224'); a('s_cselect_b32 s74, s71, s74')
        self.stamp()
        self.handoff(74, [(70, 1, 14)], pre=pre, npre=2*M['e_prea'])
        self.stamp()
        self.phase_e()
        if M['stamp']:
            a('s_waitcnt vmcnt(0)'); self.stamp()
            a.srd(44, 4, WS_STAMP, 262144)
            a(f'v_lshlrev_b32 v0, 2, v{LANE}'); a('s_lshl_b32 s48, s2, 9'); a(f's_lshl_b32 s49, s{S_W}, 7'); a('s_add_u32 s48, s48, s49')
            a('s_mov_b64 exec, 0xffffffff')
            a(f'buffer_store_dword v{STV}, v0, s[44:47], s48 offen')
            a('s_add_u32 s48, s48, 131072'); a('buffer_store_dword v254, v0, s[44:47], s48 offen')
        a('s_waitcnt vmcnt(0)')
        a.label('K_END'); a('s_endpgm')
        for st, bk, p in self.stubs:
            a.label(st); a(f's_call_b64 s[{S_RET}:{S_RET+1}], RARE_{p}'); a(f's_branch {bk}')
        gen_rare(a, 0); gen_rare(a, 1)
        return a.text()

def make(path, **kw):
    M.update({k: v for k, v in kw.items() if k in M or k.startswith('c_')})
    B.CFG.update({k: v for k, v in kw.items() if k in B.CFG})
    m = Mega(); text = m.build()
    head = open('adaLN_cond__mha_block_cached__swiglu_ffn__prompt.s.ref').read().split('; Override launch')[0]
    s = head + f'; @launch grid=(256,1,1) block=(256,1,1) lds={M["lds"]}\n.amdgcn_target "amdgcn-amd-amdhsa--gfx950"\n' + text
    s += '.section .rodata,"a"\n' + kernel_desc(KN, 512, 102, 256)
    open(path, 'w').write(s)
    return m.nst
if __name__ == '__main__':
    import sys
    kw = {}
    for kv in sys.argv[2:]:
        k, v = kv.split('=', 1); kw[k] = eval(v)
    print('stamps', make(sys.argv[1], **kw))
```

```python
from asmlib import *
from gen import *

CFG = dict(abl_v=False, abl_k=False, abl_add=False, abl_exp=False, nodma=False, nobar=False, stagger=False, budget=24, backlog=3, pre_x=14, pre_w=16, qp_slots=(0,2,4,6), verbose=False,
  vrd=[0,1,1,2,3,3,4,5,5,6,7,7,8,9,9,10], krd=[17,18,19,21,22,23,25,26], dma=[17,20,24,28], pfgap=12)
OFFSET = 96.0
THR = 2.0**64

S   = [0, 32]
NEGM = 64
P   = [96, 112]
T   = 128
KAD = 224
VAD = 232
VOK = 236
VOV = 240
LT  = [241, 242]
LR  = [243, 244]
LANE = 245
TMP = 246
def OA(q, dt): return (q*4+dt)*16
def QF(q, s): return 128 + (q*8+s)*4
def KF(s): return 192 + 4*s
def VF(t, dt): return 224 + (t*4+dt)*4

S_W=3; S_H=36; S_QB=37; S_RT=38; S_KOFF=39; S_VOFF=40; S_M0=41; S_CNT=42; S_T=43; S_THR=44; S_RET=46
S_PF=50; S_PFM=51
SRD_K=12; SRD_V=16; SRD_WQ=20; SRD_XN=24; SRD_O=28; SRD_MP=32
VBASE = 65536
GSBASE = 131072

def mfma(d, a_, b, c):
    return f'v_mfma_f32_32x32x16_bf16 {d}, {a_}, {b}, {c}'

def softmax_ops(p):
    pairs = []
    for q in range(2):
        for pr in range(8):
            t0 = T + 2*((q*8+pr) % 4); t1 = t0+1
            r = S[p] + q*16 + 2*pr
            e0 = f'v_exp_f32 v{t0}, v{r}'
            e1 = f'v_exp_f32 v{t1}, v{r+1}'
            if pr == 0:
                adds = [f'v_add_f32 v{LT[q]}, v{t0}, v{t1}']
            else:
                adds = [f'v_add_f32 v{LT[q]}, v{LT[q]}, v{t0}', f'v_add_f32 v{LT[q]}, v{LT[q]}, v{t1}']
            cvt = f'v_cvt_pk_bf16_f32 v{P[p]+q*8+pr}, v{t0}, v{t1}'
            pairs.append((e0, e1, adds, cvt))
    return pairs

EXP_GAP = list(range(16)) + [16,16,17,18,19,19,20,21,22,22,23,24,25,25,26,27]
VRD_GAP = [0,0,1,2,3,3,4,5,6,6,7,8,9,9,10,11]
KRD_GAP = [17,18,19,20,21,22,23,24]
DMA_GAP = [17,20,24,28]

def k_read(s, sub):
    slot = (sub >> 1) & 3
    return f'ds_read_b128 {ar(KF(s),4)}, v{KAD+s} offset:{slot*16384 + (sub&1)*8192}'
def v_read(t, dt, u, sub):
    slot = (sub >> 1) & 3
    return f'ds_read_b64_tr_b16 {ar(VF(t,dt)+2*u,2)}, v{VAD+dt} offset:{slot*16384 + (sub&1)*8192 + (16*t+8*u)*256}'

def dma_kv(a, which, tile, i):
    slot = tile & 3
    out = []
    if i == 0:
        base = (0 if which == 'K' else VBASE) + slot*16384
        out.append(f's_add_u32 m0, s{S_M0}, {base}')
    return out

def gen_iter(a, j, do_qk=True, do_pv=True, do_kread=True, do_vread=True, do_sm=True,
             barrier=None, dmaK=None, dmaV=None, lsum_prev=True, stubs=None, cfg=None, pf=False, wshift=0, pv_zero=False):
    p = j & 1
    B = CFG['budget']
    mem = [[] for _ in range(33)]
    val = [[] for _ in range(33)]
    cost = [0]*33
    mf = []
    for s in range(8):
        for q in range(2):
            d = vr(S[1-p]+q*16, 16)
            c = vr(NEGM+q*16, 16) if s == 0 else d
            mf.append(mfma(d, ar(KF(s),4), ar(QF(q,s),4), c) if do_qk else None)
    for t in range(2):
        for dt in range(4):
            for q in range(2):
                d = ar(OA(q,dt),16)
                mf.append(mfma(d, ar(VF(t,dt),4), vr(P[1-p]+q*8+t*4,4), '0' if (pv_zero and t == 0) else d) if do_pv else None)
    cost[15] += 4; cost[31] += 8
    if barrier is not None: cost[15] += 4
    if do_vread and not CFG.get('abl_v'):
        k = 0
        for t in range(2):
            for dt in range(4):
                for u in range(2):
                    g = CFG['vrd'][k]; mem[g].append(v_read(t, dt, u, j-1)); cost[g] += 4; k += 1
    if do_kread and not CFG.get('abl_k'):
        for s in range(8):
            g = CFG['krd'][s]; mem[g].append(k_read(s, j+2)); cost[g] += 4
    for which, tile in (('K', dmaK), ('V', dmaV)):
        if tile is None or CFG['nodma']: continue
        slot = tile & 3
        base = (0 if which == 'K' else VBASE) + slot*16384
        srd = SRD_K if which == 'K' else SRD_V
        soff = S_KOFF if which == 'K' else S_VOFF
        DG = [g + wshift for g in CFG['dma']]
        mem[DG[0]-1].append(f's_add_u32 m0, s{S_M0}, {base}'); cost[DG[0]-1] += 2
        for i in range(4):
            vo = VOK+i if which == 'K' else VOV
            mem[DG[i]].insert(0, f'buffer_load_dwordx4 v{vo}, s[{srd}:{srd+3}], s{soff} offen offset:{1024*i} lds'); cost[DG[i]] += 15
        mem[DG[3]].append(f's_add_u32 s{soff}, s{soff}, 16384'); cost[DG[3]] += 2
    if pf and not CFG['nodma']:
        g = CFG['pfgap']+wshift
        mem[g-1].append(f's_mov_b32 m0, s{S_PFM}'); cost[g-1] += 2
        mem[g].insert(0, f'buffer_load_dwordx4 v221, s[56:59], s{S_PF} offen lds'); cost[g] += 15
        mem[g].append(f's_add_u32 s{S_PF}, s{S_PF}, 0x100000'); cost[g] += 2
    if lsum_prev:
        val[0].append(f'v_add_f32 v{LR[0]}, v{LR[0]}, v{LT[0]}'); val[0].append(f'v_add_f32 v{LR[1]}, v{LR[1]}, v{LT[1]}'); cost[0] += 8
    if do_sm:
        prs = softmax_ops(p)
        if CFG.get('abl_add'): prs = [(e0, e1, [], cvt) for (e0, e1, adds, cvt) in prs]
        if CFG.get('abl_exp'): prs = [(e0.replace('v_exp_f32', 'v_mov_b32'), e1.replace('v_exp_f32', 'v_mov_b32'), adds, cvt) for (e0, e1, adds, cvt) in prs]
        exps = []
        for k, (e0, e1, adds, cvt) in enumerate(prs): exps += [(k, 0, e0), (k, 1, e1)]
        post = []
        ei = 0
        inflight = 0
        g = 0
        done_pairs = 0
        pair_gap = {}
        def can_exp():
            if ei >= len(exps): return False
            k, h, txt = exps[ei]
            if h == 0 and k >= 4 and any(pp[2] == k-4 for pp in post): return False
            return cost[g] + 8 <= B
        def put_exp():
            nonlocal ei
            k, h, txt = exps[ei]
            val[g].append(txt); cost[g] += 8; ei += 1
            if h == 1:
                e0, e1, adds, cvt = prs[k]
                for x in adds: post.append((g+1, x, k))
                post.append((g+1, cvt, k))
        while (ei < len(exps) or post) :
            assert g < 31, ('softmax does not fit', cost)
            nready = sum(1 for pp in post if pp[0] <= g)
            if nready <= CFG['backlog'] and can_exp(): put_exp()
            while True:
                rem = B - cost[g]
                if post and post[0][0] <= g and rem >= 4:
                    val[g].append(post.pop(0)[1]); cost[g] += 4
                elif can_exp(): put_exp()
                else: break
            g += 1
        last = g-1
        gchk = max(last+1, 29)
        assert gchk <= 30
        val[gchk].append(f'v_max_f32 v{TMP}, v{LT[0]}, v{LT[1]}')
        val[31].append(f'v_cmp_lt_f32 vcc, s{S_THR}, v{TMP}')
        if CFG.get('verbose'): print('iter', j, 'costs', cost[:32], 'last', last)
    for g in range(32):
        if g == 0:
            a('s_waitcnt lgkmcnt(0)')
        if g == 16:
            if barrier is not None:
                a(f's_waitcnt vmcnt({barrier}) lgkmcnt(0)')
                if not CFG['nobar']: a('s_barrier')
            else:
                a('s_waitcnt lgkmcnt(0)')
        if mf[g] is not None: a(mf[g])
        for x in mem[g]: a(x)
        for x in val[g]: a(x)
    if do_sm:
        st = a.newlabel('RSTUB'); bk = a.newlabel('RBACK')
        a(f's_cbranch_vccnz {st}')
        a.label(bk)
        stubs.append((st, bk, p))

def gen_rare(a, p):
    a.label(f'RARE_{p}')
    a.nop(20)
    m = TMP+1; t2 = TMP+2; dl = TMP+3; f = TMP+4; x = TMP+5
    for q in range(2):
        sc = S[p]+q*16; sn = S[1-p]+q*16
        a(f'v_max3_f32 v{m}, v{sc}, v{sc+1}, v{sc+2}')
        for r in range(3, 15, 2):
            a(f'v_max3_f32 v{m}, v{m}, v{sc+r}, v{sc+r+1}')
        a(f'v_max_f32 v{m}, v{m}, v{sc+15}')
        a(f'v_mov_b32 v{t2}, v{m}')
        a('s_nop 1')
        a(f'v_permlane32_swap_b32 v{t2}, v{m}')
        a('s_nop 1')
        a(f'v_max_f32 v{m}, v{m}, v{t2}')
        a(f'v_add_f32 v{dl}, {f2u(OFFSET)}, v{m}')
        a(f'v_max_f32 v{dl}, 0, v{dl}')
        a(f'v_sub_f32 v{f}, 0, v{dl}')
        a(f'v_exp_f32 v{f}, v{f}')
        a('s_nop 0')
        for dt in range(4):
            for r in range(16):
                ra = OA(q,dt)+r
                a(f'v_accvgpr_read_b32 v{x}, a{ra}')
                a(f'v_mul_f32 v{x}, v{x}, v{f}')
                a(f'v_accvgpr_write_b32 a{ra}, v{x}')
        a(f'v_mul_f32 v{LR[q]}, v{LR[q]}, v{f}')
        for r in range(16):
            a(f'v_sub_f32 v{NEGM+q*16+r}, v{NEGM+q*16+r}, v{dl}')
            a(f'v_sub_f32 v{sn+r}, v{sn+r}, v{dl}')
            a(f'v_sub_f32 v{sc+r}, v{sc+r}, v{dl}')
        for pr in range(8):
            a(f'v_exp_f32 v{T}, v{sc+2*pr}')
            a(f'v_exp_f32 v{T+1}, v{sc+2*pr+1}')
            a('s_nop 0')
            if pr == 0:
                a(f'v_add_f32 v{LT[q]}, v{T}, v{T+1}')
            else:
                a(f'v_add_f32 v{LT[q]}, v{LT[q]}, v{T}')
                a(f'v_add_f32 v{LT[q]}, v{LT[q]}, v{T+1}')
            a(f'v_cvt_pk_bf16_f32 v{P[p]+q*8+pr}, v{T}, v{T+1}')
    a('s_nop 1')
    a(f's_setpc_b64 s[{S_RET}:{S_RET+1}]')

def gen_kb(stamp=False, PF=True, OSC=''):
    a = Asm()
    a.raw(kernel_head('kb_kernel'))
    a('s_cmp_ge_u32 s2, 256')
    a('s_cbranch_scc1 KB_END')
    a(f's_load_dwordx2 s[4:5], s[0:1], {KA_WS}')
    a(f's_load_dwordx2 s[6:7], s[0:1], {KA_K}')
    a(f's_load_dwordx2 s[8:9], s[0:1], {KA_V}')
    a(f's_load_dwordx2 s[10:11], s[0:1], {KA_WQ}')
    nst = [0]
    def st():
        if stamp:
            a(f's_memtime s[{64+2*nst[0]}:{65+2*nst[0]}]'); a(f's_memrealtime s[{76+2*nst[0]}:{77+2*nst[0]}]'); nst[0] += 1
    if stamp:
        a('s_memrealtime s[60:61]')
    st()
    a(f's_and_b32 s{S_H}, s2, 31')
    a(f's_lshr_b32 s{S_QB}, s2, 5')
    a('v_lshrrev_b32 v1, 6, v0')
    a(f'v_and_b32 v{LANE}, 63, v0')
    a('s_nop 0')
    a(f'v_readfirstlane_b32 s{S_W}, v1')
    a('s_nop 3')
    a(f's_lshl_b32 s{S_RT}, s{S_QB}, 3')
    a(f's_lshl_b32 s{S_T}, s{S_W}, 1')
    a(f's_add_u32 s{S_RT}, s{S_RT}, s{S_T}')
    a(f's_lshl_b32 s{S_M0}, s{S_W}, 12')
    a(f's_mov_b32 s{S_KOFF}, s{S_M0}')
    a(f's_mov_b32 s{S_VOFF}, s{S_M0}')
    a(f's_mov_b32 s{S_THR}, {f2u(THR)}')
    if PF:
        a(f's_load_dwordx2 s[56:57], s[0:1], {KA_WO}')
        a(f's_load_dwordx2 s[90:91], s[0:1], {KA_WG}')
        a(f's_load_dwordx2 s[92:93], s[0:1], {KA_WU}')
        a(f's_load_dwordx2 s[94:95], s[0:1], {KA_WD}')
        a('s_mov_b32 s58, 4194304'); a('s_mov_b32 s59, 0x00020000')
        a('s_mov_b32 s96, 1835008'); a('s_mov_b32 s97, 1835008'); a('s_mov_b32 s98, 1835008')
        a(f's_lshl_b32 s{S_PF}, s2, 12'); a(f's_lshl_b32 s{S_PFM}, s{S_W}, 10'); a(f's_add_u32 s{S_PF}, s{S_PF}, s{S_PFM}')
        a(f's_add_u32 s{S_PFM}, s{S_PFM}, 135168')
    a('s_waitcnt lgkmcnt(0)')
    a(f's_lshl_b32 s{S_T}, s{S_H}, 19')
    a.srd(SRD_K, 6, f's{S_T}', 524288)
    a.srd(SRD_V, 8, f's{S_T}', 524288)
    a.srd(SRD_WQ, 10, 0, 4194304)
    a.srd(SRD_XN, 4, WS_XN, 2097152)
    a.srd(SRD_O, 4, WS_O, 16777216)
    a.srd(SRD_MP, 4, WS_MODP, 49152)
    L = LANE
    vg, vhf, vch, vrr, vc, vt, vu = 200, 201, 202, 203, 204, 205, 206
    a(f'v_lshrrev_b32 v{vg}, 4, v{L}')
    a(f'v_lshrrev_b32 v{vhf}, 5, v{L}')
    a(f'v_and_b32 v{vch}, 1, v{vg}')
    a(f'v_bfe_u32 v{vrr}, v{L}, 2, 2')
    a(f'v_and_b32 v{vc}, 3, v{L}')
    a(f'v_and_b32 v{vt}, 15, v{L}')
    a(f'v_lshlrev_b32 v{vu}, 2, v{vg}')
    a(f'v_xor_b32 v{vu}, v{vt}, v{vu}')
    a(f'v_lshlrev_b32 v{vu}, 4, v{vu}')
    a(f'v_lshlrev_b32 v{VOV}, 8, v{vg}')
    a(f'v_add_u32 v{VOV}, v{VOV}, v{vu}')
    WOFF = 222
    a(f'v_lshlrev_b32 v{WOFF}, 13, v{vg}')
    a(f'v_add_u32 v{WOFF}, v{WOFF}, v{vu}')
    for i in range(4):
        a(f'v_add_u32 v{vu}, {4*i}, v{vg}')
        a(f'v_xor_b32 v{vu}, v{vt}, v{vu}')
        a(f'v_lshlrev_b32 v{vu}, 4, v{vu}')
        a(f'v_lshlrev_b32 v{VOK+i}, 8, v{vg}')
        a(f'v_add_u32 v{VOK+i}, v{VOK+i}, v{vu}')
    a(f'v_and_b32 v{vt}, 31, v{L}')
    for s in range(8):
        a(f'v_add_u32 v{vu}, {2*s}, v{vhf}')
        a(f'v_and_b32 v{KAD+s}, 15, v{vt}')
        a(f'v_xor_b32 v{vu}, v{vu}, v{KAD+s}')
        a(f'v_lshlrev_b32 v{vu}, 4, v{vu}')
        a(f'v_lshlrev_b32 v{KAD+s}, 8, v{vt}')
        a(f'v_add_u32 v{KAD+s}, v{KAD+s}, v{vu}')
    WAD = 216
    for dt in range(4):
        a(f'v_xor_b32 v{vt}, {dt}, v{vrr}')
        a(f'v_lshlrev_b32 v{vt}, 2, v{vt}')
        a(f'v_lshlrev_b32 v{vu}, 1, v{vch}')
        a(f'v_add_u32 v{vt}, v{vt}, v{vu}')
        a(f'v_lshrrev_b32 v{vu}, 1, v{vc}')
        a(f'v_add_u32 v{vu}, v{vt}, v{vu}')
        a(f'v_lshlrev_b32 v{vu}, 4, v{vu}')
        a(f'v_and_b32 v207, 1, v{vc}')
        a(f'v_lshlrev_b32 v207, 3, v207')
        a(f'v_add_u32 v{vu}, v{vu}, v207')
        a(f'v_lshlrev_b32 v207, 2, v{vhf}')
        a(f'v_add_u32 v207, v207, v{vrr}')
        a(f'v_lshlrev_b32 v207, 8, v207')
        a(f'v_add_u32 v{vu}, v{vu}, v207')
        a(f'v_add_u32 v{VAD+dt}, {VBASE}, v{vu}')
        a(f'v_and_b32 v{vu}, 1, v{vc}')
        a(f'v_add_u32 v{vu}, v{vt}, v{vu}')
        a(f'v_lshlrev_b32 v{vu}, 4, v{vu}')
        a(f'v_lshrrev_b32 v207, 1, v{vc}')
        a(f'v_lshlrev_b32 v207, 3, v207')
        a(f'v_add_u32 v{vu}, v{vu}, v207')
        a(f'v_lshlrev_b32 v207, 3, v{vhf}')
        a(f'v_add_u32 v207, v207, v{vrr}')
        a(f'v_lshlrev_b32 v207, 8, v207')
        a(f'v_add_u32 v{WAD+dt}, v{vu}, v207')
    GSA = 220; XOFF = 221
    a(f'v_lshlrev_b32 v{GSA}, 5, v{vhf}')
    a(f'v_add_u32 v{GSA}, {GSBASE}, v{GSA}')
    a(f'v_lshlrev_b32 v{XOFF}, 4, v{L}')
    a('v_lshlrev_b32 v223, 3, v0')
    for kq in range(4):
        a(f's_mov_b32 s{S_T}, {kq*12288}')
        a.vmem(f'buffer_load_dwordx2 v[{160+2*kq}:{161+2*kq}], v223, s[{SRD_MP}:{SRD_MP+3}], s{S_T} offen', 'mod')
        a.vmem(f'buffer_load_dwordx2 v[{168+2*kq}:{169+2*kq}], v223, s[{SRD_MP}:{SRD_MP+3}], s{S_T} offen offset:2048', 'mod')
    S_WS = 45; S_W1K = 89; S_WB = 99
    a(f's_lshl_b32 s{S_W1K}, s{S_W}, 10')
    a(f's_lshl_b32 s{S_WB}, s{S_W}, 15'); a(f's_lshl_b32 s{S_T}, s{S_H}, 8'); a(f's_add_u32 s{S_WB}, s{S_WB}, s{S_T}')
    RING = 20
    S_XO = 48
    a(f's_lshl_b32 s{S_XO}, s{S_RT}, 15')
    a(f's_add_u32 s{S_XO+1}, s{S_XO}, 32768')
    def w_ops(m):
        return ([f's_add_u32 m0, s{S_W1K}, {m*4096}', f's_add_u32 s{S_T}, s{S_WB}, {m*131072}'],
                f'buffer_load_dwordx4 v{WOFF}, s[{SRD_WQ}:{SRD_WQ+3}], s{S_T} offen lds')
    def x_ops(s, q):
        r = 8*(s % RING) + 4*q
        return ([f's_add_u32 s{S_T}, s{S_XO+q}, {(s//4)*4096}'],
                f'buffer_load_dwordx4 v[{r}:{r+3}], v{XOFF}, s[{SRD_XN}:{SRD_XN+3}], s{S_T} offen offset:{(s%4)*1024}')
    def kv_ops(which, tile, i):
        base = (0 if which == 'K' else VBASE) + (tile & 3)*16384
        srd = SRD_K if which == 'K' else SRD_V
        vo = VOK+i if which == 'K' else VOV
        return ([f's_add_u32 m0, s{S_M0}, {base}', f's_add_u32 s{S_T}, s{S_M0}, {tile*16384}'],
                f'buffer_load_dwordx4 v{vo}, s[{srd}:{srd+3}], s{S_T} offen offset:{1024*i} lds')
    def emit_item(ops, tag):
        for x in ops[0]: a(x)
        a.vmem(ops[1], tag)
    PRE_X = CFG['pre_x']; PRE_W = CFG['pre_w']
    for m in range(4): emit_item(w_ops(m), ('W', m))
    for s in range(PRE_X):
        for q in range(2): emit_item(x_ops(s, q), ('X', s))
    for m in range(4, PRE_W): emit_item(w_ops(m), ('W', m))
    a.wait_vm('mod')
    for c_ in range(2):
        a(f'v_add_f32 v{160+c_}, v{160+c_}, v{162+c_}'); a(f'v_add_f32 v{164+c_}, v{164+c_}, v{166+c_}')
        a(f'v_add_f32 v{160+c_}, v{160+c_}, v{164+c_}')
        a(f'v_add_f32 v{168+c_}, v{168+c_}, v{170+c_}'); a(f'v_add_f32 v{172+c_}, v{172+c_}, v{174+c_}')
        a(f'v_add_f32 v{168+c_}, v{168+c_}, v{172+c_}')
        round_bf16(a, 160+c_, 176)
        round_bf16(a, 168+c_, 176)
        a(f'v_add_f32 v{168+c_}, 1.0, v{168+c_}')
        round_bf16(a, 168+c_, 176)
    a(f'v_add_u32 v223, {GSBASE}, v223')
    a.lds('ds_write_b64 v223, v[168:169]')
    a.lds('ds_write_b64 v223, v[160:161] offset:2048')
    GSR = [160, 176]
    HF = [192, 200]
    TT = 208
    WF = [192, 208]
    def gs_read_ops(s):
        b = GSR[s&1]
        return [f'ds_read_b128 v[{b}:{b+3}], v{GSA} offset:{s*64}', f'ds_read_b128 v[{b+4}:{b+7}], v{GSA} offset:{s*64+16}',
                f'ds_read_b128 v[{b+8}:{b+11}], v{GSA} offset:{s*64+2048}', f'ds_read_b128 v[{b+12}:{b+15}], v{GSA} offset:{s*64+2048+16}']
    def w_read_ops(s):
        ops = []
        for dt in range(4):
            for u in range(2):
                r = WF[s&1] + dt*4 + 2*u
                ops.append(f'ds_read_b64_tr_b16 {ar(r,2)}, v{WAD+dt} offset:{(s%16)*4096 + 1024*u}')
        return ops
    def modulate_ops(s):
        ops = []
        b = GSR[s&1]
        for q in range(2):
            for k in range(4):
                x = 8*(s % RING) + 4*q + k
                t0 = TT + 2*((q*4+k) % 4); t1 = t0+1
                ops.append(f'v_lshlrev_b32 v{t0}, 16, v{x}')
                ops.append(f'v_and_b32 v{t1}, 0xffff0000, v{x}')
                ops.append(f'v_fma_f32 v{t0}, v{t0}, v{b+2*k}, v{b+8+2*k}')
                ops.append(f'v_fma_f32 v{t1}, v{t1}, v{b+2*k+1}, v{b+8+2*k+1}')
                ops.append(f'v_cvt_pk_bf16_f32 v{HF[s&1]+4*q+k}, v{t0}, v{t1}')
        return ops
    BARS = [3, 7, 15, 23, 31]
    def w_need(m):
        prev = -1
        for b in BARS:
            if m <= b: return prev
            prev = b
    Q = []
    for m in range(PRE_W, 32): Q.append((w_need(m)-0.5, -1, ('W', m), w_ops(m)))
    for s in range(PRE_X, 32):
        for q in range(2): Q.append((s-1, s-RING, ('X', s), x_ops(s, q)))
    for which, tile, av in (('K',0,7),('K',1,7),('K',2,15),('K',3,15),('V',0,23),('V',1,23),('V',2,31)):
        for i in range(4): Q.append((100, av, (which, tile), kv_ops(which, tile, i)))
    Q.sort(key=lambda x: x[0])
    def pop_q(s):
        for i, it in enumerate(Q):
            if it[1] <= s: return Q.pop(i)
        return None
    a.wait_vm([('W', 3), ('X', 0)])
    a.wait_lg0()
    a('s_barrier')
    if stamp: st()
    for op in gs_read_ops(0): a.lds(op, ('G', 0))
    for op in gs_read_ops(1): a.lds(op, ('G', 1))
    for op in w_read_ops(0): a.lds(op, ('Wf', 0))
    a.wait_lg(('G', 0))
    for op in modulate_ops(0): a(op)
    for s in range(32):
        if s in BARS:
            nb = BARS[BARS.index(s)+1] if s < 31 else None
            if nb is not None:
                assert not any(it[2] == ('W', nb) for it in Q), (s, nb)
                a.wait_vm(('W', nb))
            a.wait_lg0()
            a('s_barrier')
        else:
            a.wait_lg(('Wf', s))
        if s == 15:
            for dt in range(4): a(f'v_add_u32 v{WAD+dt}, 65536, v{WAD+dt}')
        if s+1 < 32:
            assert not any(it[2] == ('X', s+1) for it in Q), s
            a.wait_vm(('X', s+1))
            a.wait_lg(('G', s+1))
            wr = w_read_ops(s+1)
            md = modulate_ops(s+1)
        else:
            wr, md = [], []
        gr = gs_read_ops(s+2) if s+2 < 32 else []
        mfs = []
        for dt in range(4):
            for q in range(2):
                d = ar(OA(q,dt),16)
                mfs.append(mfma(d, ar(WF[s&1]+dt*4,4), vr(HF[s&1]+4*q,4), '0' if s == 0 else d))
        if s+2 >= 32: a('s_nop 1')
        vg_ = CFG['qp_slots']
        for g in range(8):
            it = pop_q(s) if g in vg_ else None
            if it:
                for x in it[3][0]: a(x)
            a(mfs[g])
            if it: a.vmem(it[3][1], it[2])
            if g < 4:
                for op in wr[2*g:2*g+2]: a.lds(op, ('Wf', s+1))
            elif g < 6:
                for op in gr[2*(g-4):2*(g-4)+2]: a.lds(op, ('G', s+2))
            for op in md[5*g:5*g+5]: a(op)
    while Q:
        it = Q.pop(0); emit_item(it[3], it[2])
    a(f's_add_u32 s{S_KOFF}, s{S_M0}, {4*16384}')
    a(f's_add_u32 s{S_VOFF}, s{S_M0}, {3*16384}')
    st()
    a.nop(16)
    cs = 128**-0.5 * LOG2E
    a(f's_mov_b32 s{S_T}, {f2u(cs)}')
    for q in range(2):
        for dt in range(4):
            for t in range(2):
                for k in range(8):
                    a(f'v_accvgpr_read_b32 v{k}, a{OA(q,dt)+8*t+k}')
                for k in range(8):
                    a(f'v_mul_f32 v{k}, s{S_T}, v{k}')
                for k in range(4):
                    a(f'v_cvt_pk_bf16_f32 v{8+k}, v{2*k}, v{2*k+1}')
                for k in range(4):
                    a(f'v_accvgpr_write_b32 a{QF(q,2*dt+t)+k}, v{8+k}')
    for r in range(128): a(f'v_accvgpr_write_b32 a{r}, 0')
    a(f'v_mov_b32 v{LR[0]}, 0'); a(f'v_mov_b32 v{LR[1]}, 0')
    a.wait_vm(('V', 1))
    a('s_barrier')
    for s in range(8): a(k_read(s, 0))
    a('s_waitcnt lgkmcnt(0)')
    for s in range(8):
        for q in range(2):
            d = vr(S[0]+q*16, 16)
            a(mfma(d, ar(KF(s),4), ar(QF(q,s),4), '0' if s == 0 else d))
    for s in range(8): a(k_read(s, 1))
    a.nop(16)
    m = TMP+1; t2 = TMP+2
    for q in range(2):
        sc = S[0]+q*16
        a(f'v_max3_f32 v{m}, v{sc}, v{sc+1}, v{sc+2}')
        for r in range(3, 15, 2):
            a(f'v_max3_f32 v{m}, v{m}, v{sc+r}, v{sc+r+1}')
        a(f'v_max_f32 v{m}, v{m}, v{sc+15}')
        a(f'v_mov_b32 v{t2}, v{m}')
        a('s_nop 1')
        a(f'v_permlane32_swap_b32 v{t2}, v{m}')
        a('s_nop 1')
        a(f'v_max_f32 v{m}, v{m}, v{t2}')
        a(f'v_add_f32 v{m}, {f2u(OFFSET)}, v{m}')
        for r in range(16):
            a(f'v_sub_f32 v{NEGM+q*16+r}, 0, v{m}')
            a(f'v_sub_f32 v{sc+r}, v{sc+r}, v{m}')
    stubs = []
    st()
    gen_iter(a, 0, do_pv=False, do_vread=False, barrier=63, dmaK=4, lsum_prev=False, stubs=stubs)
    a(f's_mov_b32 s{S_CNT}, 7')
    nver = 4 if CFG['stagger'] else 1
    if nver > 1:
        for w in range(1, 4):
            a(f's_cmp_eq_u32 s{S_W}, {w}'); a(f's_cbranch_scc1 KB_LOOP{w}')
    for w in range(nver):
        a.raw('.p2align 6')
        a.label(f'KB_LOOP{w}')
        for jj in range(1, 9):
            j = jj
            T_ = j//2
            if j % 2 == 0:
                gen_iter(a, j, barrier=18 if PF else 16, dmaK=T_+4, stubs=stubs, wshift=w)
            else:
                gen_iter(a, j, dmaV=T_+3, stubs=stubs, pf=PF, wshift=w)
        if PF:
            a(f's_sub_u32 s{S_PF}, s{S_PF}, 0x400000')
            a('s_mov_b32 s56, s90'); a('s_mov_b32 s57, s91'); a('s_mov_b32 s90, s92'); a('s_mov_b32 s91, s93')
            a('s_mov_b32 s92, s94'); a('s_mov_b32 s93, s95')
            a('s_mov_b32 s58, s96'); a('s_mov_b32 s96, s97'); a('s_mov_b32 s97, s98'); a('s_mov_b32 s98, 0')
        a(f's_sub_u32 s{S_CNT}, s{S_CNT}, 1')
        a(f's_cmp_lg_u32 s{S_CNT}, 0')
        a(f's_cbranch_scc1 KB_LOOP{w}')
        if w < nver-1: a('s_branch KB_TAIL')
    a.label('KB_TAIL')
    gen_iter(a, 57, dmaV=31, stubs=stubs)
    gen_iter(a, 58, barrier=8, stubs=stubs)
    gen_iter(a, 59, stubs=stubs)
    gen_iter(a, 60, barrier=0, stubs=stubs)
    gen_iter(a, 61, stubs=stubs)
    gen_iter(a, 62, do_kread=False, stubs=stubs)
    gen_iter(a, 63, do_qk=False, do_kread=False, stubs=stubs)
    a(f'v_add_f32 v{LR[0]}, v{LR[0]}, v{LT[0]}')
    a(f'v_add_f32 v{LR[1]}, v{LR[1]}, v{LT[1]}')
    for t in range(2):
        for dt in range(4):
            for u in range(2):
                a(v_read(t, dt, u, 63))
    a('s_waitcnt lgkmcnt(0)')
    for t in range(2):
        for dt in range(4):
            for q in range(2):
                d = ar(OA(q,dt),16)
                a(mfma(d, ar(VF(t,dt),4), vr(P[1]+q*8+t*4,4), d))
    st()
    for q in range(2):
        xhalf_sum(a, LR[q], TMP)
        a(f'v_rcp_f32 v{LR[q]}, v{LR[q]}')
    a.nop(16)
    a(f's_lshl_b32 s{S_T}, s{S_RT}, 18')
    a(f's_lshl_b32 s{S_WS}, s{S_H}, 13')
    a(f's_add_u32 s{S_XO}, s{S_T}, s{S_WS}')
    a(f's_add_u32 s{S_XO+1}, s{S_XO}, {256*1024}')
    cnt = 0
    for q in range(2):
        for dt in range(4):
            for t in range(2):
                b = 16*(cnt % 4); cnt += 1
                for k in range(8):
                    a(f'v_accvgpr_read_b32 v{b+k}, a{OA(q,dt)+8*t+k}')
                for k in range(8):
                    a(f'v_mul_f32 v{b+k}, v{b+k}, v{LR[q]}')
                for k in range(4):
                    a(f'v_cvt_pk_bf16_f32 v{b+8+k}, v{b+2*k}, v{b+2*k+1}')
                ks = 2*dt+t
                a(f's_add_u32 s{S_T}, s{S_XO+q}, {(ks//4)*4096}')
                a(f'buffer_store_dwordx4 v[{b+8}:{b+11}], v{XOFF}, s[{SRD_O}:{SRD_O+3}], s{S_T} offen offset:{(ks%4)*1024} {OSC}')
    if stamp:
        a('s_waitcnt vmcnt(0)')
        st()
        a('s_memrealtime s[62:63]')
        a('s_waitcnt lgkmcnt(0)')
        a.srd(52, 4, WS_STAMP, 131072)
        a('v_mov_b32 v0, s60'); a('v_mov_b32 v1, s62')
        for k in range(nst[0]):
            a(f'v_mov_b32 v{2+k}, s{64+2*k}')
            a(f'v_mov_b32 v{8+k}, s{76+2*k}')
        a(f's_lshl_b32 s{S_T}, s2, 8'); a(f's_lshl_b32 s{S_WS}, s{S_W}, 6'); a(f's_add_u32 s{S_T}, s{S_T}, s{S_WS}')
        a('v_mov_b32 v20, 0')
        a('s_mov_b64 exec, 1')
        a(f'buffer_store_dwordx4 v[0:3], v20, s[52:55], s{S_T} offen')
        a(f'buffer_store_dwordx4 v[4:7], v20, s[52:55], s{S_T} offen offset:16')
        a(f'buffer_store_dwordx4 v[8:11], v20, s[52:55], s{S_T} offen offset:32')
        a(f'buffer_store_dwordx4 v[12:15], v20, s[52:55], s{S_T} offen offset:48')
    a('s_waitcnt vmcnt(0)')
    a.label('KB_END')
    a('s_endpgm')
    for st, bk, p in stubs:
        a.label(st)
        a(f's_call_b64 s[{S_RET}:{S_RET+1}], RARE_{p}')
        a(f's_branch {bk}')
    gen_rare(a, 0); gen_rare(a, 1)
    return a.text(), kernel_desc('kb_kernel', 512, 100, 256), 'kb_kernel grid=(256,1,1) block=(256,1,1) lds=139264'
```

```python
from asmlib import *
import gen
from gen import f2u, round_bf16, xhalf_sum, wave_allreduce_add, LOG2E, KA_X, KA_K, KA_V, KA_WQ, KA_WO, KA_WG, KA_WU, KA_WD, KA_C, KA_WMOD, KA_OUT, KA_DBG, KA_WS
import gen_b as B
from gen_b import mfma, S, NEGM, P, T, KAD, VAD, VOK, VOV, LT, LR, LANE, TMP, OA, QF, KF, VF, k_read, v_read, gen_iter, gen_rare
from gen_b import S_W, S_H, S_QB, S_RT, S_KOFF, S_VOFF, S_M0, S_CNT, S_T, S_THR, S_RET, S_PF, S_PFM, SRD_K, SRD_V, SRD_WQ, SRD_XN, SRD_O, SRD_MP, VBASE, OFFSET, THR
KN = 'adaLN_cond__mha_block_cached__swiglu_ffn__prompt_kernel'

WS_M1 = 0x0; WS_XN = 0x10000; WS_M2 = 0x220000; WS_SYNC = 0x300000
WS_O = 0x400000; WS_X1 = 0x1400000; WS_H2 = 0x1600000; WS_ACT = 0x1800000; WS_STAMP = 0x2000000; WS_P = 0x3000000
C_FG, C_M2, C_CO, C_CP, C_CH, C_CA, C_FG2 = 0, 8, 16, 48, 64, 80, 96
C_WDP = 104
WS_WDP = 0x2800000
SCR = 131072
GSBASE = SCR + 24576
T2B = SCR + 8192
TID = 255; STV = 253
SRD_SY = 60
M = dict(stamp=False, wdp=True, outsc='', lds=147456, e_prea=16, kvpf=True, kv_from=0, ldsc='sc1', w_early=16, la=2, tr_cap=3, c_prew=8, c_nv=2, c_prex=12, d_prex=12, e_depth=10, pre_x=10, qp_slots=(0, 2, 4, 6), spin=200000)

def allreduce_multi(a, xs, ts):
    pad = max(0, 2 - (len(xs)-1))
    for r in (8, 4, 2, 1):
        if pad: a(f's_nop {pad-1}')
        for x in xs: a(f'v_add_f32_dpp v{x}, v{x}, v{x} row_ror:{r} row_mask:0xf bank_mask:0xf')
    for op in ('v_permlane16_swap_b32', 'v_permlane32_swap_b32'):
        for x, t in zip(xs, ts): a(f'v_mov_b32 v{t}, v{x}')
        if pad: a(f's_nop {pad}')
        for x, t in zip(xs, ts): a(f'{op} v{t}, v{x}')
        a('s_nop 1')
        for x, t in zip(xs, ts): a(f'v_add_f32 v{x}, v{x}, v{t}')

class Mega:
    def __init__(self):
        self.a = Asm(); self.nst = 0
    def stamp(self):
        a = self.a
        if M['stamp']:
            a('s_memrealtime s[72:73]'); a('s_memtime s[100:101]'); a('s_waitcnt lgkmcnt(0)')
            a(f'v_writelane_b32 v{STV}, s72, {self.nst}'); a(f'v_writelane_b32 v254, s100, {self.nst}'); self.nst += 1
    def signal(self, idx_list, vm_allow=0):
        a = self.a
        a(f's_waitcnt vmcnt({vm_allow})'); a('s_barrier')
        l = a.newlabel('SIG')
        a(f's_cmp_lg_u32 s{S_W}, 0'); a(f's_cbranch_scc1 {l}')
        a('s_mov_b64 exec, 1')
        a('v_mov_b32 v251, 1')
        for s_ in idx_list:
            a(f'v_mov_b32 v252, s{s_}')
            a(f'buffer_atomic_add v251, v252, s[{SRD_SY}:{SRD_SY+3}], 0 offen sc1')
        a('s_mov_b64 exec, -1')
        a.label(l)
    def wait(self, specs):
        a = self.a
        l = a.newlabel('WDONE')
        a(f's_cmp_lg_u32 s{S_W}, 0'); a(f's_cbranch_scc1 {l}')
        for so, nl, target in specs:
            lp = a.newlabel('POLL'); ok = a.newlabel('POK')
            a(f's_mov_b64 exec, {(1 << nl)-1}')
            a(f'v_and_b32 v252, 63, v{TID}'); a('v_lshlrev_b32 v252, 8, v252'); a(f'v_add_u32 v252, s{so}, v252')
            a('s_mov_b32 s68, 0')
            a.label(lp)
            a(f'buffer_load_dword v251, v252, s[{SRD_SY}:{SRD_SY+3}], 0 offen sc1')
            a('s_waitcnt vmcnt(0)')
            a(f'v_cmp_le_u32 vcc, {target}, v251')
            a('s_add_u32 s68, s68, 1')
            a(f's_cmp_eq_u64 vcc, exec'); a(f's_cbranch_scc1 {ok}')
            a(f's_cmp_gt_u32 s68, {M["spin"]}'); a(f's_cbranch_scc1 {ok}')
            a('s_sleep 1'); a(f's_branch {lp}')
            a.label(ok)
        a('s_mov_b64 exec, -1')
        a.label(l)
        a('s_barrier')

    def wait_front(self, so):
        a = self.a
        l = a.newlabel('WDONE'); lp = a.newlabel('POLL'); ok = a.newlabel('POK')
        a(f's_cmp_lg_u32 s{S_W}, 0'); a(f's_cbranch_scc1 {l}')
        a('s_mov_b64 exec, 0x1ff')
        a(f'v_and_b32 v252, 63, v{TID}'); a(f'v_add_u32 v252, {C_M2-1}, v252'); a('v_lshlrev_b32 v252, 8, v252')
        a(f'v_mov_b32 v251, s{so}'); a(f'v_writelane_b32 v252, s{so}, 0')
        a('s_mov_b32 s68, 0')
        a.label(lp)
        a(f'buffer_load_dword v251, v252, s[{SRD_SY}:{SRD_SY+3}], 0 offen sc1')
        a('s_waitcnt vmcnt(0)')
        a('v_cmp_le_u32 vcc, 32, v251')
        a('s_add_u32 s68, s68, 1')
        a('s_cmp_eq_u64 vcc, exec'); a(f's_cbranch_scc1 {ok}')
        a(f's_cmp_gt_u32 s68, {M["spin"]}'); a(f's_cbranch_scc1 {ok}')
        a('s_sleep 1'); a(f's_branch {lp}')
        a.label(ok)
        a('s_mov_b64 exec, -1')
        a.label(l)
        a('s_barrier')

    def handoff(self, sig, specs, pre=None, npre=0, skip_cond=None, defer=False, vm_allow=0, sig2=None):
        a = self.a
        a(f's_waitcnt vmcnt({vm_allow})'); a('s_barrier'); a.vm = []
        l = a.newlabel('HW'); lo = a.newlabel('HO')
        a(f's_cmp_lg_u32 s{S_W}, 0'); a(f's_cbranch_scc1 {lo}')
        if sig is not None:
            a('s_mov_b64 exec, 1'); a('v_mov_b32 v251, 1'); a(f'v_mov_b32 v252, s{sig}')
            a(f'buffer_atomic_add v251, v252, s[{SRD_SY}:{SRD_SY+3}], 0 offen sc1')
            if sig2:
                a(f'v_mov_b32 v252, s{sig2}'); a(f'buffer_atomic_add v251, v252, s[{SRD_SY}:{SRD_SY+3}], 0 offen sc1')
        self.stamp_w0()
        for sp in specs:
            lp = a.newlabel('POLL'); ok = a.newlabel('POK')
            if sp[0] == 'multi':
                a('s_mov_b64 exec, 0x1ff')
                a(f'v_and_b32 v252, 63, v{TID}'); a(f'v_add_u32 v252, {sp[3]-1}, v252'); a('v_lshlrev_b32 v252, 8, v252'); a(f'v_writelane_b32 v252, s{sp[1]}, 0')
                a('v_mov_b32 v250, 32'); a(f's_mov_b32 s69, {sp[2]}'); a('s_nop 0'); a('v_writelane_b32 v250, s69, 0')
                tgt = 'v250'
            else:
                a('s_mov_b64 exec, 1'); a(f'v_mov_b32 v252, s{sp[0]}'); tgt = None
            a('s_mov_b32 s68, 0')
            a.label(lp)
            a(f'buffer_load_dword v251, v252, s[{SRD_SY}:{SRD_SY+3}], 0 offen sc1')
            a('s_waitcnt vmcnt(0)')
            a(f'v_cmp_le_u32 vcc, {tgt if tgt else sp[2]}, v251')
            a('s_add_u32 s68, s68, 1')
            a('s_cmp_eq_u64 vcc, exec'); a(f's_cbranch_scc1 {ok}')
            a(f's_cmp_gt_u32 s68, {M["spin"]}'); a(f's_cbranch_scc1 {ok}')
            a('s_sleep 1'); a(f's_branch {lp}')
            a.label(ok)
        a('s_mov_b64 exec, -1')
        a(f's_branch {l}')
        a.label(lo)
        if pre:
            if skip_cond: a(skip_cond); a(f's_cbranch_scc1 {l}')
            pre(True)
        a.label(l)
        if specs: a('s_barrier')
        def late():
            if pre:
                l2 = a.newlabel('HL')
                a(f's_cmp_lg_u32 s{S_W}, 0'); a(f's_cbranch_scc1 {l2}')
                if skip_cond: a(skip_cond); a(f's_cbranch_scc1 {l2}')
                pre(False)
                a.label(l2)
        if defer: return late
        late()
    def stamp_w0(self):
        pass

    def front(self):
        a = self.a; L = LANE
        a(f's_load_dwordx2 s[4:5], s[0:1], {KA_WS}')
        a(f's_load_dwordx2 s[6:7], s[0:1], {KA_C}'); a(f's_load_dwordx2 s[8:9], s[0:1], {KA_WMOD}'); a(f's_load_dwordx2 s[10:11], s[0:1], {KA_X}')
        a(f's_load_dwordx2 s[74:75], s[0:1], {KA_WQ}'); a(f's_load_dwordx2 s[76:77], s[0:1], {KA_DBG}')
        a(f's_load_dwordx2 s[78:79], s[0:1], {KA_K}'); a(f's_load_dwordx2 s[90:91], s[0:1], {KA_V}')
        a(f'v_mov_b32 v{TID}, v0')
        a('v_lshrrev_b32 v1, 6, v0'); a(f'v_and_b32 v{LANE}, 63, v0'); a('s_nop 0'); a(f'v_readfirstlane_b32 s{S_W}, v1')
        if M['stamp']: a(f'v_mov_b32 v{STV}, 0'); a('v_mov_b32 v254, 0')
        a(f's_and_b32 s{S_H}, s2, 31'); a(f's_lshr_b32 s{S_QB}, s2, 5')
        a(f'v_lshlrev_b32 v3, 4, v{LANE}')
        a(f'v_and_b32 v4, 3, v{TID}'); a('v_lshlrev_b32 v4, 4, v4'); a(f'v_lshrrev_b32 v5, 2, v{TID}')
        a('v_mul_u32_u24 v6, 49152, v5'); a('v_add_u32 v6, v6, v4'); a('v_lshlrev_b32 v7, 4, v5')
        a(f's_and_b32 s82, s{S_H}, 7'); a('s_lshl_b32 s82, s82, 2'); a(f's_lshr_b32 s83, s{S_H}, 3'); a('s_add_u32 s82, s82, s83')
        a('s_and_b32 s83, s2, 7'); a('s_lshl_b32 s83, s83, 5'); a('s_lshr_b32 s85, s2, 3'); a('s_add_u32 s83, s83, s85')
        a('s_lshl_b32 s84, s82, 6')
        a(f'v_mul_u32_u24 v67, 6144, v{TID}'); a('s_lshl_b32 s87, s83, 4'); a('s_add_u32 s87, s87, 2048'); a(f'v_lshlrev_b32 v68, 1, v{TID}')
        a('s_lshl_b32 s80, s2, 3'); a(f's_lshl_b32 s81, s{S_W}, 1'); a('s_add_u32 s80, s80, s81'); a('s_lshl_b32 s80, s80, 10')
        a('s_waitcnt lgkmcnt(0)')
        self.stamp()
        a.srd(12, 6, 0, 1024); a.srd(16, 8, 0, 3145728); a.srd(28, 10, 0, 2097152)
        a.vmem('buffer_load_dwordx4 v[16:19], v7, s[12:15], 0 offen', 'c1')
        for i in range(8):
            a(f's_add_u32 s86, s84, {i*6144}'); a.vmem(f'buffer_load_dwordx4 v[{20+4*i}:{23+4*i}], v6, s[16:19], s86 offen', 'w1')
        a.vmem('buffer_load_dwordx4 v[8:11], v3, s[28:31], s80 offen', 'x'); a.vmem('buffer_load_dwordx4 v[12:15], v3, s[28:31], s80 offen offset:1024', 'x')
        a.vmem('buffer_load_ushort v52, v68, s[12:15], 0 offen', 'c2'); a.vmem('buffer_load_ushort v53, v68, s[12:15], 0 offen offset:512', 'c2')
        for i in range(2):
            a(f's_add_u32 s86, s87, {i*256*6144}'); a.vmem(f'buffer_load_dwordx4 v[{56+4*i}:{59+4*i}], v67, s[16:19], s86 offen', 'w2')
        a.srd(SRD_WQ, 74, 0, 4194304)
        a(f's_cmp_eq_u32 s{S_W}, 0'); a('s_cbranch_scc1 F_NOW')
        a(f'v_lshrrev_b32 v70, 4, v{L}'); a(f'v_and_b32 v71, 15, v{L}'); a('v_lshlrev_b32 v72, 2, v70'); a('v_xor_b32 v72, v71, v72'); a('v_lshlrev_b32 v72, 4, v72')
        a('v_lshlrev_b32 v222, 13, v70'); a('v_add_u32 v222, v222, v72')
        a(f's_sub_u32 s89, s{S_W}, 1'); a('s_lshl_b32 s99, s89, 15'); a('s_lshl_b32 s89, s89, 10'); a(f's_lshl_b32 s{S_T}, s{S_H}, 8'); a(f's_add_u32 s99, s99, s{S_T}')
        for k in range(43):
            if k == 42:
                a(f's_cmp_eq_u32 s{S_W}, 3'); a('s_cbranch_scc1 F_NOW')
            a(f's_add_u32 m0, s89, {k*3072}'); a(f's_add_u32 s{S_T}, s99, {k*3*32768}')
            a(f'buffer_load_dwordx4 v222, s[{SRD_WQ}:{SRD_WQ+3}], s{S_T} offen lds')
        a.label('F_NOW')
        a.fake = 43
        if M['kvpf']:
            a(f's_lshl_b32 s44, s{S_H}, 19'); a(f's_lshl_b32 s45, s{S_QB}, 13'); a(f's_lshl_b32 s46, s{S_W}, 11'); a('s_add_u32 s45, s45, s46')
            a.srd(20, 78, 's44', 524288)
            a.vmem('buffer_load_dwordx4 v[148:151], v3, s[20:23], s45 offen', 'pf'); a.vmem('buffer_load_dwordx4 v[152:155], v3, s[20:23], s45 offen offset:1024', 'pf')
            a(f's_mul_i32 s45, s{S_QB}, 6144'); a(f's_mul_i32 s46, s{S_W}, 1536'); a('s_add_u32 s45, s45, s46')
            a.srd(20, 90, 's44', 524288)
            a.vmem('buffer_load_dwordx4 v[156:159], v3, s[20:23], s45 offen', 'pf'); a.vmem('buffer_load_dwordx4 v[160:163], v3, s[20:23], s45 offen offset:512', 'pf')
        a.srd(SRD_SY, 4, WS_SYNC, 28672); a.srd(64, 76, 0, 256); a.srd(SRD_XN, 4, WS_XN, 2097152); a.srd(SRD_WQ, 74, 0, 4194304)
        a.srd(SRD_MP, 4, 0, WS_M2 + 8192)
        a('s_cmp_lg_u32 s2, 0'); a('s_cbranch_scc1 F_NOZ')
        for k in range(4): a(f'v_mov_b32 v{72+k}, 0')
        a(f'v_lshlrev_b32 v76, 4, v{TID}')
        for k in range(7):
            a(f's_mov_b32 s{S_T}, {k*4096}'); a(f'buffer_store_dwordx4 v[72:75], v76, s[{SRD_SY}:{SRD_SY+3}], s{S_T} offen sc1')
        a('s_waitcnt vmcnt(0)'); a('s_barrier')
        a(f's_cmp_lg_u32 s{S_W}, 0'); a('s_cbranch_scc1 F_NOZ')
        a('s_mov_b64 exec, 1'); a('v_mov_b32 v72, 1'); a('v_mov_b32 v73, 0'); a('buffer_store_dword v72, v73, s[64:67], 0 offen sc1'); a('s_mov_b64 exec, -1')
        a.label('F_NOZ')
        def silu(vals):
            for i, r in enumerate(vals): a(f'v_mul_f32 v{124+i}, {f2u(-LOG2E)}, v{r}')
            for i, r in enumerate(vals): a(f'v_exp_f32 v{124+i}, v{124+i}')
            a('s_nop 0')
            for i, r in enumerate(vals): a(f'v_add_f32 v{124+i}, 1.0, v{124+i}')
            for i, r in enumerate(vals): a(f'v_rcp_f32 v{124+i}, v{124+i}')
            a('s_nop 0')
            for i, r in enumerate(vals): a(f'v_mul_f32 v{r}, v{r}, v{124+i}')
            for r in vals: round_bf16(a, r, 132)
        a.wait_vm('c1')
        for k in range(4):
            a(f'v_lshlrev_b32 v{100+2*k}, 16, v{16+k}'); a(f'v_and_b32 v{101+2*k}, 0xffff0000, v{16+k}')
        silu(list(range(100, 108)))
        a.wait_vm('w1')
        for i in range(8):
            for j in range(4):
                w = 20+4*i+j
                a(f'v_lshlrev_b32 v108, 16, v{w}'); a(f'v_and_b32 v109, 0xffff0000, v{w}')
                if i == 0: a(f'v_mul_f32 v{110+2*j}, v108, v100'); a(f'v_mul_f32 v{111+2*j}, v109, v100')
                else: a(f'v_fmac_f32 v{110+2*j}, v108, v{100+i}'); a(f'v_fmac_f32 v{111+2*j}, v109, v{100+i}')
        a('v_lshlrev_b32 v108, 7, v5'); a('v_lshlrev_b32 v109, 1, v4'); a('v_add_u32 v108, v108, v109'); a(f'v_add_u32 v108, {SCR}, v108')
        for j in range(4): a(f'ds_write_b64 v108, v[{110+2*j}:{111+2*j}] offset:{8*j}')
        a('s_waitcnt lgkmcnt(0)'); a('s_barrier')
        a(f's_cmp_lg_u32 s{S_W}, 0'); a('s_cbranch_scc1 F_NOT0')
        a(f'v_and_b32 v70, 31, v{L}'); a('v_lshlrev_b32 v70, 2, v70'); a(f'v_lshrrev_b32 v71, 5, v{L}'); a('v_lshlrev_b32 v71, 12, v71'); a('v_add_u32 v71, v71, v70'); a(f'v_add_u32 v71, {SCR}, v71')
        for r in range(32): a(f'ds_read_b32 v{20+r}, v71 offset:{128*r}')
        a('s_waitcnt lgkmcnt(0)')
        n = 32
        while n > 1:
            for r in range(n//2): a(f'v_add_f32 v{20+r}, v{20+r}, v{20+r+n//2}')
            n //= 2
        xhalf_sum(a, 20, 21)
        a(f's_lshl_b32 s44, s{S_QB}, 12'); a('s_lshl_b32 s45, s82, 7'); a('s_add_u32 s44, s44, s45')
        a('s_mov_b64 exec, 0xffffffff'); a(f'buffer_store_dword v20, v70, s[{SRD_MP}:{SRD_MP+3}], s44 offen sc1')
        a('s_mov_b64 exec, 1'); a('v_mov_b32 v252, 0'); a('s_mov_b32 s68, 0')
        a.label('F_ZP')
        a('buffer_load_dword v251, v252, s[64:67], 0 offen sc1'); a('s_waitcnt vmcnt(0)'); a('v_readfirstlane_b32 s69, v251')
        a('s_add_u32 s68, s68, 1'); a('s_cmp_lg_u32 s69, 0'); a('s_cbranch_scc1 F_ZD')
        a(f's_cmp_gt_u32 s68, {M["spin"]}'); a('s_cbranch_scc1 F_ZD'); a('s_sleep 1'); a('s_branch F_ZP')
        a.label('F_ZD')
        a(f's_lshl_b32 s70, s{S_QB}, 8'); a('v_mov_b32 v251, 1'); a('v_mov_b32 v252, s70')
        a(f'buffer_atomic_add v251, v252, s[{SRD_SY}:{SRD_SY+3}], 0 offen sc1')
        a('s_mov_b64 exec, -1')
        a.label('F_NOT0')
        self.stamp()
        a.wait_vm('x')
        for r in range(2):
            src = 8+4*r; X = 100+8*r
            for k in range(4):
                a(f'v_lshlrev_b32 v{X+2*k}, 16, v{src+k}'); a(f'v_and_b32 v{X+2*k+1}, 0xffff0000, v{src+k}')
            m = 116+r
            a(f'v_add_f32 v{m}, v{X}, v{X+1}')
            for k in range(2, 8): a(f'v_add_f32 v{m}, v{m}, v{X+k}')
        allreduce_multi(a, [116, 117], [118, 119])
        for r in range(2):
            X = 100+8*r; m = 116+r; v = 120+r
            a(f'v_mul_f32 v{m}, {f2u(1/512)}, v{m}')
            a(f'v_sub_f32 v118, v{X}, v{m}'); a(f'v_mul_f32 v{v}, v118, v118')
            for k in range(1, 8):
                a(f'v_sub_f32 v118, v{X+k}, v{m}'); a(f'v_fmac_f32 v{v}, v118, v118')
        allreduce_multi(a, [120, 121], [118, 119])
        for r in range(2):
            X = 100+8*r; m = 116+r; v = 120+r
            a(f'v_mul_f32 v{v}, {f2u(1/512)}, v{v}')
            round_bf16(a, v, 118); a(f'v_add_f32 v{v}, {f2u(1e-5)}, v{v}'); round_bf16(a, v, 118)
            a(f'v_sqrt_f32 v{v}, v{v}'); a('s_nop 0'); round_bf16(a, v, 118)
            a(f'v_rcp_f32 v{v}, v{v}'); round_bf16(a, m, 118)
            for k in range(4):
                a(f'v_sub_f32 v118, v{X+2*k}, v{m}'); a(f'v_sub_f32 v119, v{X+2*k+1}, v{m}')
                a('v_cvt_pk_bf16_f32 v122, v118, v119'); a('v_lshlrev_b32 v118, 16, v122'); a('v_and_b32 v119, 0xffff0000, v122')
                a(f'v_mul_f32 v118, v118, v{v}'); a(f'v_mul_f32 v119, v119, v{v}')
                a('v_cvt_pk_bf16_f32 v122, v118, v119'); a(f'v_lshlrev_b32 v{X+2*k}, 16, v122'); a(f'v_and_b32 v{X+2*k+1}, 0xffff0000, v122')
        a.vm = []
        self.stamp()
        a.fake = 0; a.vm = []
        a(f's_lshl_b32 s70, s{S_QB}, 8')
        self.wait([(70, 1, 32)])
        self.stamp()
        a(f'v_lshlrev_b32 v70, 5, v{L}'); a(f's_lshl_b32 s44, s{S_QB}, 12')
        a.vmem(f'buffer_load_dwordx4 v[20:23], v70, s[{SRD_MP}:{SRD_MP+3}], s44 offen sc1', 'g'); a.vmem(f'buffer_load_dwordx4 v[24:27], v70, s[{SRD_MP}:{SRD_MP+3}], s44 offen offset:16 sc1', 'g')
        a.vmem(f'buffer_load_dwordx4 v[28:31], v70, s[{SRD_MP}:{SRD_MP+3}], s44 offen offset:2048 sc1', 'g'); a.vmem(f'buffer_load_dwordx4 v[32:35], v70, s[{SRD_MP}:{SRD_MP+3}], s44 offen offset:2064 sc1', 'g')
        a.wait_vm('g')
        cs = 128**-0.5 * LOG2E
        for k in range(8):
            round_bf16(a, 20+k, 36); round_bf16(a, 28+k, 36)
            a(f'v_add_f32 v{28+k}, 1.0, v{28+k}'); round_bf16(a, 28+k, 36)
        for r in range(2):
            X = 100+8*r
            for k in range(8): a(f'v_fma_f32 v{X+k}, v{X+k}, v{28+k}, v{20+k}')
            for k in range(4): a(f'v_cvt_pk_bf16_f32 v{8+4*r+k}, v{X+2*k}, v{X+2*k+1}')
        a(f'v_lshlrev_b32 v118, 7, v{L}'); a(f's_lshl_b32 s44, s{S_W}, 5'); a(f's_add_u32 s44, s44, {SCR+8192}'); a('v_add_u32 v118, s44, v118')
        a('ds_write_b128 v118, v[8:11]'); a('ds_write_b128 v118, v[12:15] offset:16')
        a('s_waitcnt lgkmcnt(0)'); a('s_barrier')
        a(f'v_lshlrev_b32 v118, 4, v{TID}'); a(f'v_add_u32 v119, {SCR+8192}, v118')
        a('ds_read_b128 v[8:11], v119'); a('ds_read_b128 v[12:15], v119 offset:4096')
        a(f'v_lshrrev_b32 v119, 3, v{TID}'); a('v_lshlrev_b32 v119, 9, v119'); a(f'v_and_b32 v120, 7, v{TID}'); a('v_lshlrev_b32 v120, 4, v120'); a('v_add_u32 v119, v119, v120')
        a('s_lshr_b32 s44, s2, 2'); a('s_lshl_b32 s44, s44, 15'); a('s_and_b32 s45, s2, 3'); a('s_lshl_b32 s45, s45, 7'); a('s_add_u32 s44, s44, s45'); a('s_add_u32 s45, s44, 16384')
        a('s_waitcnt lgkmcnt(0)')
        a(f'buffer_store_dwordx4 v[8:11], v119, s[{SRD_XN}:{SRD_XN+3}], s44 offen sc1'); a(f'buffer_store_dwordx4 v[12:15], v119, s[{SRD_XN}:{SRD_XN+3}], s45 offen sc1')
        a(f's_add_u32 s70, s{S_QB}, {C_FG2}'); a('s_lshl_b32 s70, s70, 8')
        self.signal([70], vm_allow=0); a.vm = []
        a('v_lshlrev_b32 v134, 16, v52'); a('v_lshlrev_b32 v135, 16, v53')
        silu([134, 135])
        for i in range(2):
            for j in range(4):
                w = 56+4*i+j
                a(f'v_lshlrev_b32 v136, 16, v{w}'); a(f'v_and_b32 v137, 0xffff0000, v{w}')
                if i == 0: a(f'v_mul_f32 v{140+2*j}, v136, v134'); a(f'v_mul_f32 v{141+2*j}, v137, v134')
                else: a(f'v_fmac_f32 v{140+2*j}, v136, v135'); a(f'v_fmac_f32 v{141+2*j}, v137, v135')
        a('s_nop 1'); allreduce_multi(a, list(range(140, 148)), list(range(124, 132)))
        a(f's_lshl_b32 s44, s{S_W}, 5'); a(f's_add_u32 s44, s44, {SCR+4096}'); a('v_mov_b32 v136, s44')
        a('s_mov_b64 exec, 1'); a('ds_write_b128 v136, v[140:143]'); a('ds_write_b128 v136, v[144:147] offset:16'); a('s_mov_b64 exec, -1')
        a('s_waitcnt lgkmcnt(0)'); a('s_barrier')
        a(f's_cmp_lg_u32 s{S_W}, 1'); a('s_cbranch_scc1 F_NOT1')
        a(f'v_and_b32 v70, 7, v{L}'); a('v_lshlrev_b32 v70, 2, v70'); a(f'v_add_u32 v71, {SCR+4096}, v70')
        for w in range(4): a(f'ds_read_b32 v{20+w}, v71 offset:{32*w}')
        a('s_waitcnt lgkmcnt(0)')
        a('v_add_f32 v20, v20, v21'); a('v_add_f32 v22, v22, v23'); a('v_add_f32 v20, v20, v22')
        a('s_lshl_b32 s44, s83, 5'); a(f's_add_u32 s44, s44, {WS_M2}')
        a('s_mov_b64 exec, 0xff'); a(f'buffer_store_dword v20, v70, s[{SRD_MP}:{SRD_MP+3}], s44 offen sc1')
        a('s_mov_b64 exec, 1'); a('v_mov_b32 v252, 0'); a('s_mov_b32 s68, 0')
        a.label('F_ZP1')
        a('buffer_load_dword v251, v252, s[64:67], 0 offen sc1'); a('s_waitcnt vmcnt(0)'); a('v_readfirstlane_b32 s69, v251')
        a('s_add_u32 s68, s68, 1'); a('s_cmp_lg_u32 s69, 0'); a('s_cbranch_scc1 F_ZD1')
        a(f's_cmp_gt_u32 s68, {M["spin"]}'); a('s_cbranch_scc1 F_ZD1'); a('s_sleep 1'); a('s_branch F_ZP1')
        a.label('F_ZD1')
        a('s_and_b32 s71, s2, 7'); a(f's_add_u32 s71, s71, {C_M2}'); a('s_lshl_b32 s71, s71, 8'); a('v_mov_b32 v251, 1'); a('v_mov_b32 v252, s71')
        a(f'buffer_atomic_add v251, v252, s[{SRD_SY}:{SRD_SY+3}], 0 offen sc1')
        a('s_mov_b64 exec, -1')
        a.label('F_NOT1')
        self.stamp()

    def attention(self):
        a = self.a; L = LANE
        a(f's_load_dwordx2 s[6:7], s[0:1], {KA_K}'); a(f's_load_dwordx2 s[8:9], s[0:1], {KA_V}')
        a(f's_load_dwordx2 s[56:57], s[0:1], {KA_WO}'); a(f's_load_dwordx2 s[90:91], s[0:1], {KA_WG}'); a(f's_load_dwordx2 s[92:93], s[0:1], {KA_WU}'); a(f's_load_dwordx2 s[94:95], s[0:1], {KA_WD}')
        a(f's_lshl_b32 s{S_RT}, s{S_QB}, 3'); a(f's_lshl_b32 s{S_T}, s{S_W}, 1'); a(f's_add_u32 s{S_RT}, s{S_RT}, s{S_T}')
        a(f's_lshl_b32 s{S_M0}, s{S_W}, 12'); a(f's_mov_b32 s{S_THR}, {f2u(THR)}')
        a('s_mov_b32 s58, 4194304'); a('s_mov_b32 s59, 0x00020000')
        a('s_mov_b32 s96, 1835008'); a('s_mov_b32 s97, 1835008'); a('s_mov_b32 s98, 1835008')
        a(f's_lshl_b32 s{S_PF}, s2, 12'); a(f's_lshl_b32 s{S_PFM}, s{S_W}, 10'); a(f's_add_u32 s{S_PF}, s{S_PF}, s{S_PFM}'); a(f's_add_u32 s{S_PFM}, s{S_PFM}, {SCR}')
        vg, vhf, vch, vrr, vc, vt, vu = 200, 201, 202, 203, 204, 205, 206
        a(f'v_lshrrev_b32 v{vg}, 4, v{L}'); a(f'v_lshrrev_b32 v{vhf}, 5, v{L}'); a(f'v_and_b32 v{vch}, 1, v{vg}'); a(f'v_bfe_u32 v{vrr}, v{L}, 2, 2'); a(f'v_and_b32 v{vc}, 3, v{L}')
        a(f'v_and_b32 v{vt}, 15, v{L}'); a(f'v_lshlrev_b32 v{vu}, 2, v{vg}'); a(f'v_xor_b32 v{vu}, v{vt}, v{vu}'); a(f'v_lshlrev_b32 v{vu}, 4, v{vu}')
        a(f'v_lshlrev_b32 v{VOV}, 8, v{vg}'); a(f'v_add_u32 v{VOV}, v{VOV}, v{vu}')
        for i in range(4):
            a(f'v_add_u32 v{vu}, {4*i}, v{vg}'); a(f'v_xor_b32 v{vu}, v{vt}, v{vu}'); a(f'v_lshlrev_b32 v{vu}, 4, v{vu}')
            a(f'v_lshlrev_b32 v{VOK+i}, 8, v{vg}'); a(f'v_add_u32 v{VOK+i}, v{VOK+i}, v{vu}')
        a(f'v_and_b32 v{vt}, 31, v{L}')
        for s in range(8):
            a(f'v_add_u32 v{vu}, {2*s}, v{vhf}'); a(f'v_and_b32 v{KAD+s}, 15, v{vt}'); a(f'v_xor_b32 v{vu}, v{vu}, v{KAD+s}'); a(f'v_lshlrev_b32 v{vu}, 4, v{vu}')
            a(f'v_lshlrev_b32 v{KAD+s}, 8, v{vt}'); a(f'v_add_u32 v{KAD+s}, v{KAD+s}, v{vu}')
        WAD = 246
        for dt in range(4):
            a(f'v_xor_b32 v{vt}, {dt}, v{vrr}'); a(f'v_lshlrev_b32 v{vt}, 2, v{vt}'); a(f'v_lshlrev_b32 v{vu}, 1, v{vch}'); a(f'v_add_u32 v{vt}, v{vt}, v{vu}')
            a(f'v_lshrrev_b32 v{vu}, 1, v{vc}'); a(f'v_add_u32 v{vu}, v{vt}, v{vu}'); a(f'v_lshlrev_b32 v{vu}, 4, v{vu}')
            a(f'v_and_b32 v207, 1, v{vc}'); a('v_lshlrev_b32 v207, 3, v207'); a(f'v_add_u32 v{vu}, v{vu}, v207')
            a(f'v_lshlrev_b32 v207, 2, v{vhf}'); a(f'v_add_u32 v207, v207, v{vrr}'); a('v_lshlrev_b32 v207, 8, v207'); a(f'v_add_u32 v{vu}, v{vu}, v207')
            a(f'v_add_u32 v{VAD+dt}, {VBASE}, v{vu}')
            a(f'v_and_b32 v{vu}, 1, v{vc}'); a(f'v_add_u32 v{vu}, v{vt}, v{vu}'); a(f'v_lshlrev_b32 v{vu}, 4, v{vu}')
            a(f'v_lshrrev_b32 v207, 1, v{vc}'); a('v_lshlrev_b32 v207, 3, v207'); a(f'v_add_u32 v{vu}, v{vu}, v207')
            a(f'v_lshlrev_b32 v207, 3, v{vhf}'); a(f'v_add_u32 v207, v207, v{vrr}'); a('v_lshlrev_b32 v207, 8, v207'); a(f'v_add_u32 v{WAD+dt}, v{vu}, v207')
        XOFF = 221
        a(f'v_lshlrev_b32 v{XOFF}, 4, v{L}')
        a('s_waitcnt lgkmcnt(0)')
        a(f's_lshl_b32 s{S_T}, s{S_H}, 19')
        a.srd(SRD_K, 6, f's{S_T}', 524288); a.srd(SRD_V, 8, f's{S_T}', 524288); a.srd(SRD_O, 4, WS_O, 16777216)
        a(f's_add_u32 s70, s{S_QB}, {C_FG2}'); a('s_lshl_b32 s70, s70, 8')
        self.wait([(70, 1, 32)])
        self.stamp()
        S_XO = 48
        a(f's_lshl_b32 s{S_XO}, s{S_RT}, 15'); a(f's_add_u32 s{S_XO+1}, s{S_XO}, 32768')
        SLOTS = [8*i for i in range(8)] + [192, 200, 208]
        RING = len(SLOTS)
        def x_ops(s, q):
            r = SLOTS[s % RING] + 4*q
            return ([f's_add_u32 s{S_T}, s{S_XO+q}, {(s//4)*4096}'],
                    f'buffer_load_dwordx4 v[{r}:{r+3}], v{XOFF}, s[{SRD_XN}:{SRD_XN+3}], s{S_T} offen offset:{(s%4)*1024} {M["ldsc"]}')
        def kv_ops(which, tile, i):
            base = (0 if which == 'K' else VBASE) + (tile & 3)*16384
            srd = SRD_K if which == 'K' else SRD_V
            vo = VOK+i if which == 'K' else VOV
            return ([f's_add_u32 m0, s{S_M0}, {base}', f's_add_u32 s{S_T}, s{S_M0}, {tile*16384}'],
                    f'buffer_load_dwordx4 v{vo}, s[{srd}:{srd+3}], s{S_T} offen offset:{1024*i} lds')
        def emit_item(ops, tag):
            for x in ops[0]: a(x)
            a.vmem(ops[1], tag)
        PRE_X = min(M['pre_x'], RING)
        for s in range(PRE_X):
            for q in range(2): emit_item(x_ops(s, q), ('X', s))
        LA = 2; WF = [192, 208, 224]
        def QA(q, dt): return 64 + (q*4+dt)*16
        def w_read_ops(s):
            return [f'ds_read_b64_tr_b16 {ar(WF[s % 3] + dt*4 + 2*u,2)}, v{WAD+dt} offset:{(s%16)*4096 + 1024*u}' for dt in range(4) for u in range(2)]
        for s0 in range(LA):
            for op in w_read_ops(s0): a.lds(op, ('Wf', s0))
        BARS = [7, 15, 23, 31]
        Q = []
        for s in range(PRE_X, 32):
            for q in range(2): Q.append((s-1, s-RING+1, ('X', s), x_ops(s, q)))
        for which, tile, av in (('K',0,7),('K',1,7),('K',2,15),('K',3,15),('V',0,23),('V',1,23),('V',2,31)):
            for i in range(4): Q.append((100, max(av, M['kv_from']), (which, tile), kv_ops(which, tile, i)))
        Q.sort(key=lambda x: x[0])
        def pop_q(s):
            for i, it in enumerate(Q):
                if it[1] <= s: return Q.pop(i)
            return None
        bumped = False
        for s in range(32):
            assert not any(it[2] == ('X', s) for it in Q), s
            if s in BARS: a.wait_vm(('X', s)); a.wait_lg0(); a('s_barrier')
            else: a.wait_vm(('X', s)); a.wait_lg(('Wf', s))
            if s+LA == 16:
                for dt in range(4): a(f'v_add_u32 v{WAD+dt}, 65536, v{WAD+dt}')
            wr = w_read_ops(s+LA) if s+LA < 32 else []
            x = SLOTS[s % RING]
            mfs = [mfma(vr(QA(q,dt),16), ar(WF[s % 3]+dt*4,4), vr(x+4*q,4), '0' if s == 0 else vr(QA(q,dt),16)) for dt in range(4) for q in range(2)]
            ri = 0
            for g in range(8):
                it = pop_q(s) if g in M['qp_slots'] else None
                if it:
                    for t_ in it[3][0]: a(t_)
                a(mfs[g])
                if it: a.vmem(it[3][1], it[2])
                else:
                    for op in wr[ri:ri+2]: a.lds(op, ('Wf', s+LA))
                    ri += 2
            for op in wr[ri:]: a.lds(op, ('Wf', s+LA))
        while Q:
            it = Q.pop(0); emit_item(it[3], it[2])
        a(f's_add_u32 s{S_KOFF}, s{S_M0}, {4*16384}'); a(f's_add_u32 s{S_VOFF}, s{S_M0}, {3*16384}')
        self.stamp()
        a(f'v_mov_b32 v250, {f2u(128**-0.5 * LOG2E)}')
        a.nop(14)
        for q in range(2):
            for dt in range(4):
                for k in range(0, 16, 2):
                    r = QA(q,dt)+k
                    a(f'v_pk_mul_f32 v[{r}:{r+1}], v[{r}:{r+1}], v[250:251] op_sel_hi:[1,0]')
                for t in range(2):
                    b = 4*((2*dt+t) % 4)
                    for k in range(4): a(f'v_cvt_pk_bf16_f32 v{b+k}, v{QA(q,dt)+8*t+2*k}, v{QA(q,dt)+8*t+2*k+1}')
                    for k in range(4): a(f'v_accvgpr_write_b32 a{QF(q,2*dt+t)+k}, v{b+k}')
        a(f'v_mov_b32 v{LR[0]}, 0'); a(f'v_mov_b32 v{LR[1]}, 0')
        a.wait_vm(('V', 1)); a('s_barrier')
        for s in range(8): a(k_read(s, 0))
        a('s_waitcnt lgkmcnt(0)')
        for s in range(8):
            for q in range(2):
                d = vr(S[0]+q*16, 16); a(mfma(d, ar(KF(s),4), ar(QF(q,s),4), '0' if s == 0 else d))
        for s in range(8): a(k_read(s, 1))
        a.nop(16)
        m = TMP+1; t2 = TMP+2
        for q in range(2):
            sc = S[0]+q*16
            a(f'v_max3_f32 v{m}, v{sc}, v{sc+1}, v{sc+2}')
            for r in range(3, 15, 2): a(f'v_max3_f32 v{m}, v{m}, v{sc+r}, v{sc+r+1}')
            a(f'v_max_f32 v{m}, v{m}, v{sc+15}')
            a(f'v_mov_b32 v{t2}, v{m}'); a('s_nop 1'); a(f'v_permlane32_swap_b32 v{t2}, v{m}'); a('s_nop 1'); a(f'v_max_f32 v{m}, v{m}, v{t2}')
            a(f'v_add_f32 v{m}, {f2u(OFFSET)}, v{m}')
            for r in range(16):
                a(f'v_sub_f32 v{NEGM+q*16+r}, 0, v{m}'); a(f'v_sub_f32 v{sc+r}, v{sc+r}, v{m}')
        self.stubs = stubs = []
        self.stamp()
        gen_iter(a, 0, do_pv=False, do_vread=False, barrier=63, dmaK=4, lsum_prev=False, stubs=stubs)
        gen_iter(a, 1, dmaV=3, stubs=stubs, pf=True, pv_zero=True)
        if M.get('fine'): self.stamp()
        a(f's_mov_b32 s{S_CNT}, 7')
        a.raw('.p2align 6')
        a.label('KB_LOOP0')
        for j in range(2, 10):
            T_ = j//2
            if j % 2 == 0: gen_iter(a, j, barrier=18, dmaK=T_+4, stubs=stubs)
            else: gen_iter(a, j, dmaV=T_+3, stubs=stubs, pf=True)
            if j == 8:
                a(f's_sub_u32 s{S_PF}, s{S_PF}, 0x400000')
                a('s_mov_b32 s56, s90'); a('s_mov_b32 s57, s91'); a('s_mov_b32 s90, s92'); a('s_mov_b32 s91, s93'); a('s_mov_b32 s92, s94'); a('s_mov_b32 s93, s95')
                a('s_mov_b32 s58, s96'); a('s_mov_b32 s96, s97'); a('s_mov_b32 s97, s98'); a('s_mov_b32 s98, 0')
        a(f's_sub_u32 s{S_CNT}, s{S_CNT}, 1'); a(f's_cmp_lg_u32 s{S_CNT}, 0'); a('s_cbranch_scc1 KB_LOOP0')
        if M.get('fine'): self.stamp()
        gen_iter(a, 58, barrier=9, stubs=stubs); gen_iter(a, 59, stubs=stubs)
        gen_iter(a, 60, barrier=0, stubs=stubs); gen_iter(a, 61, stubs=stubs); gen_iter(a, 62, do_kread=False, stubs=stubs)
        gen_iter(a, 63, do_qk=False, do_kread=False, stubs=stubs)
        a(f'v_add_f32 v{LR[0]}, v{LR[0]}, v{LT[0]}'); a(f'v_add_f32 v{LR[1]}, v{LR[1]}, v{LT[1]}')
        for t in range(2):
            for dt in range(4):
                for u in range(2): a(v_read(t, dt, u, 63))
        a('s_waitcnt lgkmcnt(0)')
        for t in range(2):
            for dt in range(4):
                for q in range(2):
                    d = ar(OA(q,dt),16); a(mfma(d, ar(VF(t,dt),4), vr(P[1]+q*8+t*4,4), d))
        a('s_barrier')
        a.vm = []; a.lg = []
        self.stamp()
        for q in range(2):
            xhalf_sum(a, LR[q], TMP); a(f'v_rcp_f32 v{LR[q]}, v{LR[q]}')
        a.nop(16)
        S_WS = 45
        a(f's_lshl_b32 s{S_T}, s{S_RT}, 18'); a(f's_lshl_b32 s{S_WS}, s{S_H}, 13'); a(f's_add_u32 s{S_XO}, s{S_T}, s{S_WS}'); a(f's_add_u32 s{S_XO+1}, s{S_XO}, {256*1024}')
        cnt = 0
        for q in range(2):
            a(f'v_mov_b32 v250, v{LR[q]}')
            for dt in range(4):
                for t in range(2):
                    b = 16*(cnt % 4); cnt += 1
                    for k in range(8): a(f'v_accvgpr_read_b32 v{b+k}, a{OA(q,dt)+8*t+k}')
                    for k in range(0, 8, 2): a(f'v_pk_mul_f32 v[{b+k}:{b+k+1}], v[{b+k}:{b+k+1}], v[250:251] op_sel_hi:[1,0]')
                    for k in range(4): a(f'v_cvt_pk_bf16_f32 v{b+8+k}, v{b+2*k}, v{b+2*k+1}')
                    ks = 2*dt+t
                    a(f's_add_u32 s{S_T}, s{S_XO+q}, {(ks//4)*4096}')
                    a.vmem(f'buffer_store_dwordx4 v[{b+8}:{b+11}], v{XOFF}, s[{SRD_O}:{SRD_O+3}], s{S_T} offen offset:{(ks%4)*1024} sc1', 'ost')

    def lane_consts_vstyle(self, WAD, WOFF, rowstride, tmp):
        a = self.a; L = LANE
        vg, vhf, vch, vrr, vc, vt, vu, vw = range(tmp, tmp+8)
        a(f'v_lshrrev_b32 v{vg}, 4, v{L}'); a(f'v_lshrrev_b32 v{vhf}, 5, v{L}'); a(f'v_and_b32 v{vch}, 1, v{vg}')
        a(f'v_bfe_u32 v{vrr}, v{L}, 2, 2'); a(f'v_and_b32 v{vc}, 3, v{L}')
        a(f'v_and_b32 v{vt}, 15, v{L}'); a(f'v_lshlrev_b32 v{vu}, 2, v{vg}'); a(f'v_xor_b32 v{vu}, v{vt}, v{vu}'); a(f'v_lshlrev_b32 v{vu}, 4, v{vu}')
        a(f'v_mul_u32_u24 v{WOFF}, {rowstride}, v{vg}'); a(f'v_add_u32 v{WOFF}, v{WOFF}, v{vu}')
        for dt in range(4):
            a(f'v_xor_b32 v{vt}, {dt}, v{vrr}'); a(f'v_lshlrev_b32 v{vt}, 2, v{vt}'); a(f'v_lshlrev_b32 v{vu}, 1, v{vch}'); a(f'v_add_u32 v{vt}, v{vt}, v{vu}')
            a(f'v_lshrrev_b32 v{vu}, 1, v{vc}'); a(f'v_add_u32 v{vu}, v{vt}, v{vu}'); a(f'v_lshlrev_b32 v{vu}, 4, v{vu}')
            a(f'v_and_b32 v{vw}, 1, v{vc}'); a(f'v_lshlrev_b32 v{vw}, 3, v{vw}'); a(f'v_add_u32 v{vu}, v{vu}, v{vw}')
            a(f'v_lshlrev_b32 v{vw}, 2, v{vhf}'); a(f'v_add_u32 v{vw}, v{vw}, v{vrr}'); a(f'v_lshlrev_b32 v{vw}, 8, v{vw}')
            a(f'v_add_u32 v{WAD[0]+dt}, v{vu}, v{vw}'); a(f'v_add_u32 v{WAD[1]+dt}, 65536, v{WAD[0]+dt}')

    def shared_gemm(self, NK, NM, nmat, CH, w_dma_ops, x_load_ops, XRING, XR, WF, WAD, ACC, pre_x, nv, npre, LA=2):
        a = self.a
        chunk_bytes = nmat*CH*4096; NSLOT = 131072 // chunk_bytes; NCH = NK // CH
        NB = LA+1
        def emit(ops, tag):
            for x in ops[0]: a(x)
            a.vmem(ops[1], tag)
        for s in range(pre_x): emit(x_load_ops(s), ('X', s))
        a.wait_vm(('W', 0)); a('s_barrier')
        Q = []
        for c in range(npre, NCH):
            av = -1 if c < NSLOT else (c-NSLOT+1)*CH - LA
            for o in w_dma_ops(c): Q.append((c*CH-LA-2*CH, av, ('W', c), o))
        for s in range(pre_x, NK): Q.append((s-0.5-4, s-XRING+1, ('X', s), x_load_ops(s)))
        Q.sort(key=lambda x: x[0])
        def pop_q(s):
            for i, it in enumerate(Q):
                if it[1] <= s: return Q.pop(i)
            return None
        def w_read_ops(s):
            ops = []; c = s//CH; slot = c % NSLOT
            for gu in range(nmat):
                for dt in range(4):
                    for u in range(2):
                        off = slot*chunk_bytes + gu*CH*4096 + (s % CH)*4096 + u*2048
                        ops.append(f'ds_read_b64_tr_b16 {ar(WF[s % NB] + (gu*4+dt)*4 + 2*u,2)}, v{WAD[off>>16]+dt} offset:{off & 65535}')
            return ops
        half = NM
        for s0 in range(LA):
            for i, op in enumerate(w_read_ops(s0)): a.lds(op, ('Wf', s0, i//half))
        for s in range(NK):
            bar = ((s+LA) % CH == 0 and s+LA < NK)
            assert not any(it[2] == ('X', s) for it in Q), s
            if bar:
                c = (s+LA)//CH
                assert not any(it[2] == ('W', c) for it in Q), (s, c)
                a.wait_vm([('W', c), ('X', s)]); a.wait_lg0(); a('s_barrier')
            else:
                a.wait_vm(('X', s)); a.wait_lg(('Wf', s, 0))
            wr = w_read_ops(s+LA) if s+LA < NK else []
            x = XR + 4*(s % XRING)
            items = []
            for _ in range(nv):
                it = pop_q(s)
                if it: items.append(it)
            vg = list(range(0, NM, max(1, NM//max(1, nv))))[:len(items)] if items else []
            vg = [NM-1-g for g in vg]
            free = [g for g in range(NM) if g not in vg]
            nper = {g: 0 for g in range(NM)}
            rem = len(wr)
            cap = M['tr_cap']
            for g in free:
                k = min(cap, rem); nper[g] = k; rem -= k
            gi = 0; sv = sorted(vg) + free
            while rem:
                nper[sv[gi % len(sv)]] += 1; rem -= 1; gi += 1
            ri = 0; vi = 0
            for g in range(NM):
                d = ACC(g)
                if g == NM//2 and not bar: a.wait_lg(('Wf', s, 1))
                it = None
                if g in vg:
                    it = items[vi]; vi += 1
                    for t in it[3][0]: a(t)
                a(mfma(d, ar(WF[s % NB]+g*4,4), vr(x,4), '0' if s == 0 else d))
                if it: a.vmem(it[3][1], it[2])
                for _ in range(nper[g]):
                    a.lds(wr[ri], ('Wf', s+LA, ri//half)); ri += 1
        assert not Q, Q

    def mod2_tables(self):
        a = self.a
        a.srd(64, 4, WS_M2, 65536)
        a(f's_mov_b32 s71, {C_M2*256}')
        self.wait([(71, 8, 32)])
        a(f'v_lshlrev_b32 v136, 3, v{TID}'); a('v_add_u32 v137, 4096, v136')
        B0 = 64
        for e in range(8):
            a(f's_mov_b32 s83, {e*8192}')
            for j in range(4):
                vo = 136 if j < 2 else 137
                a.vmem(f'buffer_load_dwordx2 v[{B0+16*j+2*e}:{B0+16*j+2*e+1}], v{vo}, s[64:67], s83 offen offset:{2048*(j%2)} sc1', 'mod')
        a.wait_vm('mod')
        for j in range(4):
            for c_ in range(2):
                b = B0+16*j+c_
                for st_ in (2, 4, 8):
                    for e in range(0, 16, 2*st_): a(f'v_add_f32 v{b+e}, v{b+e}, v{b+e+st_}')
                round_bf16(a, b, 138)
        for c_ in range(2):
            a(f'v_add_f32 v{B0+32+c_}, 1.0, v{B0+32+c_}'); round_bf16(a, B0+32+c_, 138)
        a(f'v_add_u32 v136, {SCR}, v136')
        a(f'ds_write_b64 v136, v[{B0}:{B0+1}]'); a(f'ds_write_b64 v136, v[{B0+32}:{B0+33}] offset:2048')
        a(f'ds_write_b64 v136, v[{B0+16}:{B0+17}] offset:4096'); a(f'ds_write_b64 v136, v[{B0+48}:{B0+49}] offset:6144')
        a('s_waitcnt lgkmcnt(0)')

    def phase_c(self):
        a = self.a
        S_RB=36; S_CB=37; S_KQ=33; S_TT=38; S_RTc=39; S_WO=41; S_M0c=42; S_XO=45
        SRD_W=12; SRD_X=16; SRD_Oc=20
        WAD=[200, 204]; WOFF=208; LOFF=209
        a(f's_load_dwordx2 s[6:7], s[0:1], {KA_WO}')
        a(f's_load_dwordx2 s[86:87], s[0:1], {KA_WD}')
        a(f'v_lshrrev_b32 v213, 3, v{LANE}'); a('v_lshlrev_b32 v213, 10, v213'); a(f'v_bfe_u32 v214, v{LANE}, 4, 1'); a('v_lshlrev_b32 v214, 2, v214')
        a(f'v_and_b32 v215, 7, v{LANE}'); a('v_xor_b32 v214, v214, v215'); a('v_lshlrev_b32 v214, 4, v214'); a('v_add_u32 v213, v213, v214')
        a(f'v_lshlrev_b32 v214, 4, v{LANE}')
        a('s_mul_i32 s88, s2, 7'); a(f's_lshl_b32 s82, s{S_W}, 1'); a('s_add_u32 s88, s88, s82')

        a('s_lshr_b32 s70, s2, 5'); a('s_lshl_b32 s70, s70, 2'); a('s_bfe_u32 s71, s2, 0x20003'); a('s_add_u32 s70, s70, s71'); a(f's_add_u32 s70, s70, {C_CO}'); a('s_lshl_b32 s70, s70, 8')
        a('s_and_b32 s34, s2, 7'); a('s_lshr_b32 s35, s2, 3')
        a(f's_and_b32 s{S_KQ}, s34, 3'); a('s_lshr_b32 s34, s34, 2'); a('s_lshl_b32 s34, s34, 3'); a(f's_and_b32 s{S_RB}, s35, 7'); a(f's_add_u32 s{S_RB}, s{S_RB}, s34')
        a(f's_lshr_b32 s{S_CB}, s35, 3')
        a(f'v_lshlrev_b32 v{LOFF}, 4, v{LANE}')
        self.lane_consts_vstyle(WAD, WOFF, 1024, 128)
        a(f's_lshl_b32 s{S_RTc}, s{S_RB}, 2'); a(f's_add_u32 s{S_RTc}, s{S_RTc}, s{S_W}')
        a(f's_lshl_b32 s{S_WO}, s{S_KQ}, 20'); a(f's_lshl_b32 s{S_TT}, s{S_W}, 12'); a(f's_add_u32 s{S_WO}, s{S_WO}, s{S_TT}')
        a(f's_lshl_b32 s{S_TT}, s{S_CB}, 8'); a(f's_add_u32 s{S_WO}, s{S_WO}, s{S_TT}')
        a(f's_lshl_b32 s{S_M0c}, s{S_W}, 10')
        a(f's_lshl_b32 s{S_XO}, s{S_RTc}, 18'); a(f's_lshl_b32 s{S_TT}, s{S_KQ}, 16'); a(f's_add_u32 s{S_XO}, s{S_XO}, s{S_TT}')
        a(f's_lshr_b32 s71, s{S_RB}, 1'); a('s_lshl_b32 s71, s71, 2'); a(f's_add_u32 s71, s71, s{S_KQ}'); a(f's_add_u32 s71, s71, {C_CO}'); a('s_lshl_b32 s71, s71, 8')
        a('s_waitcnt lgkmcnt(0)')
        a.srd(SRD_W, 6, 0, 4194304); a.srd(SRD_X, 4, WS_O, 16777216); a.srd(SRD_Oc, 4, WS_P, 8388608); a.srd(64, 4, WS_M2, 8192); a.srd(76, 86, 0, 1835008); a.srd(48, 4, WS_WDP, 1835008)
        def w_dma_ops(c):
            slot = c % 8
            return [([f's_add_u32 m0, s{S_M0c}, {slot*16384 + m*4096}', f's_add_u32 s{S_TT}, s{S_WO}, {(c*64 + m*16)*1024}'],
                     f'buffer_load_dwordx4 v{WOFF}, s[{SRD_W}:{SRD_W+3}], s{S_TT} offen lds') for m in range(4)]
        XRING = 32
        def x_load_ops(s):
            r = 4*(s % XRING)
            return ([f's_add_u32 s{S_TT}, s{S_XO}, {(s//4)*4096}'],
                    f'buffer_load_dwordx4 v[{r}:{r+3}], v{LOFF}, s[{SRD_X}:{SRD_X+3}], s{S_TT} offen offset:{(s%4)*1024} {M["ldsc"]}')
        NPRE = M['c_prew']
        def pre(track):
            for c in range(NPRE):
                for o in w_dma_ops(c):
                    for x in o[0]: a(x)
                    if track: a.vmem(o[1], ('W', c))
                    else: a(o[1])
        self.handoff(70, [('multi', 71, 8, C_M2)], pre=pre, npre=4*NPRE)
        self.stamp()
        a(f'v_lshlrev_b32 v210, 3, v{TID}'); a('v_add_u32 v211, 4096, v210')
        a.vmem('buffer_load_dwordx2 v[192:193], v210, s[64:67], 0 offen sc1', 'mod'); a.vmem('buffer_load_dwordx2 v[194:195], v210, s[64:67], 0 offen offset:2048 sc1', 'mod')
        a.vmem('buffer_load_dwordx2 v[196:197], v211, s[64:67], 0 offen sc1', 'mod'); a.vmem('buffer_load_dwordx2 v[198:199], v211, s[64:67], 0 offen offset:2048 sc1', 'mod')
        for i in range(2):
            a(f's_add_u32 s82, s88, {i}'); a('s_lshr_b32 s80, s82, 1'); a('s_mul_i32 s81, s80, 9363'); a('s_lshr_b32 s81, s81, 20')
            a('s_mul_i32 s75, s81, 112'); a('s_sub_u32 s80, s80, s75'); a('s_lshl_b32 s80, s80, 14')
            a('s_and_b32 s82, s82, 1'); a('s_lshl_b32 s82, s82, 13'); a('s_add_u32 s80, s80, s82'); a('s_lshl_b32 s81, s81, 7'); a('s_add_u32 s80, s80, s81')
            a.vmem(f'buffer_load_dwordx4 v[{216+4*i}:{219+4*i}], v213, s[76:79], s80 offen', 'wd')
        ACCB = 128
        self.shared_gemm(64, 4, 1, 4, w_dma_ops, x_load_ops, XRING, 0, [0, 16, 32], WAD, lambda g: vr(ACCB+16*g, 16), pre_x=M['c_prex'], nv=M['c_nv'], npre=NPRE, LA=M['la'])
        for c_ in range(2):
            for r in (192, 194, 196, 198): round_bf16(a, r+c_, 212)
            a(f'v_add_f32 v{196+c_}, 1.0, v{196+c_}'); round_bf16(a, 196+c_, 212)
        a(f'v_add_u32 v210, {T2B}, v210')
        a('ds_write_b64 v210, v[192:193]'); a('ds_write_b64 v210, v[196:197] offset:2048'); a('ds_write_b64 v210, v[194:195] offset:4096'); a('ds_write_b64 v210, v[198:199] offset:6144')
        a('s_waitcnt lgkmcnt(0)')
        a('s_barrier')
        self.stamp()
        a(f's_lshl_b32 s{S_XO}, s{S_KQ}, 21'); a(f's_lshl_b32 s{S_TT}, s{S_RTc}, 15'); a(f's_add_u32 s{S_XO}, s{S_XO}, s{S_TT}')
        a(f's_lshl_b32 s{S_TT}, s{S_CB}, 13'); a(f's_add_u32 s{S_XO}, s{S_XO}, s{S_TT}')
        for mt in range(4):
            if mt % 2 == 0: a(f's_add_u32 s{S_TT}, s{S_XO}, {(mt//2)*4096}')
            for t in range(2):
                b = 4*(2*mt+t)
                for k in range(4):
                    r = ACCB + 16*mt + 8*t + 2*k
                    a(f'v_cvt_pk_bf16_f32 v{b+k}, v{r}, v{r+1}')
                a.vmem(f'buffer_store_dwordx4 v[{b}:{b+3}], v{LOFF}, s[{SRD_Oc}:{SRD_Oc+3}], s{S_TT} offen offset:{1024*((2*mt+t)%4)} sc1', 'pst')
        a('s_lshl_b32 s80, s88, 10')
        a.vmem('buffer_store_dwordx4 v[216:219], v214, s[48:51], s80 offen sc1', 'pst'); a.vmem('buffer_store_dwordx4 v[220:223], v214, s[48:51], s80 offen offset:1024 sc1', 'pst')
        a(f's_add_u32 s74, s{S_RB}, {C_CP}'); a('s_lshl_b32 s74, s74, 8')
        a('s_and_b32 s75, s2, 7'); a(f's_add_u32 s75, s75, {C_WDP}'); a('s_lshl_b32 s75, s75, 8')

    def d_setup(self):
        a = self.a
        d = self.d = dict(S_RB=36, S_FG=37, S_TT=38, S_RT=39, S_GO=41, S_M0=42, S_XO=45, SRD_G=12, SRD_U=16, SRD_X=20, SRD_O=28, WAD=[200, 204], WOFF=208, LOFF=209)
        a(f's_load_dwordx2 s[6:7], s[0:1], {KA_WG}'); a(f's_load_dwordx2 s[8:9], s[0:1], {KA_WU}')
        a('s_and_b32 s33, s2, 7'); a('s_lshr_b32 s34, s2, 3')
        a(f's_and_b32 s36, s34, 3'); a('s_lshr_b32 s35, s33, 1'); a('s_lshl_b32 s35, s35, 2'); a('s_add_u32 s36, s36, s35')
        a(f's_lshr_b32 s37, s34, 2'); a('s_and_b32 s35, s33, 1'); a('s_mul_i32 s35, s35, 7'); a('s_add_u32 s37, s37, s35')
        self.lane_consts_vstyle(d['WAD'], d['WOFF'], 3584, 128)
        a(f's_lshl_b32 s39, s36, 2'); a(f's_add_u32 s39, s39, s{S_W}')
        a(f's_lshl_b32 s41, s37, 8'); a(f's_mul_i32 s38, s{S_W}, {4*3584}'); a('s_add_u32 s41, s41, s38')
        a(f's_lshl_b32 s42, s{S_W}, 10'); a('s_lshl_b32 s45, s39, 15')
        a('s_waitcnt lgkmcnt(0)')
        a.srd(12, 6, 0, 512*3584); a.srd(16, 8, 0, 512*3584)
    def d_w_dma_ops(self, c):
        slot = c % 4; ops = []
        for m in range(4):
            for gu in range(2):
                srd = 12 if gu == 0 else 16
                ops.append(([f's_add_u32 m0, s42, {slot*32768 + gu*16384 + m*4096}', f's_add_u32 s38, s41, {(c*64 + m*16)*3584}'],
                            f'buffer_load_dwordx4 v208, s[{srd}:{srd+3}], s38 offen lds'))
        return ops

    def wait_P(self):
        a = self.a
        l1 = a.newlabel('WP'); l2 = a.newlabel('WP')
        a(f's_cmp_lg_u32 s{S_W}, 0'); a(f's_cbranch_scc1 {l1}'); a('s_cmp_ge_u32 s2, 224'); a(f's_cbranch_scc1 {l1}')
        a('s_waitcnt vmcnt(32)'); a(f's_branch {l2}')
        a.label(l1); a('s_waitcnt vmcnt(0)')
        a.label(l2); a.vm = []
    def phase_r(self):
        a = self.a
        S_TT = 38
        SRD_P=44; SRD_X=48; SRD_MPr=52; SRD_X1=64; SRD_H=76
        TB0 = T2B
        a(f's_load_dwordx2 s[6:7], s[0:1], {KA_X}')
        a(f'v_and_b32 v2, 7, v{TID}'); a(f'v_bfe_u32 v3, v{TID}, 3, 1'); a(f'v_lshrrev_b32 v4, 4, v{TID}')
        a('s_lshr_b32 s80, s2, 2'); a('s_and_b32 s81, s2, 3'); a('s_lshl_b32 s81, s81, 3')
        a('v_lshlrev_b32 v5, 5, v3'); a('v_add_u32 v5, v5, v2'); a('v_add_u32 v5, s81, v5'); a('v_lshlrev_b32 v5, 4, v5')
        a('v_lshlrev_b32 v6, 10, v4'); a('v_add_u32 v6, v6, v5'); a('v_lshlrev_b32 v7, 11, v4'); a('v_add_u32 v7, v7, v5')
        a('v_add_u32 v8, s81, v2'); a('v_lshlrev_b32 v8, 10, v8'); a('v_lshlrev_b32 v9, 5, v4'); a('v_add_u32 v8, v8, v9'); a('v_lshlrev_b32 v9, 3, v3'); a('v_add_u32 v8, v8, v9')
        a(f'v_lshlrev_b32 v10, 3, v{TID}')
        a('s_waitcnt lgkmcnt(0)')
        a.srd(20, 4, WS_P, 8388608); a.srd(24, 6, 0, 2097152); a.srd(28, 4, WS_M2, 65536); a.srd(64, 4, WS_X1, 2097152); a.srd(76, 4, WS_H2, 2097152)
        a('s_lshl_b32 s82, s80, 15')
        for i in range(2):
            a(f's_add_u32 s83, s82, {i*512}')
            a.vmem(f'buffer_load_dwordx2 v[{112+4*i}:{113+4*i}], v8, s[24:27], s83 offen', 'x')
            a.vmem(f'buffer_load_dwordx2 v[{114+4*i}:{115+4*i}], v8, s[24:27], s83 offen offset:16', 'x')
        a('v_lshlrev_b32 v12, 6, v4'); a('v_lshlrev_b32 v13, 4, v3'); a('v_add_u32 v12, v12, v13'); a(f'v_add_u32 v12, {TB0}, v12')
        TB = 120
        for j in range(3):
            for i in range(2):
                for h in range(2):
                    r = TB + 16*j + 8*i + 4*h
                    a(f'ds_read_b128 v[{r}:{r+3}], v12 offset:{2048*j + 1024*i + 32*h}')
        a('s_lshr_b32 s70, s2, 4'); a(f's_add_u32 s70, s70, {C_CP}'); a('s_lshl_b32 s70, s70, 8')
        def pre(track):
            for c in range(4):
                for o in self.d_w_dma_ops(c):
                    for x in o[0]: a(x)
                    if track: a.vmem(o[1], ('W', c))
                    else: a(o[1])
        late = self.handoff(74, [(70, 1, 16)], pre=pre, npre=32, skip_cond='s_cmp_ge_u32 s2, 224', defer=True, vm_allow=4, sig2=75)
        a.vm = []
        self.stamp()
        a('s_lshl_b32 s84, s80, 15')
        for i in range(2):
            for kq in range(4):
                a(f's_add_u32 s83, s84, {kq*2097152 + i*16384}')
                r = 80 + (i*4+kq)*4
                a.vmem(f'buffer_load_dwordx4 v[{r}:{r+3}], v6, s[20:23], s83 offen sc1', 'P')
        late()
        a('s_waitcnt vmcnt(32)') if False else None
        self.wait_P()
        a('s_waitcnt lgkmcnt(0)')
        for i in range(2):
            b = 48 + i*32
            for k in range(4):
                for kq in range(4):
                    r = 80 + (i*4+kq)*4 + k
                    if kq == 0:
                        a(f'v_lshlrev_b32 v{b+2*k}, 16, v{r}'); a(f'v_and_b32 v{b+2*k+1}, 0xffff0000, v{r}')
                    else:
                        a(f'v_lshlrev_b32 v41, 16, v{r}'); a(f'v_and_b32 v42, 0xffff0000, v{r}')
                        a(f'v_add_f32 v{b+2*k}, v{b+2*k}, v41'); a(f'v_add_f32 v{b+2*k+1}, v{b+2*k+1}, v42')
        for i in range(2):
            b = 48 + i*32
            for k in range(4):
                A0, A1 = b+2*k, b+2*k+1
                a(f'v_cvt_pk_bf16_f32 v40, v{A0}, v{A1}'); a(f'v_lshlrev_b32 v{A0}, 16, v40'); a(f'v_and_b32 v{A1}, 0xffff0000, v40')
                a(f'v_mul_f32 v{A0}, v{A0}, v{TB+8*i+2*k}'); a(f'v_mul_f32 v{A1}, v{A1}, v{TB+8*i+2*k+1}')
                a(f'v_cvt_pk_bf16_f32 v40, v{A0}, v{A1}'); a(f'v_lshlrev_b32 v{A0}, 16, v40'); a(f'v_and_b32 v{A1}, 0xffff0000, v40')
                xr = 112+4*i+k
                a(f'v_lshlrev_b32 v41, 16, v{xr}'); a(f'v_and_b32 v42, 0xffff0000, v{xr}')
                a(f'v_add_f32 v{A0}, v{A0}, v41'); a(f'v_add_f32 v{A1}, v{A1}, v42')
                a(f'v_cvt_pk_bf16_f32 v{32+4*i+k}, v{A0}, v{A1}')
                a(f'v_lshlrev_b32 v{16+8*i+2*k}, 16, v{32+4*i+k}'); a(f'v_and_b32 v{17+8*i+2*k}, 0xffff0000, v{32+4*i+k}')
        a('s_lshl_b32 s82, s80, 15'); a('s_add_u32 s83, s82, 16384')
        a.vmem('buffer_store_dwordx4 v[32:35], v6, s[64:67], s82 offen sc1', 'st'); a.vmem('buffer_store_dwordx4 v[36:39], v6, s[64:67], s83 offen sc1', 'st')
        a('v_lshlrev_b32 v45, 3, v2'); a(f'v_add_u32 v45, {SCR+4096}, v45'); a(f's_lshl_b32 s85, s{S_W}, 6'); a('v_add_u32 v44, s85, v45')
        a('v_add_f32 v46, v16, v17'); a('v_mul_f32 v47, v16, v16'); a('v_fmac_f32 v47, v17, v17')
        for k in range(2, 16):
            a(f'v_add_f32 v46, v46, v{16+k}'); a(f'v_fmac_f32 v47, v{16+k}, v{16+k}')
        a('s_nop 1')
        for x in (46, 47): a(f'v_add_f32_dpp v{x}, v{x}, v{x} row_ror:8 row_mask:0xf bank_mask:0xf')
        for op in ('v_permlane16_swap_b32', 'v_permlane32_swap_b32'):
            a('v_mov_b32 v42, v46'); a('v_mov_b32 v43, v47'); a('s_nop 1')
            a(f'{op} v42, v46'); a(f'{op} v43, v47'); a('s_nop 1')
            a('v_add_f32 v46, v46, v42'); a('v_add_f32 v47, v47, v43')
        a('ds_write_b64 v44, v[46:47]'); a('s_waitcnt lgkmcnt(0)'); a('s_barrier')
        for w in range(4): a(f'ds_read_b64 v[{168+2*w}:{169+2*w}], v45 offset:{64*w}')
        a('s_waitcnt lgkmcnt(0)')
        a('v_add_f32 v168, v168, v170'); a('v_add_f32 v172, v172, v174'); a('v_add_f32 v46, v168, v172')
        a('v_add_f32 v169, v169, v171'); a('v_add_f32 v173, v173, v175'); a('v_add_f32 v43, v169, v173')
        a(f'v_mul_f32 v46, {f2u(1/512)}, v46'); a(f'v_mul_f32 v43, {f2u(1/512)}, v43')
        a('v_fma_f32 v43, -v46, v46, v43'); a('v_max_f32 v43, 0, v43')
        round_bf16(a, 43, 47); a(f'v_add_f32 v43, {f2u(1e-5)}, v43'); round_bf16(a, 43, 47)
        a('v_sqrt_f32 v43, v43'); a('s_nop 0'); round_bf16(a, 43, 47); a('v_rcp_f32 v43, v43'); round_bf16(a, 46, 47)
        for i in range(2):
            for k in range(4):
                e0, e1 = 16+8*i+2*k, 17+8*i+2*k
                a(f'v_sub_f32 v41, v{e0}, v46'); a(f'v_sub_f32 v42, v{e1}, v46')
                a('v_mul_f32 v41, v41, v43'); a('v_mul_f32 v42, v42, v43')
                a('v_cvt_pk_bf16_f32 v40, v41, v42'); a('v_lshlrev_b32 v41, 16, v40'); a('v_and_b32 v42, 0xffff0000, v40')
                a(f'v_fma_f32 v41, v41, v{TB+16+8*i+2*k}, v{TB+32+8*i+2*k}'); a(f'v_fma_f32 v42, v42, v{TB+16+8*i+2*k+1}, v{TB+32+8*i+2*k+1}')
                a(f'v_cvt_pk_bf16_f32 v{48+4*i+k}, v41, v42')
        a.vmem('buffer_store_dwordx4 v[48:51], v6, s[76:79], s82 offen sc1', 'st'); a.vmem('buffer_store_dwordx4 v[52:55], v6, s[76:79], s83 offen sc1', 'st')
        a('s_lshr_b32 s70, s2, 4'); a(f's_add_u32 s70, s70, {C_CH}'); a('s_lshl_b32 s70, s70, 8')
        self.signal([70], vm_allow=0); a.vm = []
        self.stamp()

    def phase_d(self):
        a = self.a
        LOFF = 209
        a.srd(20, 4, WS_H2, 2097152); a.srd(28, 4, WS_ACT, 64*112*1024)
        a(f's_add_u32 s70, s36, {C_CH}'); a('s_lshl_b32 s70, s70, 8')
        self.handoff(None, [('multi', 70, 16, C_WDP)], vm_allow=63)
        self.stamp()
        def x_load_ops(s):
            r = 4*(s % 16)
            return ([f's_add_u32 s38, s45, {(s//4)*4096}'],
                    f'buffer_load_dwordx4 v[{r}:{r+3}], v{LOFF}, s[20:23], s38 offen offset:{(s%4)*1024} {M["ldsc"]}')
        AB = 64
        self.shared_gemm(32, 8, 2, 4, self.d_w_dma_ops, x_load_ops, 16, 0, [128, 160, 192], [200, 204], lambda g: vr(AB+16*g, 16), pre_x=M['d_prex'], nv=3, npre=4, LA=M['la'])
        self.stamp()
        a(f's_mul_i32 s45, s39, {112*1024}'); a('s_lshl_b32 s38, s37, 13'); a('s_add_u32 s45, s45, s38')
        a(f'v_mov_b32 v210, {f2u(-LOG2E)}'); a('v_mov_b32 v212, 1.0'); a('v_mov_b32 v213, 1.0')
        a.nop(12)
        cnt = 0
        for mt in range(4):
            for t in range(2):
                b = 16*(cnt % 2); cnt += 1
                G = AB+16*mt+8*t; U = AB+16*(4+mt)+8*t; E = b; O_ = b+8
                for k in range(0, 8, 2): a(f'v_pk_mul_f32 v[{E+k}:{E+k+1}], v[{G+k}:{G+k+1}], v[210:211] op_sel_hi:[1,0]')
                for k in range(8): a(f'v_exp_f32 v{E+k}, v{E+k}')
                for k in range(0, 8, 2): a(f'v_pk_mul_f32 v[{U+k}:{U+k+1}], v[{G+k}:{G+k+1}], v[{U+k}:{U+k+1}]')
                for k in range(0, 8, 2): a(f'v_pk_add_f32 v[{E+k}:{E+k+1}], v[{E+k}:{E+k+1}], v[212:213]')
                for k in range(8): a(f'v_rcp_f32 v{E+k}, v{E+k}')
                a('s_nop 0')
                for k in range(0, 8, 2): a(f'v_pk_mul_f32 v[{U+k}:{U+k+1}], v[{U+k}:{U+k+1}], v[{E+k}:{E+k+1}]')
                for k in range(4): a(f'v_cvt_pk_bf16_f32 v{O_+k}, v{U+2*k}, v{U+2*k+1}')
                ks = 2*mt+t
                a(f's_add_u32 s38, s45, {(ks//4)*4096}')
                a.vmem(f'buffer_store_dwordx4 v[{O_}:{O_+3}], v{LOFF}, s[28:31], s38 offen offset:{(ks%4)*1024} sc1', 'ast')
        a(f's_add_u32 s74, s36, {C_CA}'); a('s_lshl_b32 s74, s74, 8')

    def e_setup(self):
        a = self.a; L = LANE
        NKT = 112; NK = 28
        e = self.e = dict(S_RB=36, S_CB=37, S_T=38, S_AO=39, S_B0=40, S_B1=41, S_M0=42, SRD_W=12, SRD_B=16, SRD_MP=20, SRD_X=24, SRD_O=28,
                          AF=[192, 200], AAD=208, VOA=210, VOB=211, LOFF=212, NK=NK, NKT=NKT)
        a(f's_load_dwordx2 s[6:7], s[0:1], {KA_WD}'); a(f's_load_dwordx2 s[8:9], s[0:1], {KA_OUT}')
        a('s_and_b32 s33, s2, 7'); a('s_lshr_b32 s34, s2, 3'); a('s_and_b32 s36, s34, 3'); a('s_lshl_b32 s33, s33, 2'); a('s_add_u32 s36, s36, s33'); a('s_lshr_b32 s37, s34, 2')
        a(f'v_lshrrev_b32 v2, 3, v{L}'); a('v_lshlrev_b32 v2, 10, v2'); a(f'v_bfe_u32 v3, v{L}, 4, 1'); a('v_lshlrev_b32 v3, 2, v3')
        a(f'v_and_b32 v4, 7, v{L}'); a('v_xor_b32 v3, v3, v4'); a('v_lshlrev_b32 v3, 4, v3')
        a('v_add_u32 v210, v2, v3'); a('v_add_u32 v211, 7168, v210'); a(f'v_lshlrev_b32 v212, 4, v{L}')
        a(f'v_lshrrev_b32 v2, 5, v{L}'); a(f'v_bfe_u32 v3, v{L}, 4, 1'); a(f'v_bfe_u32 v4, v{L}, 2, 2'); a(f'v_and_b32 v5, 3, v{L}')
        a('v_lshlrev_b32 v6, 2, v2'); a('v_add_u32 v6, v6, v4'); a('v_lshlrev_b32 v6, 7, v6'); a('v_and_b32 v7, 1, v5'); a('v_lshlrev_b32 v7, 3, v7'); a('v_add_u32 v6, v6, v7')
        a('v_lshrrev_b32 v7, 1, v5'); a('v_lshlrev_b32 v8, 1, v3'); a('v_add_u32 v7, v7, v8'); a('v_lshrrev_b32 v8, 1, v4')
        a(f's_lshl_b32 s42, s{S_W}, 15')
        for mt in range(2):
            a(f'v_xor_b32 v9, {mt}, v8'); a('v_lshlrev_b32 v9, 2, v9'); a('v_add_u32 v9, v9, v7'); a('v_lshlrev_b32 v9, 4, v9')
            a(f'v_add_u32 v{208+mt}, v6, v9'); a(f'v_add_u32 v{208+mt}, s42, v{208+mt}')
        if M['wdp']:
            a(f's_mul_i32 s39, s{S_W}, {NK*2048}'); a(f's_mul_i32 s38, s37, {NKT*2048}'); a('s_add_u32 s39, s39, s38')
        else:
            a(f's_mul_i32 s39, s{S_W}, {NK*16384}'); a('s_lshl_b32 s38, s37, 7'); a('s_add_u32 s39, s39, s38')
        a(f's_mul_i32 s40, s36, {2*NKT*1024}'); a(f's_mul_i32 s38, s{S_W}, {NK*1024}'); a('s_add_u32 s40, s40, s38'); a(f's_add_u32 s41, s40, {NKT*1024}')
        a('s_waitcnt lgkmcnt(0)')
        (a.srd(12, 4, WS_WDP, 1835008) if M['wdp'] else a.srd(12, 6, 0, NKT*16*1024)); a.srd(16, 4, WS_ACT, 64*NKT*1024); a.srd(20, 4, WS_M2, 65536); a.srd(24, 4, WS_X1, 2097152); a.srd(28, 8, 0, 2097152)
    def e_a_ops(self, k):
        slot = k % 16
        if M['wdp']:
            return [([f's_add_u32 m0, s42, {slot*2048}', f's_add_u32 s38, s39, {k*2048}'], f'buffer_load_dwordx4 v212, s[12:15], s38 offen sc1 lds'),
                    ([], f'buffer_load_dwordx4 v212, s[12:15], s38 offen offset:1024 sc1 lds')]
        return [([f's_add_u32 m0, s42, {slot*2048}', f's_add_u32 s38, s39, {k*16384}'], f'buffer_load_dwordx4 v210, s[12:15], s38 offen lds'),
                ([], f'buffer_load_dwordx4 v211, s[12:15], s38 offen offset:1024 lds')]
    def phase_e(self):
        a = self.a; L = LANE
        NK = 28; DEPTH = M['e_depth']; AF = [192, 200]; ACC = 128; LOFF = 212; GT = SCR
        def b_ops(k):
            r = 8*(k % 16)
            return [([f's_add_u32 s43, s40, {(k//4)*4096}'], f'buffer_load_dwordx4 v[{r}:{r+3}], v{LOFF}, s[16:19], s43 offen offset:{(k%4)*1024} {M["ldsc"]}'),
                    ([f's_add_u32 s43, s41, {(k//4)*4096}'], f'buffer_load_dwordx4 v[{r+4}:{r+7}], v{LOFF}, s[16:19], s43 offen offset:{(k%4)*1024} {M["ldsc"]}')]
        def emit(o, tag):
            for x in o[0]: a(x)
            a.vmem(o[1], tag)
        for k in range(DEPTH):
            for o in b_ops(k): emit(o, ('B', k))
        def aread_ops(k):
            slot = k % 16
            return [f'ds_read_b64_tr_b16 {vr(AF[k&1] + mt*4 + 2*u,2)}, v{208+mt} offset:{slot*2048 + u*1024}' for mt in range(2) for u in range(2)]
        a.wait_vm(('A', 0))
        for op in aread_ops(0): a.lds(op, ('Af', 0))
        NPRE = M['e_prea']
        for k in range(NK):
            a.wait_vm(('B', k)) if k == 0 else None
            if k+1 < NK: a.wait_vm([('B', k+1), ('A', k+1)])
            a.wait_lg(('Af', k))
            r = 8*(k % 16)
            ar_ = aread_ops(k+1) if k+1 < NK else []
            gs = []
            if NPRE == 16:
                if k >= 2 and k+14 < NK: gs += [(o, ('A', k+14)) for o in self.e_a_ops(k+14)]
            elif k+NPRE < NK: gs += [(o, ('A', k+NPRE)) for o in self.e_a_ops(k+NPRE)]
            if k+DEPTH < NK: gs += [(o, ('B', k+DEPTH)) for o in b_ops(k+DEPTH)]
            i = 0
            for mt in range(2):
                for nt in range(2):
                    d = vr(ACC+(mt*2+nt)*16, 16)
                    it = gs[i] if i < len(gs) else None
                    if it:
                        for x in it[0][0]: a(x)
                    a(mfma(d, vr(AF[k&1]+mt*4,4), vr(r+4*nt,4), '0' if k == 0 else d))
                    if it: a.vmem(it[0][1], it[1])
                    if i < 2:
                        for op in ar_[2*i:2*i+2]: a.lds(op, ('Af', k+1))
                    i += 1
        self.stamp()
        a(f's_lshr_b32 s46, s{S_W}, 1'); a(f's_and_b32 s47, s{S_W}, 1')
        a('s_lshl_b32 s48, s36, 1'); a('s_add_u32 s48, s48, s47')
        a('s_lshl_b32 s49, s37, 2'); a('s_lshl_b32 s50, s46, 1'); a('s_add_u32 s49, s49, s50')
        a('s_lshl_b32 s50, s48, 5'); a('s_add_u32 s50, s50, s49'); a('s_lshl_b32 s50, s50, 10')
        a(f'v_and_b32 v2, 31, v{L}'); a('v_lshlrev_b32 v2, 10, v2'); a(f'v_lshrrev_b32 v3, 5, v{L}'); a('v_lshlrev_b32 v4, 4, v3'); a('v_add_u32 v2, v2, v4')
        a('s_lshl_b32 s51, s48, 15'); a('s_lshl_b32 s33, s49, 5'); a('s_add_u32 s51, s51, s33')
        for t in range(2):
            a(f'buffer_load_dwordx4 v[{8+4*t}:{11+4*t}], v{LOFF}, s[24:27], s50 offen offset:{1024*t} sc1')
        a.nop(12)
        a('s_waitcnt lgkmcnt(0)'); a('s_barrier')
        a(f's_lshl_b32 s33, s{S_W}, 14'); a(f'v_add_u32 v5, s33, v{LOFF}')
        for tile in range(4):
            for r4 in range(4):
                r = ACC + tile*16 + r4*4
                a(f'ds_write_b128 v5, v[{r}:{r+3}] offset:{(tile*4+r4)*1024}')
        a('s_waitcnt lgkmcnt(0)'); a('s_barrier')
        a(f's_lshl_b32 s33, s{S_W}, 12'); a(f'v_add_u32 v5, s33, v{LOFF}')
        for wv in range(4):
            for r4 in range(4):
                r = 32 + wv*16 + r4*4
                a(f'ds_read_b128 v[{r}:{r+3}], v5 offset:{wv*16384 + r4*1024}')
        a('v_lshlrev_b32 v6, 4, v3'); a('s_lshl_b32 s33, s46, 7'); a('s_lshl_b32 s34, s37, 8'); a('s_add_u32 s33, s33, s34'); a(f's_add_u32 s33, s33, {T2B+6144}'); a('v_add_u32 v6, s33, v6')
        for g in range(4): a(f'ds_read_b128 v[{16+4*g}:{19+4*g}], v6 offset:{32*g}')
        a('s_waitcnt lgkmcnt(0)')
        for r in range(16):
            a(f'v_add_f32 v{32+r}, v{32+r}, v{48+r}'); a(f'v_add_f32 v{64+r}, v{64+r}, v{80+r}')
        for r in range(16): a(f'v_add_f32 v{32+r}, v{32+r}, v{64+r}')
        for r in range(0, 16, 2):
            a(f'v_cvt_pk_bf16_f32 v100, v{32+r}, v{33+r}'); a(f'v_lshlrev_b32 v{32+r}, 16, v100'); a(f'v_and_b32 v{33+r}, 0xffff0000, v100')
            a(f'v_mul_f32 v{32+r}, v{32+r}, v{16+r}'); a(f'v_mul_f32 v{33+r}, v{33+r}, v{17+r}')
            a(f'v_cvt_pk_bf16_f32 v100, v{32+r}, v{33+r}'); a(f'v_lshlrev_b32 v{32+r}, 16, v100'); a(f'v_and_b32 v{33+r}, 0xffff0000, v100')
        a('s_waitcnt vmcnt(0)')
        for k in range(8):
            a(f'v_lshlrev_b32 v101, 16, v{8+k}'); a(f'v_and_b32 v102, 0xffff0000, v{8+k}')
            a(f'v_add_f32 v{32+2*k}, v{32+2*k}, v101'); a(f'v_add_f32 v{33+2*k}, v{33+2*k}, v102')
            a(f'v_cvt_pk_bf16_f32 v{104+k}, v{32+2*k}, v{33+2*k}')
        a('s_nop 1')
        for gp in range(2):
            b = 104+4*gp
            a(f'v_permlane32_swap_b32 v{b}, v{b+2}'); a(f'v_permlane32_swap_b32 v{b+1}, v{b+3}')
        a('s_nop 1')
        for gp in range(2):
            b = 104+4*gp
            a(f'buffer_store_dwordx4 v[{b}:{b+3}], v2, s[28:31], s51 offen offset:{32*gp} {M["outsc"]}')

    def build(self):
        a = self.a
        a.raw(kernel_head(KN))
        a('s_cmp_ge_u32 s2, 256'); a('s_cbranch_scc1 K_END')
        self.front()
        self.attention()
        self.phase_c()
        self.stamp()
        a('s_cmp_ge_u32 s2, 224'); a('s_cbranch_scc1 NO_DS')
        self.d_setup()
        a.label('NO_DS')
        self.phase_r()
        a('s_cmp_lt_u32 s2, 224'); a('s_cbranch_scc1 DO_D')
        a(f's_mov_b32 s70, {C_WDP*256}')
        self.wait([(70, 8, 32)])
        a('s_branch E_PRE')
        a.label('DO_D')
        a(f'v_lshlrev_b32 v209, 4, v{LANE}')
        self.phase_d()
        a.label('E_PRE')
        self.e_setup()
        a('s_waitcnt lgkmcnt(0)'); a('s_barrier')
        def pre(track):
            for k in range(M['e_prea']):
                for o in self.e_a_ops(k):
                    for x in o[0]: a(x)
                    if track: a.vmem(o[1], ('A', k))
                    else: a(o[1])
        a('s_lshr_b32 s70, s36, 1'); a(f's_add_u32 s70, s70, {C_CA}'); a('s_lshl_b32 s70, s70, 8')
        a(f's_mov_b32 s71, {103*256}'); a('s_cmp_ge_u32 s2, 224'); a('s_cselect_b32 s74, s71, s74')
        self.stamp()
        self.handoff(74, [(70, 1, 14)], pre=pre, npre=2*M['e_prea'])
        self.stamp()
        self.phase_e()
        if M['stamp']:
            a('s_waitcnt vmcnt(0)'); self.stamp()
            a.srd(44, 4, WS_STAMP, 262144)
            a(f'v_lshlrev_b32 v0, 2, v{LANE}'); a('s_lshl_b32 s48, s2, 9'); a(f's_lshl_b32 s49, s{S_W}, 7'); a('s_add_u32 s48, s48, s49')
            a('s_mov_b64 exec, 0xffffffff')
            a(f'buffer_store_dword v{STV}, v0, s[44:47], s48 offen')
            a('s_add_u32 s48, s48, 131072'); a('buffer_store_dword v254, v0, s[44:47], s48 offen')
        a('s_waitcnt vmcnt(0)')
        a.label('K_END'); a('s_endpgm')
        for st, bk, p in self.stubs:
            a.label(st); a(f's_call_b64 s[{S_RET}:{S_RET+1}], RARE_{p}'); a(f's_branch {bk}')
        gen_rare(a, 0); gen_rare(a, 1)
        return a.text()

def make(path, **kw):
    M.update({k: v for k, v in kw.items() if k in M or k.startswith('c_') or k == 'fine'})
    B.CFG.update({k: v for k, v in kw.items() if k in B.CFG})
    m = Mega(); text = m.build()
    head = open('adaLN_cond__mha_block_cached__swiglu_ffn__prompt.s.ref').read().split('; Override launch')[0]
    s = head + f'; @launch grid=(256,1,1) block=(256,1,1) lds={M["lds"]}\n.amdgcn_target "amdgcn-amd-amdhsa--gfx950"\n' + text
    s += '.section .rodata,"a"\n' + kernel_desc(KN, 512, 102, 256)
    open(path, 'w').write(s)
    return m.nst
if __name__ == '__main__':
    import sys
    kw = {}
    for kv in sys.argv[2:]:
        k, v = kv.split('=', 1); kw[k] = eval(v)
    print('stamps', make(sys.argv[1], **kw))
```

```python
from asmlib import *
import gen
from gen import f2u, round_bf16, xhalf_sum, wave_allreduce_add, LOG2E, KA_X, KA_K, KA_V, KA_WQ, KA_WO, KA_WG, KA_WU, KA_WD, KA_C, KA_WMOD, KA_OUT, KA_DBG, KA_WS
import gen_b as B
from gen_b import mfma, S, NEGM, P, T, KAD, VAD, VOK, VOV, LT, LR, LANE, TMP, OA, QF, KF, VF, k_read, v_read, gen_iter, gen_rare
from gen_b import S_W, S_H, S_QB, S_RT, S_KOFF, S_VOFF, S_M0, S_CNT, S_T, S_THR, S_RET, S_PF, S_PFM, SRD_K, SRD_V, SRD_WQ, SRD_XN, SRD_O, SRD_MP, VBASE, OFFSET, THR
KN = 'adaLN_cond__mha_block_cached__swiglu_ffn__prompt_kernel'

WS_M1 = 0x0; WS_XN = 0x10000; WS_M2 = 0x220000; WS_SYNC = 0x300000
WS_O = 0x400000; WS_X1 = 0x1400000; WS_H2 = 0x1600000; WS_ACT = 0x1800000; WS_STAMP = 0x2000000; WS_P = 0x3000000
C_FG, C_M2, C_CO, C_CP, C_CH, C_CA, C_FG2 = 0, 8, 16, 48, 64, 80, 96
C_WDP = 104
WS_WDP = 0x2800000
SCR = 131072
GSBASE = SCR + 24576
T2B = SCR + 8192
TID = 255; STV = 253
SRD_SY = 60
M = dict(stamp=False, w_mode='early', wdp=True, outsc='', lds=147456, e_prea=16, kvpf=True, kv_from=0, ldsc='sc1', w_early=16, la=2, tr_cap=3, c_prew=8, c_nv=2, c_prex=12, d_prex=12, e_depth=10, pre_x=10, qp_slots=(0, 2, 4, 6), spin=200000)

def allreduce_multi(a, xs, ts):
    pad = max(0, 2 - (len(xs)-1))
    for r in (8, 4, 2, 1):
        if pad: a(f's_nop {pad-1}')
        for x in xs: a(f'v_add_f32_dpp v{x}, v{x}, v{x} row_ror:{r} row_mask:0xf bank_mask:0xf')
    for op in ('v_permlane16_swap_b32', 'v_permlane32_swap_b32'):
        for x, t in zip(xs, ts): a(f'v_mov_b32 v{t}, v{x}')
        if pad: a(f's_nop {pad}')
        for x, t in zip(xs, ts): a(f'{op} v{t}, v{x}')
        a('s_nop 1')
        for x, t in zip(xs, ts): a(f'v_add_f32 v{x}, v{x}, v{t}')

class Mega:
    def __init__(self):
        self.a = Asm(); self.nst = 0
    def stamp(self):
        a = self.a
        if M['stamp']:
            a('s_memrealtime s[72:73]'); a('s_memtime s[100:101]'); a('s_waitcnt lgkmcnt(0)')
            a(f'v_writelane_b32 v{STV}, s72, {self.nst}'); a(f'v_writelane_b32 v254, s100, {self.nst}'); self.nst += 1
    def signal(self, idx_list, vm_allow=0):
        a = self.a
        a(f's_waitcnt vmcnt({vm_allow})'); a('s_barrier')
        l = a.newlabel('SIG')
        a(f's_cmp_lg_u32 s{S_W}, 0'); a(f's_cbranch_scc1 {l}')
        a('s_mov_b64 exec, 1')
        a('v_mov_b32 v251, 1')
        for s_ in idx_list:
            a(f'v_mov_b32 v252, s{s_}')
            a(f'buffer_atomic_add v251, v252, s[{SRD_SY}:{SRD_SY+3}], 0 offen sc1')
        a('s_mov_b64 exec, -1')
        a.label(l)
    def wait(self, specs):
        a = self.a
        l = a.newlabel('WDONE')
        a(f's_cmp_lg_u32 s{S_W}, 0'); a(f's_cbranch_scc1 {l}')
        for so, nl, target in specs:
            lp = a.newlabel('POLL'); ok = a.newlabel('POK')
            a(f's_mov_b64 exec, {(1 << nl)-1}')
            a(f'v_and_b32 v252, 63, v{TID}'); a('v_lshlrev_b32 v252, 8, v252'); a(f'v_add_u32 v252, s{so}, v252')
            a('s_mov_b32 s68, 0')
            a.label(lp)
            a(f'buffer_load_dword v251, v252, s[{SRD_SY}:{SRD_SY+3}], 0 offen sc1')
            a('s_waitcnt vmcnt(0)')
            a(f'v_cmp_le_u32 vcc, {target}, v251')
            a('s_add_u32 s68, s68, 1')
            a(f's_cmp_eq_u64 vcc, exec'); a(f's_cbranch_scc1 {ok}')
            a(f's_cmp_gt_u32 s68, {M["spin"]}'); a(f's_cbranch_scc1 {ok}')
            a('s_sleep 1'); a(f's_branch {lp}')
            a.label(ok)
        a('s_mov_b64 exec, -1')
        a.label(l)
        a('s_barrier')

    def wait_front(self, so):
        a = self.a
        l = a.newlabel('WDONE'); lp = a.newlabel('POLL'); ok = a.newlabel('POK')
        a(f's_cmp_lg_u32 s{S_W}, 0'); a(f's_cbranch_scc1 {l}')
        a('s_mov_b64 exec, 0x1ff')
        a(f'v_and_b32 v252, 63, v{TID}'); a(f'v_add_u32 v252, {C_M2-1}, v252'); a('v_lshlrev_b32 v252, 8, v252')
        a(f'v_mov_b32 v251, s{so}'); a(f'v_writelane_b32 v252, s{so}, 0')
        a('s_mov_b32 s68, 0')
        a.label(lp)
        a(f'buffer_load_dword v251, v252, s[{SRD_SY}:{SRD_SY+3}], 0 offen sc1')
        a('s_waitcnt vmcnt(0)')
        a('v_cmp_le_u32 vcc, 32, v251')
        a('s_add_u32 s68, s68, 1')
        a('s_cmp_eq_u64 vcc, exec'); a(f's_cbranch_scc1 {ok}')
        a(f's_cmp_gt_u32 s68, {M["spin"]}'); a(f's_cbranch_scc1 {ok}')
        a('s_sleep 1'); a(f's_branch {lp}')
        a.label(ok)
        a('s_mov_b64 exec, -1')
        a.label(l)
        a('s_barrier')

    def handoff(self, sig, specs, pre=None, npre=0, skip_cond=None, defer=False, vm_allow=0, sig2=None):
        a = self.a
        a(f's_waitcnt vmcnt({vm_allow})'); a('s_barrier'); a.vm = []
        l = a.newlabel('HW'); lo = a.newlabel('HO')
        a(f's_cmp_lg_u32 s{S_W}, 0'); a(f's_cbranch_scc1 {lo}')
        if sig is not None:
            a('s_mov_b64 exec, 1'); a('v_mov_b32 v251, 1'); a(f'v_mov_b32 v252, s{sig}')
            a(f'buffer_atomic_add v251, v252, s[{SRD_SY}:{SRD_SY+3}], 0 offen sc1')
            if sig2:
                a(f'v_mov_b32 v252, s{sig2}'); a(f'buffer_atomic_add v251, v252, s[{SRD_SY}:{SRD_SY+3}], 0 offen sc1')
        self.stamp_w0()
        for sp in specs:
            lp = a.newlabel('POLL'); ok = a.newlabel('POK')
            if sp[0] == 'multi':
                a('s_mov_b64 exec, 0x1ff')
                a(f'v_and_b32 v252, 63, v{TID}'); a(f'v_add_u32 v252, {sp[3]-1}, v252'); a('v_lshlrev_b32 v252, 8, v252'); a(f'v_writelane_b32 v252, s{sp[1]}, 0')
                a('v_mov_b32 v250, 32'); a(f's_mov_b32 s69, {sp[2]}'); a('s_nop 0'); a('v_writelane_b32 v250, s69, 0')
                tgt = 'v250'
            else:
                a('s_mov_b64 exec, 1'); a(f'v_mov_b32 v252, s{sp[0]}'); tgt = None
            a('s_mov_b32 s68, 0')
            a.label(lp)
            a(f'buffer_load_dword v251, v252, s[{SRD_SY}:{SRD_SY+3}], 0 offen sc1')
            a('s_waitcnt vmcnt(0)')
            a(f'v_cmp_le_u32 vcc, {tgt if tgt else sp[2]}, v251')
            a('s_add_u32 s68, s68, 1')
            a('s_cmp_eq_u64 vcc, exec'); a(f's_cbranch_scc1 {ok}')
            a(f's_cmp_gt_u32 s68, {M["spin"]}'); a(f's_cbranch_scc1 {ok}')
            a('s_sleep 1'); a(f's_branch {lp}')
            a.label(ok)
        a('s_mov_b64 exec, -1')
        a(f's_branch {l}')
        a.label(lo)
        if pre:
            if skip_cond: a(skip_cond); a(f's_cbranch_scc1 {l}')
            pre(True)
        a.label(l)
        if specs: a('s_barrier')
        def late():
            if pre:
                l2 = a.newlabel('HL')
                a(f's_cmp_lg_u32 s{S_W}, 0'); a(f's_cbranch_scc1 {l2}')
                if skip_cond: a(skip_cond); a(f's_cbranch_scc1 {l2}')
                pre(False)
                a.label(l2)
        if defer: return late
        late()
    def stamp_w0(self):
        pass

    def wq_dma(self):
        a = self.a; L = LANE
        a.srd(SRD_WQ, 74, 0, 4194304)
        a(f's_cmp_eq_u32 s{S_W}, 0'); a('s_cbranch_scc1 F_NOW')
        a(f'v_lshrrev_b32 v70, 4, v{L}'); a(f'v_and_b32 v71, 15, v{L}'); a('v_lshlrev_b32 v72, 2, v70'); a('v_xor_b32 v72, v71, v72'); a('v_lshlrev_b32 v72, 4, v72')
        a('v_lshlrev_b32 v222, 13, v70'); a('v_add_u32 v222, v222, v72')
        a(f's_sub_u32 s89, s{S_W}, 1'); a('s_lshl_b32 s99, s89, 15'); a('s_lshl_b32 s89, s89, 10'); a(f's_lshl_b32 s{S_T}, s{S_H}, 8'); a(f's_add_u32 s99, s99, s{S_T}')
        for k in range(43):
            if k == 42:
                a(f's_cmp_eq_u32 s{S_W}, 3'); a('s_cbranch_scc1 F_NOW')
            a(f's_add_u32 m0, s89, {k*3072}'); a(f's_add_u32 s{S_T}, s99, {k*3*32768}')
            a(f'buffer_load_dwordx4 v222, s[{SRD_WQ}:{SRD_WQ+3}], s{S_T} offen lds')
        a.label('F_NOW')

    def front(self):
        a = self.a; L = LANE
        a(f's_load_dwordx2 s[4:5], s[0:1], {KA_WS}')
        a(f's_load_dwordx2 s[6:7], s[0:1], {KA_C}'); a(f's_load_dwordx2 s[8:9], s[0:1], {KA_WMOD}'); a(f's_load_dwordx2 s[10:11], s[0:1], {KA_X}')
        a(f's_load_dwordx2 s[74:75], s[0:1], {KA_WQ}'); a(f's_load_dwordx2 s[76:77], s[0:1], {KA_DBG}')
        a(f's_load_dwordx2 s[78:79], s[0:1], {KA_K}'); a(f's_load_dwordx2 s[90:91], s[0:1], {KA_V}')
        a(f'v_mov_b32 v{TID}, v0')
        a('v_lshrrev_b32 v1, 6, v0'); a(f'v_and_b32 v{LANE}, 63, v0'); a('s_nop 0'); a(f'v_readfirstlane_b32 s{S_W}, v1')
        if M['stamp']: a(f'v_mov_b32 v{STV}, 0'); a('v_mov_b32 v254, 0')
        a(f's_and_b32 s{S_H}, s2, 31'); a(f's_lshr_b32 s{S_QB}, s2, 5')
        a(f'v_lshlrev_b32 v3, 4, v{LANE}')
        a(f'v_and_b32 v4, 3, v{TID}'); a('v_lshlrev_b32 v4, 4, v4'); a(f'v_lshrrev_b32 v5, 2, v{TID}')
        a('v_mul_u32_u24 v6, 49152, v5'); a('v_add_u32 v6, v6, v4'); a('v_lshlrev_b32 v7, 4, v5')
        a(f's_and_b32 s82, s{S_H}, 7'); a('s_lshl_b32 s82, s82, 2'); a(f's_lshr_b32 s83, s{S_H}, 3'); a('s_add_u32 s82, s82, s83')
        a('s_and_b32 s83, s2, 7'); a('s_lshl_b32 s83, s83, 5'); a('s_lshr_b32 s85, s2, 3'); a('s_add_u32 s83, s83, s85')
        a('s_lshl_b32 s84, s82, 6')
        a(f'v_mul_u32_u24 v67, 6144, v{TID}'); a('s_lshl_b32 s87, s83, 4'); a('s_add_u32 s87, s87, 2048'); a(f'v_lshlrev_b32 v68, 1, v{TID}')
        a('s_lshl_b32 s80, s2, 3'); a(f's_lshl_b32 s81, s{S_W}, 1'); a('s_add_u32 s80, s80, s81'); a('s_lshl_b32 s80, s80, 10')
        a('s_waitcnt lgkmcnt(0)')
        self.stamp()
        a.srd(12, 6, 0, 1024); a.srd(16, 8, 0, 3145728); a.srd(28, 10, 0, 2097152)
        a.vmem('buffer_load_dwordx4 v[16:19], v7, s[12:15], 0 offen', 'c1')
        for i in range(8):
            a(f's_add_u32 s86, s84, {i*6144}'); a.vmem(f'buffer_load_dwordx4 v[{20+4*i}:{23+4*i}], v6, s[16:19], s86 offen', 'w1')
        a.vmem('buffer_load_dwordx4 v[8:11], v3, s[28:31], s80 offen', 'x'); a.vmem('buffer_load_dwordx4 v[12:15], v3, s[28:31], s80 offen offset:1024', 'x')
        a.vmem('buffer_load_ushort v52, v68, s[12:15], 0 offen', 'c2'); a.vmem('buffer_load_ushort v53, v68, s[12:15], 0 offen offset:512', 'c2')
        for i in range(2):
            a(f's_add_u32 s86, s87, {i*256*6144}'); a.vmem(f'buffer_load_dwordx4 v[{56+4*i}:{59+4*i}], v67, s[16:19], s86 offen', 'w2')
        if M['w_mode'] == 'early': self.wq_dma(); a.fake = 43
        if M['kvpf']:
            a(f's_lshl_b32 s44, s{S_H}, 19'); a(f's_lshl_b32 s45, s{S_QB}, 13'); a(f's_lshl_b32 s46, s{S_W}, 11'); a('s_add_u32 s45, s45, s46')
            a.srd(20, 78, 's44', 524288)
            a.vmem('buffer_load_dwordx4 v[148:151], v3, s[20:23], s45 offen', 'pf'); a.vmem('buffer_load_dwordx4 v[152:155], v3, s[20:23], s45 offen offset:1024', 'pf')
            a(f's_mul_i32 s45, s{S_QB}, 6144'); a(f's_mul_i32 s46, s{S_W}, 1536'); a('s_add_u32 s45, s45, s46')
            a.srd(20, 90, 's44', 524288)
            a.vmem('buffer_load_dwordx4 v[156:159], v3, s[20:23], s45 offen', 'pf'); a.vmem('buffer_load_dwordx4 v[160:163], v3, s[20:23], s45 offen offset:512', 'pf')
        a.srd(SRD_SY, 4, WS_SYNC, 28672); a.srd(64, 76, 0, 256); a.srd(SRD_XN, 4, WS_XN, 2097152); a.srd(SRD_WQ, 74, 0, 4194304)
        a.srd(SRD_MP, 4, 0, WS_M2 + 8192)
        a('s_cmp_lg_u32 s2, 0'); a('s_cbranch_scc1 F_NOZ')
        for k in range(4): a(f'v_mov_b32 v{72+k}, 0')
        a(f'v_lshlrev_b32 v76, 4, v{TID}')
        for k in range(7):
            a(f's_mov_b32 s{S_T}, {k*4096}'); a(f'buffer_store_dwordx4 v[72:75], v76, s[{SRD_SY}:{SRD_SY+3}], s{S_T} offen sc1')
        a('s_waitcnt vmcnt(0)'); a('s_barrier')
        a(f's_cmp_lg_u32 s{S_W}, 0'); a('s_cbranch_scc1 F_NOZ')
        a('s_mov_b64 exec, 1'); a('v_mov_b32 v72, 1'); a('v_mov_b32 v73, 0'); a('buffer_store_dword v72, v73, s[64:67], 0 offen sc1'); a('s_mov_b64 exec, -1')
        a.label('F_NOZ')
        def silu(vals):
            for i, r in enumerate(vals): a(f'v_mul_f32 v{124+i}, {f2u(-LOG2E)}, v{r}')
            for i, r in enumerate(vals): a(f'v_exp_f32 v{124+i}, v{124+i}')
            a('s_nop 0')
            for i, r in enumerate(vals): a(f'v_add_f32 v{124+i}, 1.0, v{124+i}')
            for i, r in enumerate(vals): a(f'v_rcp_f32 v{124+i}, v{124+i}')
            a('s_nop 0')
            for i, r in enumerate(vals): a(f'v_mul_f32 v{r}, v{r}, v{124+i}')
            for r in vals: round_bf16(a, r, 132)
        a.wait_vm('c1')
        for k in range(4):
            a(f'v_lshlrev_b32 v{100+2*k}, 16, v{16+k}'); a(f'v_and_b32 v{101+2*k}, 0xffff0000, v{16+k}')
        silu(list(range(100, 108)))
        a.wait_vm('w1')
        for i in range(8):
            for j in range(4):
                w = 20+4*i+j
                a(f'v_lshlrev_b32 v108, 16, v{w}'); a(f'v_and_b32 v109, 0xffff0000, v{w}')
                if i == 0: a(f'v_mul_f32 v{110+2*j}, v108, v100'); a(f'v_mul_f32 v{111+2*j}, v109, v100')
                else: a(f'v_fmac_f32 v{110+2*j}, v108, v{100+i}'); a(f'v_fmac_f32 v{111+2*j}, v109, v{100+i}')
        a('v_lshlrev_b32 v108, 7, v5'); a('v_lshlrev_b32 v109, 1, v4'); a('v_add_u32 v108, v108, v109'); a(f'v_add_u32 v108, {SCR}, v108')
        for j in range(4): a(f'ds_write_b64 v108, v[{110+2*j}:{111+2*j}] offset:{8*j}')
        a('s_waitcnt lgkmcnt(0)'); a('s_barrier')
        a(f's_cmp_lg_u32 s{S_W}, 0'); a('s_cbranch_scc1 F_NOT0')
        a(f'v_and_b32 v70, 31, v{L}'); a('v_lshlrev_b32 v70, 2, v70'); a(f'v_lshrrev_b32 v71, 5, v{L}'); a('v_lshlrev_b32 v71, 12, v71'); a('v_add_u32 v71, v71, v70'); a(f'v_add_u32 v71, {SCR}, v71')
        for r in range(32): a(f'ds_read_b32 v{20+r}, v71 offset:{128*r}')
        a('s_waitcnt lgkmcnt(0)')
        n = 32
        while n > 1:
            for r in range(n//2): a(f'v_add_f32 v{20+r}, v{20+r}, v{20+r+n//2}')
            n //= 2
        xhalf_sum(a, 20, 21)
        a(f's_lshl_b32 s44, s{S_QB}, 12'); a('s_lshl_b32 s45, s82, 7'); a('s_add_u32 s44, s44, s45')
        a('s_mov_b64 exec, 0xffffffff'); a(f'buffer_store_dword v20, v70, s[{SRD_MP}:{SRD_MP+3}], s44 offen sc1')
        a('s_mov_b64 exec, 1'); a('v_mov_b32 v252, 0'); a('s_mov_b32 s68, 0')
        a.label('F_ZP')
        a('buffer_load_dword v251, v252, s[64:67], 0 offen sc1'); a('s_waitcnt vmcnt(0)'); a('v_readfirstlane_b32 s69, v251')
        a('s_add_u32 s68, s68, 1'); a('s_cmp_lg_u32 s69, 0'); a('s_cbranch_scc1 F_ZD')
        a(f's_cmp_gt_u32 s68, {M["spin"]}'); a('s_cbranch_scc1 F_ZD'); a('s_sleep 1'); a('s_branch F_ZP')
        a.label('F_ZD')
        a(f's_lshl_b32 s70, s{S_QB}, 8'); a('v_mov_b32 v251, 1'); a('v_mov_b32 v252, s70')
        a(f'buffer_atomic_add v251, v252, s[{SRD_SY}:{SRD_SY+3}], 0 offen sc1')
        a('s_mov_b64 exec, -1')
        a.label('F_NOT0')
        self.stamp()
        a.wait_vm('x')
        for r in range(2):
            src = 8+4*r; X = 100+8*r
            for k in range(4):
                a(f'v_lshlrev_b32 v{X+2*k}, 16, v{src+k}'); a(f'v_and_b32 v{X+2*k+1}, 0xffff0000, v{src+k}')
            m = 116+r
            a(f'v_add_f32 v{m}, v{X}, v{X+1}')
            for k in range(2, 8): a(f'v_add_f32 v{m}, v{m}, v{X+k}')
        allreduce_multi(a, [116, 117], [118, 119])
        for r in range(2):
            X = 100+8*r; m = 116+r; v = 120+r
            a(f'v_mul_f32 v{m}, {f2u(1/512)}, v{m}')
            a(f'v_sub_f32 v118, v{X}, v{m}'); a(f'v_mul_f32 v{v}, v118, v118')
            for k in range(1, 8):
                a(f'v_sub_f32 v118, v{X+k}, v{m}'); a(f'v_fmac_f32 v{v}, v118, v118')
        allreduce_multi(a, [120, 121], [118, 119])
        for r in range(2):
            X = 100+8*r; m = 116+r; v = 120+r
            a(f'v_mul_f32 v{v}, {f2u(1/512)}, v{v}')
            round_bf16(a, v, 118); a(f'v_add_f32 v{v}, {f2u(1e-5)}, v{v}'); round_bf16(a, v, 118)
            a(f'v_sqrt_f32 v{v}, v{v}'); a('s_nop 0'); round_bf16(a, v, 118)
            a(f'v_rcp_f32 v{v}, v{v}'); round_bf16(a, m, 118)
            for k in range(4):
                a(f'v_sub_f32 v118, v{X+2*k}, v{m}'); a(f'v_sub_f32 v119, v{X+2*k+1}, v{m}')
                a('v_cvt_pk_bf16_f32 v122, v118, v119'); a('v_lshlrev_b32 v118, 16, v122'); a('v_and_b32 v119, 0xffff0000, v122')
                a(f'v_mul_f32 v118, v118, v{v}'); a(f'v_mul_f32 v119, v119, v{v}')
                a('v_cvt_pk_bf16_f32 v122, v118, v119'); a(f'v_lshlrev_b32 v{X+2*k}, 16, v122'); a(f'v_and_b32 v{X+2*k+1}, 0xffff0000, v122')
        a.vm = []
        self.stamp()
        a.fake = 0; a.vm = []
        if M['w_mode'] == 'late': self.wq_dma()
        a(f's_lshl_b32 s70, s{S_QB}, 8')
        self.wait([(70, 1, 32)])
        self.stamp()
        a(f'v_lshlrev_b32 v70, 5, v{L}'); a(f's_lshl_b32 s44, s{S_QB}, 12')
        a.vmem(f'buffer_load_dwordx4 v[20:23], v70, s[{SRD_MP}:{SRD_MP+3}], s44 offen sc1', 'g'); a.vmem(f'buffer_load_dwordx4 v[24:27], v70, s[{SRD_MP}:{SRD_MP+3}], s44 offen offset:16 sc1', 'g')
        a.vmem(f'buffer_load_dwordx4 v[28:31], v70, s[{SRD_MP}:{SRD_MP+3}], s44 offen offset:2048 sc1', 'g'); a.vmem(f'buffer_load_dwordx4 v[32:35], v70, s[{SRD_MP}:{SRD_MP+3}], s44 offen offset:2064 sc1', 'g')
        a.wait_vm('g')
        cs = 128**-0.5 * LOG2E
        for k in range(8):
            round_bf16(a, 20+k, 36); round_bf16(a, 28+k, 36)
            a(f'v_add_f32 v{28+k}, 1.0, v{28+k}'); round_bf16(a, 28+k, 36)
        for r in range(2):
            X = 100+8*r
            for k in range(8): a(f'v_fma_f32 v{X+k}, v{X+k}, v{28+k}, v{20+k}')
            for k in range(4): a(f'v_cvt_pk_bf16_f32 v{8+4*r+k}, v{X+2*k}, v{X+2*k+1}')
        a(f'v_lshlrev_b32 v118, 7, v{L}'); a(f's_lshl_b32 s44, s{S_W}, 5'); a(f's_add_u32 s44, s44, {SCR+8192}'); a('v_add_u32 v118, s44, v118')
        a('ds_write_b128 v118, v[8:11]'); a('ds_write_b128 v118, v[12:15] offset:16')
        a('s_waitcnt lgkmcnt(0)'); a('s_barrier')
        a(f'v_lshlrev_b32 v118, 4, v{TID}'); a(f'v_add_u32 v119, {SCR+8192}, v118')
        a('ds_read_b128 v[8:11], v119'); a('ds_read_b128 v[12:15], v119 offset:4096')
        a(f'v_lshrrev_b32 v119, 3, v{TID}'); a('v_lshlrev_b32 v119, 9, v119'); a(f'v_and_b32 v120, 7, v{TID}'); a('v_lshlrev_b32 v120, 4, v120'); a('v_add_u32 v119, v119, v120')
        a('s_lshr_b32 s44, s2, 2'); a('s_lshl_b32 s44, s44, 15'); a('s_and_b32 s45, s2, 3'); a('s_lshl_b32 s45, s45, 7'); a('s_add_u32 s44, s44, s45'); a('s_add_u32 s45, s44, 16384')
        a('s_waitcnt lgkmcnt(0)')
        a(f'buffer_store_dwordx4 v[8:11], v119, s[{SRD_XN}:{SRD_XN+3}], s44 offen sc1'); a(f'buffer_store_dwordx4 v[12:15], v119, s[{SRD_XN}:{SRD_XN+3}], s45 offen sc1')
        a(f's_add_u32 s70, s{S_QB}, {C_FG2}'); a('s_lshl_b32 s70, s70, 8')
        self.signal([70], vm_allow=0); a.vm = []
        a('v_lshlrev_b32 v134, 16, v52'); a('v_lshlrev_b32 v135, 16, v53')
        silu([134, 135])
        for i in range(2):
            for j in range(4):
                w = 56+4*i+j
                a(f'v_lshlrev_b32 v136, 16, v{w}'); a(f'v_and_b32 v137, 0xffff0000, v{w}')
                if i == 0: a(f'v_mul_f32 v{140+2*j}, v136, v134'); a(f'v_mul_f32 v{141+2*j}, v137, v134')
                else: a(f'v_fmac_f32 v{140+2*j}, v136, v135'); a(f'v_fmac_f32 v{141+2*j}, v137, v135')
        a('s_nop 1'); allreduce_multi(a, list(range(140, 148)), list(range(124, 132)))
        a(f's_lshl_b32 s44, s{S_W}, 5'); a(f's_add_u32 s44, s44, {SCR+4096}'); a('v_mov_b32 v136, s44')
        a('s_mov_b64 exec, 1'); a('ds_write_b128 v136, v[140:143]'); a('ds_write_b128 v136, v[144:147] offset:16'); a('s_mov_b64 exec, -1')
        a('s_waitcnt lgkmcnt(0)'); a('s_barrier')
        a(f's_cmp_lg_u32 s{S_W}, 1'); a('s_cbranch_scc1 F_NOT1')
        a(f'v_and_b32 v70, 7, v{L}'); a('v_lshlrev_b32 v70, 2, v70'); a(f'v_add_u32 v71, {SCR+4096}, v70')
        for w in range(4): a(f'ds_read_b32 v{20+w}, v71 offset:{32*w}')
        a('s_waitcnt lgkmcnt(0)')
        a('v_add_f32 v20, v20, v21'); a('v_add_f32 v22, v22, v23'); a('v_add_f32 v20, v20, v22')
        a('s_lshl_b32 s44, s83, 5'); a(f's_add_u32 s44, s44, {WS_M2}')
        a('s_mov_b64 exec, 0xff'); a(f'buffer_store_dword v20, v70, s[{SRD_MP}:{SRD_MP+3}], s44 offen sc1')
        a('s_mov_b64 exec, 1'); a('v_mov_b32 v252, 0'); a('s_mov_b32 s68, 0')
        a.label('F_ZP1')
        a('buffer_load_dword v251, v252, s[64:67], 0 offen sc1'); a('s_waitcnt vmcnt(0)'); a('v_readfirstlane_b32 s69, v251')
        a('s_add_u32 s68, s68, 1'); a('s_cmp_lg_u32 s69, 0'); a('s_cbranch_scc1 F_ZD1')
        a(f's_cmp_gt_u32 s68, {M["spin"]}'); a('s_cbranch_scc1 F_ZD1'); a('s_sleep 1'); a('s_branch F_ZP1')
        a.label('F_ZD1')
        a('s_and_b32 s71, s2, 7'); a(f's_add_u32 s71, s71, {C_M2}'); a('s_lshl_b32 s71, s71, 8'); a('v_mov_b32 v251, 1'); a('v_mov_b32 v252, s71')
        a(f'buffer_atomic_add v251, v252, s[{SRD_SY}:{SRD_SY+3}], 0 offen sc1')
        a('s_mov_b64 exec, -1')
        a.label('F_NOT1')
        self.stamp()

    def attention(self):
        a = self.a; L = LANE
        a(f's_load_dwordx2 s[6:7], s[0:1], {KA_K}'); a(f's_load_dwordx2 s[8:9], s[0:1], {KA_V}')
        a(f's_load_dwordx2 s[56:57], s[0:1], {KA_WO}'); a(f's_load_dwordx2 s[90:91], s[0:1], {KA_WG}'); a(f's_load_dwordx2 s[92:93], s[0:1], {KA_WU}'); a(f's_load_dwordx2 s[94:95], s[0:1], {KA_WD}')
        a(f's_lshl_b32 s{S_RT}, s{S_QB}, 3'); a(f's_lshl_b32 s{S_T}, s{S_W}, 1'); a(f's_add_u32 s{S_RT}, s{S_RT}, s{S_T}')
        a(f's_lshl_b32 s{S_M0}, s{S_W}, 12'); a(f's_mov_b32 s{S_THR}, {f2u(THR)}')
        a('s_mov_b32 s58, 4194304'); a('s_mov_b32 s59, 0x00020000')
        a('s_mov_b32 s96, 1835008'); a('s_mov_b32 s97, 1835008'); a('s_mov_b32 s98, 1835008')
        a(f's_lshl_b32 s{S_PF}, s2, 12'); a(f's_lshl_b32 s{S_PFM}, s{S_W}, 10'); a(f's_add_u32 s{S_PF}, s{S_PF}, s{S_PFM}'); a(f's_add_u32 s{S_PFM}, s{S_PFM}, {SCR}')
        vg, vhf, vch, vrr, vc, vt, vu = 200, 201, 202, 203, 204, 205, 206
        a(f'v_lshrrev_b32 v{vg}, 4, v{L}'); a(f'v_lshrrev_b32 v{vhf}, 5, v{L}'); a(f'v_and_b32 v{vch}, 1, v{vg}'); a(f'v_bfe_u32 v{vrr}, v{L}, 2, 2'); a(f'v_and_b32 v{vc}, 3, v{L}')
        a(f'v_and_b32 v{vt}, 15, v{L}'); a(f'v_lshlrev_b32 v{vu}, 2, v{vg}'); a(f'v_xor_b32 v{vu}, v{vt}, v{vu}'); a(f'v_lshlrev_b32 v{vu}, 4, v{vu}')
        a(f'v_lshlrev_b32 v{VOV}, 8, v{vg}'); a(f'v_add_u32 v{VOV}, v{VOV}, v{vu}')
        for i in range(4):
            a(f'v_add_u32 v{vu}, {4*i}, v{vg}'); a(f'v_xor_b32 v{vu}, v{vt}, v{vu}'); a(f'v_lshlrev_b32 v{vu}, 4, v{vu}')
            a(f'v_lshlrev_b32 v{VOK+i}, 8, v{vg}'); a(f'v_add_u32 v{VOK+i}, v{VOK+i}, v{vu}')
        a(f'v_and_b32 v{vt}, 31, v{L}')
        for s in range(8):
            a(f'v_add_u32 v{vu}, {2*s}, v{vhf}'); a(f'v_and_b32 v{KAD+s}, 15, v{vt}'); a(f'v_xor_b32 v{vu}, v{vu}, v{KAD+s}'); a(f'v_lshlrev_b32 v{vu}, 4, v{vu}')
            a(f'v_lshlrev_b32 v{KAD+s}, 8, v{vt}'); a(f'v_add_u32 v{KAD+s}, v{KAD+s}, v{vu}')
        WAD = 246
        for dt in range(4):
            a(f'v_xor_b32 v{vt}, {dt}, v{vrr}'); a(f'v_lshlrev_b32 v{vt}, 2, v{vt}'); a(f'v_lshlrev_b32 v{vu}, 1, v{vch}'); a(f'v_add_u32 v{vt}, v{vt}, v{vu}')
            a(f'v_lshrrev_b32 v{vu}, 1, v{vc}'); a(f'v_add_u32 v{vu}, v{vt}, v{vu}'); a(f'v_lshlrev_b32 v{vu}, 4, v{vu}')
            a(f'v_and_b32 v207, 1, v{vc}'); a('v_lshlrev_b32 v207, 3, v207'); a(f'v_add_u32 v{vu}, v{vu}, v207')
            a(f'v_lshlrev_b32 v207, 2, v{vhf}'); a(f'v_add_u32 v207, v207, v{vrr}'); a('v_lshlrev_b32 v207, 8, v207'); a(f'v_add_u32 v{vu}, v{vu}, v207')
            a(f'v_add_u32 v{VAD+dt}, {VBASE}, v{vu}')
            a(f'v_and_b32 v{vu}, 1, v{vc}'); a(f'v_add_u32 v{vu}, v{vt}, v{vu}'); a(f'v_lshlrev_b32 v{vu}, 4, v{vu}')
            a(f'v_lshrrev_b32 v207, 1, v{vc}'); a('v_lshlrev_b32 v207, 3, v207'); a(f'v_add_u32 v{vu}, v{vu}, v207')
            a(f'v_lshlrev_b32 v207, 3, v{vhf}'); a(f'v_add_u32 v207, v207, v{vrr}'); a('v_lshlrev_b32 v207, 8, v207'); a(f'v_add_u32 v{WAD+dt}, v{vu}, v207')
        XOFF = 221
        a(f'v_lshlrev_b32 v{XOFF}, 4, v{L}')
        a('s_waitcnt lgkmcnt(0)')
        a(f's_lshl_b32 s{S_T}, s{S_H}, 19')
        a.srd(SRD_K, 6, f's{S_T}', 524288); a.srd(SRD_V, 8, f's{S_T}', 524288); a.srd(SRD_O, 4, WS_O, 16777216)
        a(f's_add_u32 s70, s{S_QB}, {C_FG2}'); a('s_lshl_b32 s70, s70, 8')
        self.wait([(70, 1, 32)])
        self.stamp()
        S_XO = 48
        a(f's_lshl_b32 s{S_XO}, s{S_RT}, 15'); a(f's_add_u32 s{S_XO+1}, s{S_XO}, 32768')
        SLOTS = [8*i for i in range(8)] + [192, 200, 208]
        RING = len(SLOTS)
        def x_ops(s, q):
            r = SLOTS[s % RING] + 4*q
            return ([f's_add_u32 s{S_T}, s{S_XO+q}, {(s//4)*4096}'],
                    f'buffer_load_dwordx4 v[{r}:{r+3}], v{XOFF}, s[{SRD_XN}:{SRD_XN+3}], s{S_T} offen offset:{(s%4)*1024} {M["ldsc"]}')
        def kv_ops(which, tile, i):
            base = (0 if which == 'K' else VBASE) + (tile & 3)*16384
            srd = SRD_K if which == 'K' else SRD_V
            vo = VOK+i if which == 'K' else VOV
            return ([f's_add_u32 m0, s{S_M0}, {base}', f's_add_u32 s{S_T}, s{S_M0}, {tile*16384}'],
                    f'buffer_load_dwordx4 v{vo}, s[{srd}:{srd+3}], s{S_T} offen offset:{1024*i} lds')
        def emit_item(ops, tag):
            for x in ops[0]: a(x)
            a.vmem(ops[1], tag)
        PRE_X = min(M['pre_x'], RING)
        for s in range(PRE_X):
            for q in range(2): emit_item(x_ops(s, q), ('X', s))
        LA = 2; WF = [192, 208, 224]
        def QA(q, dt): return 64 + (q*4+dt)*16
        def w_read_ops(s):
            return [f'ds_read_b64_tr_b16 {ar(WF[s % 3] + dt*4 + 2*u,2)}, v{WAD+dt} offset:{(s%16)*4096 + 1024*u}' for dt in range(4) for u in range(2)]
        for s0 in range(LA):
            for op in w_read_ops(s0): a.lds(op, ('Wf', s0))
        BARS = [7, 15, 23, 31]
        Q = []
        for s in range(PRE_X, 32):
            for q in range(2): Q.append((s-1, s-RING+1, ('X', s), x_ops(s, q)))
        for which, tile, av in (('K',0,7),('K',1,7),('K',2,15),('K',3,15),('V',0,23),('V',1,23),('V',2,31)):
            for i in range(4): Q.append((100, max(av, M['kv_from']), (which, tile), kv_ops(which, tile, i)))
        Q.sort(key=lambda x: x[0])
        def pop_q(s):
            for i, it in enumerate(Q):
                if it[1] <= s: return Q.pop(i)
            return None
        bumped = False
        for s in range(32):
            assert not any(it[2] == ('X', s) for it in Q), s
            if s in BARS: a.wait_vm(('X', s)); a.wait_lg0(); a('s_barrier')
            else: a.wait_vm(('X', s)); a.wait_lg(('Wf', s))
            if s+LA == 16:
                for dt in range(4): a(f'v_add_u32 v{WAD+dt}, 65536, v{WAD+dt}')
            wr = w_read_ops(s+LA) if s+LA < 32 else []
            x = SLOTS[s % RING]
            mfs = [mfma(vr(QA(q,dt),16), ar(WF[s % 3]+dt*4,4), vr(x+4*q,4), '0' if s == 0 else vr(QA(q,dt),16)) for dt in range(4) for q in range(2)]
            ri = 0
            for g in range(8):
                it = pop_q(s) if g in M['qp_slots'] else None
                if it:
                    for t_ in it[3][0]: a(t_)
                a(mfs[g])
                if it: a.vmem(it[3][1], it[2])
                else:
                    for op in wr[ri:ri+2]: a.lds(op, ('Wf', s+LA))
                    ri += 2
            for op in wr[ri:]: a.lds(op, ('Wf', s+LA))
        while Q:
            it = Q.pop(0); emit_item(it[3], it[2])
        a(f's_add_u32 s{S_KOFF}, s{S_M0}, {4*16384}'); a(f's_add_u32 s{S_VOFF}, s{S_M0}, {3*16384}')
        self.stamp()
        a(f'v_mov_b32 v250, {f2u(128**-0.5 * LOG2E)}')
        a.nop(14)
        for q in range(2):
            for dt in range(4):
                for k in range(0, 16, 2):
                    r = QA(q,dt)+k
                    a(f'v_pk_mul_f32 v[{r}:{r+1}], v[{r}:{r+1}], v[250:251] op_sel_hi:[1,0]')
                for t in range(2):
                    b = 4*((2*dt+t) % 4)
                    for k in range(4): a(f'v_cvt_pk_bf16_f32 v{b+k}, v{QA(q,dt)+8*t+2*k}, v{QA(q,dt)+8*t+2*k+1}')
                    for k in range(4): a(f'v_accvgpr_write_b32 a{QF(q,2*dt+t)+k}, v{b+k}')
        a(f'v_mov_b32 v{LR[0]}, 0'); a(f'v_mov_b32 v{LR[1]}, 0')
        a.wait_vm(('V', 1)); a('s_barrier')
        for s in range(8): a(k_read(s, 0))
        a('s_waitcnt lgkmcnt(0)')
        for s in range(8):
            for q in range(2):
                d = vr(S[0]+q*16, 16); a(mfma(d, ar(KF(s),4), ar(QF(q,s),4), '0' if s == 0 else d))
        for s in range(8): a(k_read(s, 1))
        a.nop(16)
        m = TMP+1; t2 = TMP+2
        for q in range(2):
            sc = S[0]+q*16
            a(f'v_max3_f32 v{m}, v{sc}, v{sc+1}, v{sc+2}')
            for r in range(3, 15, 2): a(f'v_max3_f32 v{m}, v{m}, v{sc+r}, v{sc+r+1}')
            a(f'v_max_f32 v{m}, v{m}, v{sc+15}')
            a(f'v_mov_b32 v{t2}, v{m}'); a('s_nop 1'); a(f'v_permlane32_swap_b32 v{t2}, v{m}'); a('s_nop 1'); a(f'v_max_f32 v{m}, v{m}, v{t2}')
            a(f'v_add_f32 v{m}, {f2u(OFFSET)}, v{m}')
            for r in range(16):
                a(f'v_sub_f32 v{NEGM+q*16+r}, 0, v{m}'); a(f'v_sub_f32 v{sc+r}, v{sc+r}, v{m}')
        self.stubs = stubs = []
        self.stamp()
        gen_iter(a, 0, do_pv=False, do_vread=False, barrier=63, dmaK=4, lsum_prev=False, stubs=stubs)
        gen_iter(a, 1, dmaV=3, stubs=stubs, pf=True, pv_zero=True)
        if M.get('fine'): self.stamp()
        a(f's_mov_b32 s{S_CNT}, 7')
        a.raw('.p2align 6')
        a.label('KB_LOOP0')
        for j in range(2, 10):
            T_ = j//2
            if j % 2 == 0: gen_iter(a, j, barrier=18, dmaK=T_+4, stubs=stubs)
            else: gen_iter(a, j, dmaV=T_+3, stubs=stubs, pf=True)
            if j == 8:
                a(f's_sub_u32 s{S_PF}, s{S_PF}, 0x400000')
                a('s_mov_b32 s56, s90'); a('s_mov_b32 s57, s91'); a('s_mov_b32 s90, s92'); a('s_mov_b32 s91, s93'); a('s_mov_b32 s92, s94'); a('s_mov_b32 s93, s95')
                a('s_mov_b32 s58, s96'); a('s_mov_b32 s96, s97'); a('s_mov_b32 s97, s98'); a('s_mov_b32 s98, 0')
        a(f's_sub_u32 s{S_CNT}, s{S_CNT}, 1'); a(f's_cmp_lg_u32 s{S_CNT}, 0'); a('s_cbranch_scc1 KB_LOOP0')
        if M.get('fine'): self.stamp()
        gen_iter(a, 58, barrier=9, stubs=stubs); gen_iter(a, 59, stubs=stubs)
        gen_iter(a, 60, barrier=0, stubs=stubs); gen_iter(a, 61, stubs=stubs); gen_iter(a, 62, do_kread=False, stubs=stubs)
        gen_iter(a, 63, do_qk=False, do_kread=False, stubs=stubs)
        a(f'v_add_f32 v{LR[0]}, v{LR[0]}, v{LT[0]}'); a(f'v_add_f32 v{LR[1]}, v{LR[1]}, v{LT[1]}')
        for t in range(2):
            for dt in range(4):
                for u in range(2): a(v_read(t, dt, u, 63))
        a('s_waitcnt lgkmcnt(0)')
        for t in range(2):
            for dt in range(4):
                for q in range(2):
                    d = ar(OA(q,dt),16); a(mfma(d, ar(VF(t,dt),4), vr(P[1]+q*8+t*4,4), d))
        a('s_barrier')
        a.vm = []; a.lg = []
        self.stamp()
        for q in range(2):
            xhalf_sum(a, LR[q], TMP); a(f'v_rcp_f32 v{LR[q]}, v{LR[q]}')
        a.nop(16)
        S_WS = 45
        a(f's_lshl_b32 s{S_T}, s{S_RT}, 18'); a(f's_lshl_b32 s{S_WS}, s{S_H}, 13'); a(f's_add_u32 s{S_XO}, s{S_T}, s{S_WS}'); a(f's_add_u32 s{S_XO+1}, s{S_XO}, {256*1024}')
        cnt = 0
        for q in range(2):
            a(f'v_mov_b32 v250, v{LR[q]}')
            for dt in range(4):
                for t in range(2):
                    b = 16*(cnt % 4); cnt += 1
                    for k in range(8): a(f'v_accvgpr_read_b32 v{b+k}, a{OA(q,dt)+8*t+k}')
                    for k in range(0, 8, 2): a(f'v_pk_mul_f32 v[{b+k}:{b+k+1}], v[{b+k}:{b+k+1}], v[250:251] op_sel_hi:[1,0]')
                    for k in range(4): a(f'v_cvt_pk_bf16_f32 v{b+8+k}, v{b+2*k}, v{b+2*k+1}')
                    ks = 2*dt+t
                    a(f's_add_u32 s{S_T}, s{S_XO+q}, {(ks//4)*4096}')
                    a.vmem(f'buffer_store_dwordx4 v[{b+8}:{b+11}], v{XOFF}, s[{SRD_O}:{SRD_O+3}], s{S_T} offen offset:{(ks%4)*1024} sc1', 'ost')

    def lane_consts_vstyle(self, WAD, WOFF, rowstride, tmp):
        a = self.a; L = LANE
        vg, vhf, vch, vrr, vc, vt, vu, vw = range(tmp, tmp+8)
        a(f'v_lshrrev_b32 v{vg}, 4, v{L}'); a(f'v_lshrrev_b32 v{vhf}, 5, v{L}'); a(f'v_and_b32 v{vch}, 1, v{vg}')
        a(f'v_bfe_u32 v{vrr}, v{L}, 2, 2'); a(f'v_and_b32 v{vc}, 3, v{L}')
        a(f'v_and_b32 v{vt}, 15, v{L}'); a(f'v_lshlrev_b32 v{vu}, 2, v{vg}'); a(f'v_xor_b32 v{vu}, v{vt}, v{vu}'); a(f'v_lshlrev_b32 v{vu}, 4, v{vu}')
        a(f'v_mul_u32_u24 v{WOFF}, {rowstride}, v{vg}'); a(f'v_add_u32 v{WOFF}, v{WOFF}, v{vu}')
        for dt in range(4):
            a(f'v_xor_b32 v{vt}, {dt}, v{vrr}'); a(f'v_lshlrev_b32 v{vt}, 2, v{vt}'); a(f'v_lshlrev_b32 v{vu}, 1, v{vch}'); a(f'v_add_u32 v{vt}, v{vt}, v{vu}')
            a(f'v_lshrrev_b32 v{vu}, 1, v{vc}'); a(f'v_add_u32 v{vu}, v{vt}, v{vu}'); a(f'v_lshlrev_b32 v{vu}, 4, v{vu}')
            a(f'v_and_b32 v{vw}, 1, v{vc}'); a(f'v_lshlrev_b32 v{vw}, 3, v{vw}'); a(f'v_add_u32 v{vu}, v{vu}, v{vw}')
            a(f'v_lshlrev_b32 v{vw}, 2, v{vhf}'); a(f'v_add_u32 v{vw}, v{vw}, v{vrr}'); a(f'v_lshlrev_b32 v{vw}, 8, v{vw}')
            a(f'v_add_u32 v{WAD[0]+dt}, v{vu}, v{vw}'); a(f'v_add_u32 v{WAD[1]+dt}, 65536, v{WAD[0]+dt}')

    def shared_gemm(self, NK, NM, nmat, CH, w_dma_ops, x_load_ops, XRING, XR, WF, WAD, ACC, pre_x, nv, npre, LA=2):
        a = self.a
        chunk_bytes = nmat*CH*4096; NSLOT = 131072 // chunk_bytes; NCH = NK // CH
        NB = LA+1
        def emit(ops, tag):
            for x in ops[0]: a(x)
            a.vmem(ops[1], tag)
        for s in range(pre_x): emit(x_load_ops(s), ('X', s))
        a.wait_vm(('W', 0)); a('s_barrier')
        Q = []
        for c in range(npre, NCH):
            av = -1 if c < NSLOT else (c-NSLOT+1)*CH - LA
            for o in w_dma_ops(c): Q.append((c*CH-LA-2*CH, av, ('W', c), o))
        for s in range(pre_x, NK): Q.append((s-0.5-4, s-XRING+1, ('X', s), x_load_ops(s)))
        Q.sort(key=lambda x: x[0])
        def pop_q(s):
            for i, it in enumerate(Q):
                if it[1] <= s: return Q.pop(i)
            return None
        def w_read_ops(s):
            ops = []; c = s//CH; slot = c % NSLOT
            for gu in range(nmat):
                for dt in range(4):
                    for u in range(2):
                        off = slot*chunk_bytes + gu*CH*4096 + (s % CH)*4096 + u*2048
                        ops.append(f'ds_read_b64_tr_b16 {ar(WF[s % NB] + (gu*4+dt)*4 + 2*u,2)}, v{WAD[off>>16]+dt} offset:{off & 65535}')
            return ops
        half = NM
        for s0 in range(LA):
            for i, op in enumerate(w_read_ops(s0)): a.lds(op, ('Wf', s0, i//half))
        for s in range(NK):
            bar = ((s+LA) % CH == 0 and s+LA < NK)
            assert not any(it[2] == ('X', s) for it in Q), s
            if bar:
                c = (s+LA)//CH
                assert not any(it[2] == ('W', c) for it in Q), (s, c)
                a.wait_vm([('W', c), ('X', s)]); a.wait_lg0(); a('s_barrier')
            else:
                a.wait_vm(('X', s)); a.wait_lg(('Wf', s, 0))
            wr = w_read_ops(s+LA) if s+LA < NK else []
            x = XR + 4*(s % XRING)
            items = []
            for _ in range(nv):
                it = pop_q(s)
                if it: items.append(it)
            vg = list(range(0, NM, max(1, NM//max(1, nv))))[:len(items)] if items else []
            vg = [NM-1-g for g in vg]
            free = [g for g in range(NM) if g not in vg]
            nper = {g: 0 for g in range(NM)}
            rem = len(wr)
            cap = M['tr_cap']
            for g in free:
                k = min(cap, rem); nper[g] = k; rem -= k
            gi = 0; sv = sorted(vg) + free
            while rem:
                nper[sv[gi % len(sv)]] += 1; rem -= 1; gi += 1
            ri = 0; vi = 0
            for g in range(NM):
                d = ACC(g)
                if g == NM//2 and not bar: a.wait_lg(('Wf', s, 1))
                it = None
                if g in vg:
                    it = items[vi]; vi += 1
                    for t in it[3][0]: a(t)
                a(mfma(d, ar(WF[s % NB]+g*4,4), vr(x,4), '0' if s == 0 else d))
                if it: a.vmem(it[3][1], it[2])
                for _ in range(nper[g]):
                    a.lds(wr[ri], ('Wf', s+LA, ri//half)); ri += 1
        assert not Q, Q

    def mod2_tables(self):
        a = self.a
        a.srd(64, 4, WS_M2, 65536)
        a(f's_mov_b32 s71, {C_M2*256}')
        self.wait([(71, 8, 32)])
        a(f'v_lshlrev_b32 v136, 3, v{TID}'); a('v_add_u32 v137, 4096, v136')
        B0 = 64
        for e in range(8):
            a(f's_mov_b32 s83, {e*8192}')
            for j in range(4):
                vo = 136 if j < 2 else 137
                a.vmem(f'buffer_load_dwordx2 v[{B0+16*j+2*e}:{B0+16*j+2*e+1}], v{vo}, s[64:67], s83 offen offset:{2048*(j%2)} sc1', 'mod')
        a.wait_vm('mod')
        for j in range(4):
            for c_ in range(2):
                b = B0+16*j+c_
                for st_ in (2, 4, 8):
                    for e in range(0, 16, 2*st_): a(f'v_add_f32 v{b+e}, v{b+e}, v{b+e+st_}')
                round_bf16(a, b, 138)
        for c_ in range(2):
            a(f'v_add_f32 v{B0+32+c_}, 1.0, v{B0+32+c_}'); round_bf16(a, B0+32+c_, 138)
        a(f'v_add_u32 v136, {SCR}, v136')
        a(f'ds_write_b64 v136, v[{B0}:{B0+1}]'); a(f'ds_write_b64 v136, v[{B0+32}:{B0+33}] offset:2048')
        a(f'ds_write_b64 v136, v[{B0+16}:{B0+17}] offset:4096'); a(f'ds_write_b64 v136, v[{B0+48}:{B0+49}] offset:6144')
        a('s_waitcnt lgkmcnt(0)')

    def phase_c(self):
        a = self.a
        S_RB=36; S_CB=37; S_KQ=33; S_TT=38; S_RTc=39; S_WO=41; S_M0c=42; S_XO=45
        SRD_W=12; SRD_X=16; SRD_Oc=20
        WAD=[200, 204]; WOFF=208; LOFF=209
        a(f's_load_dwordx2 s[6:7], s[0:1], {KA_WO}')
        a(f's_load_dwordx2 s[86:87], s[0:1], {KA_WD}')
        a(f'v_lshrrev_b32 v213, 3, v{LANE}'); a('v_lshlrev_b32 v213, 10, v213'); a(f'v_bfe_u32 v214, v{LANE}, 4, 1'); a('v_lshlrev_b32 v214, 2, v214')
        a(f'v_and_b32 v215, 7, v{LANE}'); a('v_xor_b32 v214, v214, v215'); a('v_lshlrev_b32 v214, 4, v214'); a('v_add_u32 v213, v213, v214')
        a(f'v_lshlrev_b32 v214, 4, v{LANE}')
        a('s_mul_i32 s88, s2, 7'); a(f's_lshl_b32 s82, s{S_W}, 1'); a('s_add_u32 s88, s88, s82')

        a('s_lshr_b32 s70, s2, 5'); a('s_lshl_b32 s70, s70, 2'); a('s_bfe_u32 s71, s2, 0x20003'); a('s_add_u32 s70, s70, s71'); a(f's_add_u32 s70, s70, {C_CO}'); a('s_lshl_b32 s70, s70, 8')
        a('s_and_b32 s34, s2, 7'); a('s_lshr_b32 s35, s2, 3')
        a(f's_and_b32 s{S_KQ}, s34, 3'); a('s_lshr_b32 s34, s34, 2'); a('s_lshl_b32 s34, s34, 3'); a(f's_and_b32 s{S_RB}, s35, 7'); a(f's_add_u32 s{S_RB}, s{S_RB}, s34')
        a(f's_lshr_b32 s{S_CB}, s35, 3')
        a(f'v_lshlrev_b32 v{LOFF}, 4, v{LANE}')
        self.lane_consts_vstyle(WAD, WOFF, 1024, 128)
        a(f's_lshl_b32 s{S_RTc}, s{S_RB}, 2'); a(f's_add_u32 s{S_RTc}, s{S_RTc}, s{S_W}')
        a(f's_lshl_b32 s{S_WO}, s{S_KQ}, 20'); a(f's_lshl_b32 s{S_TT}, s{S_W}, 12'); a(f's_add_u32 s{S_WO}, s{S_WO}, s{S_TT}')
        a(f's_lshl_b32 s{S_TT}, s{S_CB}, 8'); a(f's_add_u32 s{S_WO}, s{S_WO}, s{S_TT}')
        a(f's_lshl_b32 s{S_M0c}, s{S_W}, 10')
        a(f's_lshl_b32 s{S_XO}, s{S_RTc}, 18'); a(f's_lshl_b32 s{S_TT}, s{S_KQ}, 16'); a(f's_add_u32 s{S_XO}, s{S_XO}, s{S_TT}')
        a(f's_lshr_b32 s71, s{S_RB}, 1'); a('s_lshl_b32 s71, s71, 2'); a(f's_add_u32 s71, s71, s{S_KQ}'); a(f's_add_u32 s71, s71, {C_CO}'); a('s_lshl_b32 s71, s71, 8')
        a('s_waitcnt lgkmcnt(0)')
        a.srd(SRD_W, 6, 0, 4194304); a.srd(SRD_X, 4, WS_O, 16777216); a.srd(SRD_Oc, 4, WS_P, 8388608); a.srd(64, 4, WS_M2, 8192); a.srd(76, 86, 0, 1835008); a.srd(48, 4, WS_WDP, 1835008)
        def w_dma_ops(c):
            slot = c % 8
            return [([f's_add_u32 m0, s{S_M0c}, {slot*16384 + m*4096}', f's_add_u32 s{S_TT}, s{S_WO}, {(c*64 + m*16)*1024}'],
                     f'buffer_load_dwordx4 v{WOFF}, s[{SRD_W}:{SRD_W+3}], s{S_TT} offen lds') for m in range(4)]
        XRING = 32
        def x_load_ops(s):
            r = 4*(s % XRING)
            return ([f's_add_u32 s{S_TT}, s{S_XO}, {(s//4)*4096}'],
                    f'buffer_load_dwordx4 v[{r}:{r+3}], v{LOFF}, s[{SRD_X}:{SRD_X+3}], s{S_TT} offen offset:{(s%4)*1024} {M["ldsc"]}')
        NPRE = M['c_prew']
        def pre(track):
            for c in range(NPRE):
                for o in w_dma_ops(c):
                    for x in o[0]: a(x)
                    if track: a.vmem(o[1], ('W', c))
                    else: a(o[1])
        self.handoff(70, [('multi', 71, 8, C_M2)], pre=pre, npre=4*NPRE)
        self.stamp()
        a(f'v_lshlrev_b32 v210, 3, v{TID}'); a('v_add_u32 v211, 4096, v210')
        a.vmem('buffer_load_dwordx2 v[192:193], v210, s[64:67], 0 offen sc1', 'mod'); a.vmem('buffer_load_dwordx2 v[194:195], v210, s[64:67], 0 offen offset:2048 sc1', 'mod')
        a.vmem('buffer_load_dwordx2 v[196:197], v211, s[64:67], 0 offen sc1', 'mod'); a.vmem('buffer_load_dwordx2 v[198:199], v211, s[64:67], 0 offen offset:2048 sc1', 'mod')
        for i in range(2):
            a(f's_add_u32 s82, s88, {i}'); a('s_lshr_b32 s80, s82, 1'); a('s_mul_i32 s81, s80, 9363'); a('s_lshr_b32 s81, s81, 20')
            a('s_mul_i32 s75, s81, 112'); a('s_sub_u32 s80, s80, s75'); a('s_lshl_b32 s80, s80, 14')
            a('s_and_b32 s82, s82, 1'); a('s_lshl_b32 s82, s82, 13'); a('s_add_u32 s80, s80, s82'); a('s_lshl_b32 s81, s81, 7'); a('s_add_u32 s80, s80, s81')
            a.vmem(f'buffer_load_dwordx4 v[{216+4*i}:{219+4*i}], v213, s[76:79], s80 offen', 'wd')
        ACCB = 128
        self.shared_gemm(64, 4, 1, 4, w_dma_ops, x_load_ops, XRING, 0, [0, 16, 32], WAD, lambda g: vr(ACCB+16*g, 16), pre_x=M['c_prex'], nv=M['c_nv'], npre=NPRE, LA=M['la'])
        for c_ in range(2):
            for r in (192, 194, 196, 198): round_bf16(a, r+c_, 212)
            a(f'v_add_f32 v{196+c_}, 1.0, v{196+c_}'); round_bf16(a, 196+c_, 212)
        a(f'v_add_u32 v210, {T2B}, v210')
        a('ds_write_b64 v210, v[192:193]'); a('ds_write_b64 v210, v[196:197] offset:2048'); a('ds_write_b64 v210, v[194:195] offset:4096'); a('ds_write_b64 v210, v[198:199] offset:6144')
        a('s_waitcnt lgkmcnt(0)')
        a('s_barrier')
        self.stamp()
        a(f's_lshl_b32 s{S_XO}, s{S_KQ}, 21'); a(f's_lshl_b32 s{S_TT}, s{S_RTc}, 15'); a(f's_add_u32 s{S_XO}, s{S_XO}, s{S_TT}')
        a(f's_lshl_b32 s{S_TT}, s{S_CB}, 13'); a(f's_add_u32 s{S_XO}, s{S_XO}, s{S_TT}')
        for mt in range(4):
            if mt % 2 == 0: a(f's_add_u32 s{S_TT}, s{S_XO}, {(mt//2)*4096}')
            for t in range(2):
                b = 4*(2*mt+t)
                for k in range(4):
                    r = ACCB + 16*mt + 8*t + 2*k
                    a(f'v_cvt_pk_bf16_f32 v{b+k}, v{r}, v{r+1}')
                a.vmem(f'buffer_store_dwordx4 v[{b}:{b+3}], v{LOFF}, s[{SRD_Oc}:{SRD_Oc+3}], s{S_TT} offen offset:{1024*((2*mt+t)%4)} sc1', 'pst')
        a('s_lshl_b32 s80, s88, 10')
        a.vmem('buffer_store_dwordx4 v[216:219], v214, s[48:51], s80 offen sc1', 'pst'); a.vmem('buffer_store_dwordx4 v[220:223], v214, s[48:51], s80 offen offset:1024 sc1', 'pst')
        a(f's_add_u32 s74, s{S_RB}, {C_CP}'); a('s_lshl_b32 s74, s74, 8')
        a('s_and_b32 s75, s2, 7'); a(f's_add_u32 s75, s75, {C_WDP}'); a('s_lshl_b32 s75, s75, 8')

    def d_setup(self):
        a = self.a
        d = self.d = dict(S_RB=36, S_FG=37, S_TT=38, S_RT=39, S_GO=41, S_M0=42, S_XO=45, SRD_G=12, SRD_U=16, SRD_X=20, SRD_O=28, WAD=[200, 204], WOFF=208, LOFF=209)
        a(f's_load_dwordx2 s[6:7], s[0:1], {KA_WG}'); a(f's_load_dwordx2 s[8:9], s[0:1], {KA_WU}')
        a('s_and_b32 s33, s2, 7'); a('s_lshr_b32 s34, s2, 3')
        a(f's_and_b32 s36, s34, 3'); a('s_lshr_b32 s35, s33, 1'); a('s_lshl_b32 s35, s35, 2'); a('s_add_u32 s36, s36, s35')
        a(f's_lshr_b32 s37, s34, 2'); a('s_and_b32 s35, s33, 1'); a('s_mul_i32 s35, s35, 7'); a('s_add_u32 s37, s37, s35')
        self.lane_consts_vstyle(d['WAD'], d['WOFF'], 3584, 128)
        a(f's_lshl_b32 s39, s36, 2'); a(f's_add_u32 s39, s39, s{S_W}')
        a(f's_lshl_b32 s41, s37, 8'); a(f's_mul_i32 s38, s{S_W}, {4*3584}'); a('s_add_u32 s41, s41, s38')
        a(f's_lshl_b32 s42, s{S_W}, 10'); a('s_lshl_b32 s45, s39, 15')
        a('s_waitcnt lgkmcnt(0)')
        a.srd(12, 6, 0, 512*3584); a.srd(16, 8, 0, 512*3584)
    def d_w_dma_ops(self, c):
        slot = c % 4; ops = []
        for m in range(4):
            for gu in range(2):
                srd = 12 if gu == 0 else 16
                ops.append(([f's_add_u32 m0, s42, {slot*32768 + gu*16384 + m*4096}', f's_add_u32 s38, s41, {(c*64 + m*16)*3584}'],
                            f'buffer_load_dwordx4 v208, s[{srd}:{srd+3}], s38 offen lds'))
        return ops

    def wait_P(self):
        a = self.a
        l1 = a.newlabel('WP'); l2 = a.newlabel('WP')
        a(f's_cmp_lg_u32 s{S_W}, 0'); a(f's_cbranch_scc1 {l1}'); a('s_cmp_ge_u32 s2, 224'); a(f's_cbranch_scc1 {l1}')
        a('s_waitcnt vmcnt(32)'); a(f's_branch {l2}')
        a.label(l1); a('s_waitcnt vmcnt(0)')
        a.label(l2); a.vm = []
    def phase_r(self):
        a = self.a
        S_TT = 38
        SRD_P=44; SRD_X=48; SRD_MPr=52; SRD_X1=64; SRD_H=76
        TB0 = T2B
        a(f's_load_dwordx2 s[6:7], s[0:1], {KA_X}')
        a(f'v_and_b32 v2, 7, v{TID}'); a(f'v_bfe_u32 v3, v{TID}, 3, 1'); a(f'v_lshrrev_b32 v4, 4, v{TID}')
        a('s_lshr_b32 s80, s2, 2'); a('s_and_b32 s81, s2, 3'); a('s_lshl_b32 s81, s81, 3')
        a('v_lshlrev_b32 v5, 5, v3'); a('v_add_u32 v5, v5, v2'); a('v_add_u32 v5, s81, v5'); a('v_lshlrev_b32 v5, 4, v5')
        a('v_lshlrev_b32 v6, 10, v4'); a('v_add_u32 v6, v6, v5'); a('v_lshlrev_b32 v7, 11, v4'); a('v_add_u32 v7, v7, v5')
        a('v_add_u32 v8, s81, v2'); a('v_lshlrev_b32 v8, 10, v8'); a('v_lshlrev_b32 v9, 5, v4'); a('v_add_u32 v8, v8, v9'); a('v_lshlrev_b32 v9, 3, v3'); a('v_add_u32 v8, v8, v9')
        a(f'v_lshlrev_b32 v10, 3, v{TID}')
        a('s_waitcnt lgkmcnt(0)')
        a.srd(20, 4, WS_P, 8388608); a.srd(24, 6, 0, 2097152); a.srd(28, 4, WS_M2, 65536); a.srd(64, 4, WS_X1, 2097152); a.srd(76, 4, WS_H2, 2097152)
        a('s_lshl_b32 s82, s80, 15')
        for i in range(2):
            a(f's_add_u32 s83, s82, {i*512}')
            a.vmem(f'buffer_load_dwordx2 v[{112+4*i}:{113+4*i}], v8, s[24:27], s83 offen', 'x')
            a.vmem(f'buffer_load_dwordx2 v[{114+4*i}:{115+4*i}], v8, s[24:27], s83 offen offset:16', 'x')
        a('v_lshlrev_b32 v12, 6, v4'); a('v_lshlrev_b32 v13, 4, v3'); a('v_add_u32 v12, v12, v13'); a(f'v_add_u32 v12, {TB0}, v12')
        TB = 120
        for j in range(3):
            for i in range(2):
                for h in range(2):
                    r = TB + 16*j + 8*i + 4*h
                    a(f'ds_read_b128 v[{r}:{r+3}], v12 offset:{2048*j + 1024*i + 32*h}')
        a('s_lshr_b32 s70, s2, 4'); a(f's_add_u32 s70, s70, {C_CP}'); a('s_lshl_b32 s70, s70, 8')
        def pre(track):
            for c in range(4):
                for o in self.d_w_dma_ops(c):
                    for x in o[0]: a(x)
                    if track: a.vmem(o[1], ('W', c))
                    else: a(o[1])
        late = self.handoff(74, [(70, 1, 16)], pre=pre, npre=32, skip_cond='s_cmp_ge_u32 s2, 224', defer=True, vm_allow=4, sig2=75)
        a.vm = []
        self.stamp()
        a('s_lshl_b32 s84, s80, 15')
        for i in range(2):
            for kq in range(4):
                a(f's_add_u32 s83, s84, {kq*2097152 + i*16384}')
                r = 80 + (i*4+kq)*4
                a.vmem(f'buffer_load_dwordx4 v[{r}:{r+3}], v6, s[20:23], s83 offen sc1', 'P')
        late()
        a('s_waitcnt vmcnt(32)') if False else None
        self.wait_P()
        a('s_waitcnt lgkmcnt(0)')
        for i in range(2):
            b = 48 + i*32
            for k in range(4):
                for kq in range(4):
                    r = 80 + (i*4+kq)*4 + k
                    if kq == 0:
                        a(f'v_lshlrev_b32 v{b+2*k}, 16, v{r}'); a(f'v_and_b32 v{b+2*k+1}, 0xffff0000, v{r}')
                    else:
                        a(f'v_lshlrev_b32 v41, 16, v{r}'); a(f'v_and_b32 v42, 0xffff0000, v{r}')
                        a(f'v_add_f32 v{b+2*k}, v{b+2*k}, v41'); a(f'v_add_f32 v{b+2*k+1}, v{b+2*k+1}, v42')
        for i in range(2):
            b = 48 + i*32
            for k in range(4):
                A0, A1 = b+2*k, b+2*k+1
                a(f'v_cvt_pk_bf16_f32 v40, v{A0}, v{A1}'); a(f'v_lshlrev_b32 v{A0}, 16, v40'); a(f'v_and_b32 v{A1}, 0xffff0000, v40')
                a(f'v_mul_f32 v{A0}, v{A0}, v{TB+8*i+2*k}'); a(f'v_mul_f32 v{A1}, v{A1}, v{TB+8*i+2*k+1}')
                a(f'v_cvt_pk_bf16_f32 v40, v{A0}, v{A1}'); a(f'v_lshlrev_b32 v{A0}, 16, v40'); a(f'v_and_b32 v{A1}, 0xffff0000, v40')
                xr = 112+4*i+k
                a(f'v_lshlrev_b32 v41, 16, v{xr}'); a(f'v_and_b32 v42, 0xffff0000, v{xr}')
                a(f'v_add_f32 v{A0}, v{A0}, v41'); a(f'v_add_f32 v{A1}, v{A1}, v42')
                a(f'v_cvt_pk_bf16_f32 v{32+4*i+k}, v{A0}, v{A1}')
                a(f'v_lshlrev_b32 v{16+8*i+2*k}, 16, v{32+4*i+k}'); a(f'v_and_b32 v{17+8*i+2*k}, 0xffff0000, v{32+4*i+k}')
        a('s_lshl_b32 s82, s80, 15'); a('s_add_u32 s83, s82, 16384')
        a.vmem('buffer_store_dwordx4 v[32:35], v6, s[64:67], s82 offen sc1', 'st'); a.vmem('buffer_store_dwordx4 v[36:39], v6, s[64:67], s83 offen sc1', 'st')
        a('v_lshlrev_b32 v45, 3, v2'); a(f'v_add_u32 v45, {SCR+4096}, v45'); a(f's_lshl_b32 s85, s{S_W}, 6'); a('v_add_u32 v44, s85, v45')
        a('v_add_f32 v46, v16, v17'); a('v_mul_f32 v47, v16, v16'); a('v_fmac_f32 v47, v17, v17')
        for k in range(2, 16):
            a(f'v_add_f32 v46, v46, v{16+k}'); a(f'v_fmac_f32 v47, v{16+k}, v{16+k}')
        a('s_nop 1')
        for x in (46, 47): a(f'v_add_f32_dpp v{x}, v{x}, v{x} row_ror:8 row_mask:0xf bank_mask:0xf')
        for op in ('v_permlane16_swap_b32', 'v_permlane32_swap_b32'):
            a('v_mov_b32 v42, v46'); a('v_mov_b32 v43, v47'); a('s_nop 1')
            a(f'{op} v42, v46'); a(f'{op} v43, v47'); a('s_nop 1')
            a('v_add_f32 v46, v46, v42'); a('v_add_f32 v47, v47, v43')
        a('ds_write_b64 v44, v[46:47]'); a('s_waitcnt lgkmcnt(0)'); a('s_barrier')
        for w in range(4): a(f'ds_read_b64 v[{168+2*w}:{169+2*w}], v45 offset:{64*w}')
        a('s_waitcnt lgkmcnt(0)')
        a('v_add_f32 v168, v168, v170'); a('v_add_f32 v172, v172, v174'); a('v_add_f32 v46, v168, v172')
        a('v_add_f32 v169, v169, v171'); a('v_add_f32 v173, v173, v175'); a('v_add_f32 v43, v169, v173')
        a(f'v_mul_f32 v46, {f2u(1/512)}, v46'); a(f'v_mul_f32 v43, {f2u(1/512)}, v43')
        a('v_fma_f32 v43, -v46, v46, v43'); a('v_max_f32 v43, 0, v43')
        round_bf16(a, 43, 47); a(f'v_add_f32 v43, {f2u(1e-5)}, v43'); round_bf16(a, 43, 47)
        a('v_sqrt_f32 v43, v43'); a('s_nop 0'); round_bf16(a, 43, 47); a('v_rcp_f32 v43, v43'); round_bf16(a, 46, 47)
        for i in range(2):
            for k in range(4):
                e0, e1 = 16+8*i+2*k, 17+8*i+2*k
                a(f'v_sub_f32 v41, v{e0}, v46'); a(f'v_sub_f32 v42, v{e1}, v46')
                a('v_mul_f32 v41, v41, v43'); a('v_mul_f32 v42, v42, v43')
                a('v_cvt_pk_bf16_f32 v40, v41, v42'); a('v_lshlrev_b32 v41, 16, v40'); a('v_and_b32 v42, 0xffff0000, v40')
                a(f'v_fma_f32 v41, v41, v{TB+16+8*i+2*k}, v{TB+32+8*i+2*k}'); a(f'v_fma_f32 v42, v42, v{TB+16+8*i+2*k+1}, v{TB+32+8*i+2*k+1}')
                a(f'v_cvt_pk_bf16_f32 v{48+4*i+k}, v41, v42')
        a.vmem('buffer_store_dwordx4 v[48:51], v6, s[76:79], s82 offen sc1', 'st'); a.vmem('buffer_store_dwordx4 v[52:55], v6, s[76:79], s83 offen sc1', 'st')
        a('s_lshr_b32 s70, s2, 4'); a(f's_add_u32 s70, s70, {C_CH}'); a('s_lshl_b32 s70, s70, 8')
        self.signal([70], vm_allow=0); a.vm = []
        self.stamp()

    def phase_d(self):
        a = self.a
        LOFF = 209
        a.srd(20, 4, WS_H2, 2097152); a.srd(28, 4, WS_ACT, 64*112*1024)
        a(f's_add_u32 s70, s36, {C_CH}'); a('s_lshl_b32 s70, s70, 8')
        self.handoff(None, [('multi', 70, 16, C_WDP)], vm_allow=63)
        self.stamp()
        def x_load_ops(s):
            r = 4*(s % 16)
            return ([f's_add_u32 s38, s45, {(s//4)*4096}'],
                    f'buffer_load_dwordx4 v[{r}:{r+3}], v{LOFF}, s[20:23], s38 offen offset:{(s%4)*1024} {M["ldsc"]}')
        AB = 64
        self.shared_gemm(32, 8, 2, 4, self.d_w_dma_ops, x_load_ops, 16, 0, [128, 160, 192], [200, 204], lambda g: vr(AB+16*g, 16), pre_x=M['d_prex'], nv=3, npre=4, LA=M['la'])
        self.stamp()
        a(f's_mul_i32 s45, s39, {112*1024}'); a('s_lshl_b32 s38, s37, 13'); a('s_add_u32 s45, s45, s38')
        a(f'v_mov_b32 v210, {f2u(-LOG2E)}'); a('v_mov_b32 v212, 1.0'); a('v_mov_b32 v213, 1.0')
        a.nop(12)
        cnt = 0
        for mt in range(4):
            for t in range(2):
                b = 16*(cnt % 2); cnt += 1
                G = AB+16*mt+8*t; U = AB+16*(4+mt)+8*t; E = b; O_ = b+8
                for k in range(0, 8, 2): a(f'v_pk_mul_f32 v[{E+k}:{E+k+1}], v[{G+k}:{G+k+1}], v[210:211] op_sel_hi:[1,0]')
                for k in range(8): a(f'v_exp_f32 v{E+k}, v{E+k}')
                for k in range(0, 8, 2): a(f'v_pk_mul_f32 v[{U+k}:{U+k+1}], v[{G+k}:{G+k+1}], v[{U+k}:{U+k+1}]')
                for k in range(0, 8, 2): a(f'v_pk_add_f32 v[{E+k}:{E+k+1}], v[{E+k}:{E+k+1}], v[212:213]')
                for k in range(8): a(f'v_rcp_f32 v{E+k}, v{E+k}')
                a('s_nop 0')
                for k in range(0, 8, 2): a(f'v_pk_mul_f32 v[{U+k}:{U+k+1}], v[{U+k}:{U+k+1}], v[{E+k}:{E+k+1}]')
                for k in range(4): a(f'v_cvt_pk_bf16_f32 v{O_+k}, v{U+2*k}, v{U+2*k+1}')
                ks = 2*mt+t
                a(f's_add_u32 s38, s45, {(ks//4)*4096}')
                a.vmem(f'buffer_store_dwordx4 v[{O_}:{O_+3}], v{LOFF}, s[28:31], s38 offen offset:{(ks%4)*1024} sc1', 'ast')
        a(f's_add_u32 s74, s36, {C_CA}'); a('s_lshl_b32 s74, s74, 8')

    def e_setup(self):
        a = self.a; L = LANE
        NKT = 112; NK = 28
        e = self.e = dict(S_RB=36, S_CB=37, S_T=38, S_AO=39, S_B0=40, S_B1=41, S_M0=42, SRD_W=12, SRD_B=16, SRD_MP=20, SRD_X=24, SRD_O=28,
                          AF=[192, 200], AAD=208, VOA=210, VOB=211, LOFF=212, NK=NK, NKT=NKT)
        a(f's_load_dwordx2 s[6:7], s[0:1], {KA_WD}'); a(f's_load_dwordx2 s[8:9], s[0:1], {KA_OUT}')
        a('s_and_b32 s33, s2, 7'); a('s_lshr_b32 s34, s2, 3'); a('s_and_b32 s36, s34, 3'); a('s_lshl_b32 s33, s33, 2'); a('s_add_u32 s36, s36, s33'); a('s_lshr_b32 s37, s34, 2')
        a(f'v_lshrrev_b32 v2, 3, v{L}'); a('v_lshlrev_b32 v2, 10, v2'); a(f'v_bfe_u32 v3, v{L}, 4, 1'); a('v_lshlrev_b32 v3, 2, v3')
        a(f'v_and_b32 v4, 7, v{L}'); a('v_xor_b32 v3, v3, v4'); a('v_lshlrev_b32 v3, 4, v3')
        a('v_add_u32 v210, v2, v3'); a('v_add_u32 v211, 7168, v210'); a(f'v_lshlrev_b32 v212, 4, v{L}')
        a(f'v_lshrrev_b32 v2, 5, v{L}'); a(f'v_bfe_u32 v3, v{L}, 4, 1'); a(f'v_bfe_u32 v4, v{L}, 2, 2'); a(f'v_and_b32 v5, 3, v{L}')
        a('v_lshlrev_b32 v6, 2, v2'); a('v_add_u32 v6, v6, v4'); a('v_lshlrev_b32 v6, 7, v6'); a('v_and_b32 v7, 1, v5'); a('v_lshlrev_b32 v7, 3, v7'); a('v_add_u32 v6, v6, v7')
        a('v_lshrrev_b32 v7, 1, v5'); a('v_lshlrev_b32 v8, 1, v3'); a('v_add_u32 v7, v7, v8'); a('v_lshrrev_b32 v8, 1, v4')
        a(f's_lshl_b32 s42, s{S_W}, 15')
        for mt in range(2):
            a(f'v_xor_b32 v9, {mt}, v8'); a('v_lshlrev_b32 v9, 2, v9'); a('v_add_u32 v9, v9, v7'); a('v_lshlrev_b32 v9, 4, v9')
            a(f'v_add_u32 v{208+mt}, v6, v9'); a(f'v_add_u32 v{208+mt}, s42, v{208+mt}')
        if M['wdp']:
            a(f's_mul_i32 s39, s{S_W}, {NK*2048}'); a(f's_mul_i32 s38, s37, {NKT*2048}'); a('s_add_u32 s39, s39, s38')
        else:
            a(f's_mul_i32 s39, s{S_W}, {NK*16384}'); a('s_lshl_b32 s38, s37, 7'); a('s_add_u32 s39, s39, s38')
        a(f's_mul_i32 s40, s36, {2*NKT*1024}'); a(f's_mul_i32 s38, s{S_W}, {NK*1024}'); a('s_add_u32 s40, s40, s38'); a(f's_add_u32 s41, s40, {NKT*1024}')
        a('s_waitcnt lgkmcnt(0)')
        (a.srd(12, 4, WS_WDP, 1835008) if M['wdp'] else a.srd(12, 6, 0, NKT*16*1024)); a.srd(16, 4, WS_ACT, 64*NKT*1024); a.srd(20, 4, WS_M2, 65536); a.srd(24, 4, WS_X1, 2097152); a.srd(28, 8, 0, 2097152)
    def e_a_ops(self, k):
        slot = k % 16
        if M['wdp']:
            return [([f's_add_u32 m0, s42, {slot*2048}', f's_add_u32 s38, s39, {k*2048}'], f'buffer_load_dwordx4 v212, s[12:15], s38 offen sc1 lds'),
                    ([], f'buffer_load_dwordx4 v212, s[12:15], s38 offen offset:1024 sc1 lds')]
        return [([f's_add_u32 m0, s42, {slot*2048}', f's_add_u32 s38, s39, {k*16384}'], f'buffer_load_dwordx4 v210, s[12:15], s38 offen lds'),
                ([], f'buffer_load_dwordx4 v211, s[12:15], s38 offen offset:1024 lds')]
    def phase_e(self):
        a = self.a; L = LANE
        NK = 28; DEPTH = M['e_depth']; AF = [192, 200]; ACC = 128; LOFF = 212; GT = SCR
        def b_ops(k):
            r = 8*(k % 16)
            return [([f's_add_u32 s43, s40, {(k//4)*4096}'], f'buffer_load_dwordx4 v[{r}:{r+3}], v{LOFF}, s[16:19], s43 offen offset:{(k%4)*1024} {M["ldsc"]}'),
                    ([f's_add_u32 s43, s41, {(k//4)*4096}'], f'buffer_load_dwordx4 v[{r+4}:{r+7}], v{LOFF}, s[16:19], s43 offen offset:{(k%4)*1024} {M["ldsc"]}')]
        def emit(o, tag):
            for x in o[0]: a(x)
            a.vmem(o[1], tag)
        for k in range(DEPTH):
            for o in b_ops(k): emit(o, ('B', k))
        def aread_ops(k):
            slot = k % 16
            return [f'ds_read_b64_tr_b16 {vr(AF[k&1] + mt*4 + 2*u,2)}, v{208+mt} offset:{slot*2048 + u*1024}' for mt in range(2) for u in range(2)]
        a.wait_vm(('A', 0))
        for op in aread_ops(0): a.lds(op, ('Af', 0))
        NPRE = M['e_prea']
        for k in range(NK):
            a.wait_vm(('B', k)) if k == 0 else None
            if k+1 < NK: a.wait_vm([('B', k+1), ('A', k+1)])
            a.wait_lg(('Af', k))
            r = 8*(k % 16)
            ar_ = aread_ops(k+1) if k+1 < NK else []
            gs = []
            if NPRE == 16:
                if k >= 2 and k+14 < NK: gs += [(o, ('A', k+14)) for o in self.e_a_ops(k+14)]
            elif k+NPRE < NK: gs += [(o, ('A', k+NPRE)) for o in self.e_a_ops(k+NPRE)]
            if k+DEPTH < NK: gs += [(o, ('B', k+DEPTH)) for o in b_ops(k+DEPTH)]
            i = 0
            for mt in range(2):
                for nt in range(2):
                    d = vr(ACC+(mt*2+nt)*16, 16)
                    it = gs[i] if i < len(gs) else None
                    if it:
                        for x in it[0][0]: a(x)
                    a(mfma(d, vr(AF[k&1]+mt*4,4), vr(r+4*nt,4), '0' if k == 0 else d))
                    if it: a.vmem(it[0][1], it[1])
                    if i < 2:
                        for op in ar_[2*i:2*i+2]: a.lds(op, ('Af', k+1))
                    i += 1
        self.stamp()
        a(f's_lshr_b32 s46, s{S_W}, 1'); a(f's_and_b32 s47, s{S_W}, 1')
        a('s_lshl_b32 s48, s36, 1'); a('s_add_u32 s48, s48, s47')
        a('s_lshl_b32 s49, s37, 2'); a('s_lshl_b32 s50, s46, 1'); a('s_add_u32 s49, s49, s50')
        a('s_lshl_b32 s50, s48, 5'); a('s_add_u32 s50, s50, s49'); a('s_lshl_b32 s50, s50, 10')
        a(f'v_and_b32 v2, 31, v{L}'); a('v_lshlrev_b32 v2, 10, v2'); a(f'v_lshrrev_b32 v3, 5, v{L}'); a('v_lshlrev_b32 v4, 4, v3'); a('v_add_u32 v2, v2, v4')
        a('s_lshl_b32 s51, s48, 15'); a('s_lshl_b32 s33, s49, 5'); a('s_add_u32 s51, s51, s33')
        for t in range(2):
            a(f'buffer_load_dwordx4 v[{8+4*t}:{11+4*t}], v{LOFF}, s[24:27], s50 offen offset:{1024*t} sc1')
        a.nop(12)
        a('s_waitcnt lgkmcnt(0)'); a('s_barrier')
        a(f's_lshl_b32 s33, s{S_W}, 14'); a(f'v_add_u32 v5, s33, v{LOFF}')
        for tile in range(4):
            for r4 in range(4):
                r = ACC + tile*16 + r4*4
                a(f'ds_write_b128 v5, v[{r}:{r+3}] offset:{(tile*4+r4)*1024}')
        a('s_waitcnt lgkmcnt(0)'); a('s_barrier')
        a(f's_lshl_b32 s33, s{S_W}, 12'); a(f'v_add_u32 v5, s33, v{LOFF}')
        for wv in range(4):
            for r4 in range(4):
                r = 32 + wv*16 + r4*4
                a(f'ds_read_b128 v[{r}:{r+3}], v5 offset:{wv*16384 + r4*1024}')
        a('v_lshlrev_b32 v6, 4, v3'); a('s_lshl_b32 s33, s46, 7'); a('s_lshl_b32 s34, s37, 8'); a('s_add_u32 s33, s33, s34'); a(f's_add_u32 s33, s33, {T2B+6144}'); a('v_add_u32 v6, s33, v6')
        for g in range(4): a(f'ds_read_b128 v[{16+4*g}:{19+4*g}], v6 offset:{32*g}')
        a('s_waitcnt lgkmcnt(0)')
        for r in range(16):
            a(f'v_add_f32 v{32+r}, v{32+r}, v{48+r}'); a(f'v_add_f32 v{64+r}, v{64+r}, v{80+r}')
        for r in range(16): a(f'v_add_f32 v{32+r}, v{32+r}, v{64+r}')
        for r in range(0, 16, 2):
            a(f'v_cvt_pk_bf16_f32 v100, v{32+r}, v{33+r}'); a(f'v_lshlrev_b32 v{32+r}, 16, v100'); a(f'v_and_b32 v{33+r}, 0xffff0000, v100')
            a(f'v_mul_f32 v{32+r}, v{32+r}, v{16+r}'); a(f'v_mul_f32 v{33+r}, v{33+r}, v{17+r}')
            a(f'v_cvt_pk_bf16_f32 v100, v{32+r}, v{33+r}'); a(f'v_lshlrev_b32 v{32+r}, 16, v100'); a(f'v_and_b32 v{33+r}, 0xffff0000, v100')
        a('s_waitcnt vmcnt(0)')
        for k in range(8):
            a(f'v_lshlrev_b32 v101, 16, v{8+k}'); a(f'v_and_b32 v102, 0xffff0000, v{8+k}')
            a(f'v_add_f32 v{32+2*k}, v{32+2*k}, v101'); a(f'v_add_f32 v{33+2*k}, v{33+2*k}, v102')
            a(f'v_cvt_pk_bf16_f32 v{104+k}, v{32+2*k}, v{33+2*k}')
        a('s_nop 1')
        for gp in range(2):
            b = 104+4*gp
            a(f'v_permlane32_swap_b32 v{b}, v{b+2}'); a(f'v_permlane32_swap_b32 v{b+1}, v{b+3}')
        a('s_nop 1')
        for gp in range(2):
            b = 104+4*gp
            a(f'buffer_store_dwordx4 v[{b}:{b+3}], v2, s[28:31], s51 offen offset:{32*gp} {M["outsc"]}')

    def build(self):
        a = self.a
        a.raw(kernel_head(KN))
        a('s_cmp_ge_u32 s2, 256'); a('s_cbranch_scc1 K_END')
        self.front()
        self.attention()
        self.phase_c()
        self.stamp()
        a('s_cmp_ge_u32 s2, 224'); a('s_cbranch_scc1 NO_DS')
        self.d_setup()
        a.label('NO_DS')
        self.phase_r()
        a('s_cmp_lt_u32 s2, 224'); a('s_cbranch_scc1 DO_D')
        a(f's_mov_b32 s70, {C_WDP*256}')
        self.wait([(70, 8, 32)])
        a('s_branch E_PRE')
        a.label('DO_D')
        a(f'v_lshlrev_b32 v209, 4, v{LANE}')
        self.phase_d()
        a.label('E_PRE')
        self.e_setup()
        a('s_waitcnt lgkmcnt(0)'); a('s_barrier')
        def pre(track):
            for k in range(M['e_prea']):
                for o in self.e_a_ops(k):
                    for x in o[0]: a(x)
                    if track: a.vmem(o[1], ('A', k))
                    else: a(o[1])
        a('s_lshr_b32 s70, s36, 1'); a(f's_add_u32 s70, s70, {C_CA}'); a('s_lshl_b32 s70, s70, 8')
        a(f's_mov_b32 s71, {103*256}'); a('s_cmp_ge_u32 s2, 224'); a('s_cselect_b32 s74, s71, s74')
        self.stamp()
        self.handoff(74, [(70, 1, 14)], pre=pre, npre=2*M['e_prea'])
        self.stamp()
        self.phase_e()
        if M['stamp']:
            a('s_waitcnt vmcnt(0)'); self.stamp()
            a.srd(44, 4, WS_STAMP, 262144)
            a(f'v_lshlrev_b32 v0, 2, v{LANE}'); a('s_lshl_b32 s48, s2, 9'); a(f's_lshl_b32 s49, s{S_W}, 7'); a('s_add_u32 s48, s48, s49')
            a('s_mov_b64 exec, 0xffffffff')
            a(f'buffer_store_dword v{STV}, v0, s[44:47], s48 offen')
            a('s_add_u32 s48, s48, 131072'); a('buffer_store_dword v254, v0, s[44:47], s48 offen')
        a('s_waitcnt vmcnt(0)')
        a.label('K_END'); a('s_endpgm')
        for st, bk, p in self.stubs:
            a.label(st); a(f's_call_b64 s[{S_RET}:{S_RET+1}], RARE_{p}'); a(f's_branch {bk}')
        gen_rare(a, 0); gen_rare(a, 1)
        return a.text()

def make(path, **kw):
    M.update({k: v for k, v in kw.items() if k in M or k.startswith('c_') or k == 'fine'})
    B.CFG.update({k: v for k, v in kw.items() if k in B.CFG})
    m = Mega(); text = m.build()
    head = open('adaLN_cond__mha_block_cached__swiglu_ffn__prompt.s.ref').read().split('; Override launch')[0]
    s = head + f'; @launch grid=(256,1,1) block=(256,1,1) lds={M["lds"]}\n.amdgcn_target "amdgcn-amd-amdhsa--gfx950"\n' + text
    s += '.section .rodata,"a"\n' + kernel_desc(KN, 512, 102, 256)
    open(path, 'w').write(s)
    return m.nst
if __name__ == '__main__':
    import sys
    kw = {}
    for kv in sys.argv[2:]:
        k, v = kv.split('=', 1); kw[k] = eval(v)
    print('stamps', make(sys.argv[1], **kw))
```

```python
from asmlib import *
import gen
from gen import f2u, round_bf16, xhalf_sum, wave_allreduce_add, LOG2E, KA_X, KA_K, KA_V, KA_WQ, KA_WO, KA_WG, KA_WU, KA_WD, KA_C, KA_WMOD, KA_OUT, KA_DBG, KA_WS
import gen_b as B
from gen_b import mfma, S, NEGM, P, T, KAD, VAD, VOK, VOV, LT, LR, LANE, TMP, OA, QF, KF, VF, k_read, v_read, gen_iter, gen_rare
from gen_b import S_W, S_H, S_QB, S_RT, S_KOFF, S_VOFF, S_M0, S_CNT, S_T, S_THR, S_RET, S_PF, S_PFM, SRD_K, SRD_V, SRD_WQ, SRD_XN, SRD_O, SRD_MP, VBASE, OFFSET, THR
KN = 'adaLN_cond__mha_block_cached__swiglu_ffn__prompt_kernel'

WS_M1 = 0x0; WS_XN = 0x10000; WS_M2 = 0x220000; WS_SYNC = 0x300000
WS_O = 0x400000; WS_X1 = 0x1400000; WS_H2 = 0x1600000; WS_ACT = 0x1800000; WS_STAMP = 0x2000000; WS_P = 0x3000000
C_FG, C_M2, C_CO, C_CP, C_CH, C_CA, C_FG2 = 0, 8, 16, 48, 64, 80, 96
C_WDP = 104
WS_WDP = 0x2800000
SCR = 131072
GSBASE = SCR + 24576
T2B = SCR + 8192
TID = 255; STV = 253
SRD_SY = 60
M = dict(stamp=False, codepf=True, w_mode='early', wdp=True, outsc='', lds=147456, e_prea=16, kvpf=True, kv_from=0, ldsc='sc1', w_early=16, la=2, tr_cap=3, c_prew=8, c_nv=2, c_prex=12, d_prex=12, e_depth=10, pre_x=10, qp_slots=(0, 2, 4, 6), spin=200000)

def allreduce_multi(a, xs, ts):
    pad = max(0, 2 - (len(xs)-1))
    for r in (8, 4, 2, 1):
        if pad: a(f's_nop {pad-1}')
        for x in xs: a(f'v_add_f32_dpp v{x}, v{x}, v{x} row_ror:{r} row_mask:0xf bank_mask:0xf')
    for op in ('v_permlane16_swap_b32', 'v_permlane32_swap_b32'):
        for x, t in zip(xs, ts): a(f'v_mov_b32 v{t}, v{x}')
        if pad: a(f's_nop {pad}')
        for x, t in zip(xs, ts): a(f'{op} v{t}, v{x}')
        a('s_nop 1')
        for x, t in zip(xs, ts): a(f'v_add_f32 v{x}, v{x}, v{t}')

class Mega:
    def __init__(self):
        self.a = Asm(); self.nst = 0
    def stamp(self):
        a = self.a
        if M['stamp']:
            a('s_memrealtime s[72:73]'); a('s_memtime s[100:101]'); a('s_waitcnt lgkmcnt(0)')
            a(f'v_writelane_b32 v{STV}, s72, {self.nst}'); a(f'v_writelane_b32 v254, s100, {self.nst}'); self.nst += 1
    def signal(self, idx_list, vm_allow=0):
        a = self.a
        a(f's_waitcnt vmcnt({vm_allow})'); a('s_barrier')
        l = a.newlabel('SIG')
        a(f's_cmp_lg_u32 s{S_W}, 0'); a(f's_cbranch_scc1 {l}')
        a('s_mov_b64 exec, 1')
        a('v_mov_b32 v251, 1')
        for s_ in idx_list:
            a(f'v_mov_b32 v252, s{s_}')
            a(f'buffer_atomic_add v251, v252, s[{SRD_SY}:{SRD_SY+3}], 0 offen sc1')
        a('s_mov_b64 exec, -1')
        a.label(l)
    def wait(self, specs):
        a = self.a
        l = a.newlabel('WDONE')
        a(f's_cmp_lg_u32 s{S_W}, 0'); a(f's_cbranch_scc1 {l}')
        for so, nl, target in specs:
            lp = a.newlabel('POLL'); ok = a.newlabel('POK')
            a(f's_mov_b64 exec, {(1 << nl)-1}')
            a(f'v_and_b32 v252, 63, v{TID}'); a('v_lshlrev_b32 v252, 8, v252'); a(f'v_add_u32 v252, s{so}, v252')
            a('s_mov_b32 s68, 0')
            a.label(lp)
            a(f'buffer_load_dword v251, v252, s[{SRD_SY}:{SRD_SY+3}], 0 offen sc1')
            a('s_waitcnt vmcnt(0)')
            a(f'v_cmp_le_u32 vcc, {target}, v251')
            a('s_add_u32 s68, s68, 1')
            a(f's_cmp_eq_u64 vcc, exec'); a(f's_cbranch_scc1 {ok}')
            a(f's_cmp_gt_u32 s68, {M["spin"]}'); a(f's_cbranch_scc1 {ok}')
            a('s_sleep 1'); a(f's_branch {lp}')
            a.label(ok)
        a('s_mov_b64 exec, -1')
        a.label(l)
        a('s_barrier')

    def wait_front(self, so):
        a = self.a
        l = a.newlabel('WDONE'); lp = a.newlabel('POLL'); ok = a.newlabel('POK')
        a(f's_cmp_lg_u32 s{S_W}, 0'); a(f's_cbranch_scc1 {l}')
        a('s_mov_b64 exec, 0x1ff')
        a(f'v_and_b32 v252, 63, v{TID}'); a(f'v_add_u32 v252, {C_M2-1}, v252'); a('v_lshlrev_b32 v252, 8, v252')
        a(f'v_mov_b32 v251, s{so}'); a(f'v_writelane_b32 v252, s{so}, 0')
        a('s_mov_b32 s68, 0')
        a.label(lp)
        a(f'buffer_load_dword v251, v252, s[{SRD_SY}:{SRD_SY+3}], 0 offen sc1')
        a('s_waitcnt vmcnt(0)')
        a('v_cmp_le_u32 vcc, 32, v251')
        a('s_add_u32 s68, s68, 1')
        a('s_cmp_eq_u64 vcc, exec'); a(f's_cbranch_scc1 {ok}')
        a(f's_cmp_gt_u32 s68, {M["spin"]}'); a(f's_cbranch_scc1 {ok}')
        a('s_sleep 1'); a(f's_branch {lp}')
        a.label(ok)
        a('s_mov_b64 exec, -1')
        a.label(l)
        a('s_barrier')

    def handoff(self, sig, specs, pre=None, npre=0, skip_cond=None, defer=False, vm_allow=0, sig2=None):
        a = self.a
        a(f's_waitcnt vmcnt({vm_allow})'); a('s_barrier'); a.vm = []
        l = a.newlabel('HW'); lo = a.newlabel('HO')
        a(f's_cmp_lg_u32 s{S_W}, 0'); a(f's_cbranch_scc1 {lo}')
        if sig is not None:
            a('s_mov_b64 exec, 1'); a('v_mov_b32 v251, 1'); a(f'v_mov_b32 v252, s{sig}')
            a(f'buffer_atomic_add v251, v252, s[{SRD_SY}:{SRD_SY+3}], 0 offen sc1')
            if sig2:
                a(f'v_mov_b32 v252, s{sig2}'); a(f'buffer_atomic_add v251, v252, s[{SRD_SY}:{SRD_SY+3}], 0 offen sc1')
        self.stamp_w0()
        for sp in specs:
            lp = a.newlabel('POLL'); ok = a.newlabel('POK')
            if sp[0] == 'multi':
                a('s_mov_b64 exec, 0x1ff')
                a(f'v_and_b32 v252, 63, v{TID}'); a(f'v_add_u32 v252, {sp[3]-1}, v252'); a('v_lshlrev_b32 v252, 8, v252'); a(f'v_writelane_b32 v252, s{sp[1]}, 0')
                a('v_mov_b32 v250, 32'); a(f's_mov_b32 s69, {sp[2]}'); a('s_nop 0'); a('v_writelane_b32 v250, s69, 0')
                tgt = 'v250'
            else:
                a('s_mov_b64 exec, 1'); a(f'v_mov_b32 v252, s{sp[0]}'); tgt = None
            a('s_mov_b32 s68, 0')
            a.label(lp)
            a(f'buffer_load_dword v251, v252, s[{SRD_SY}:{SRD_SY+3}], 0 offen sc1')
            a('s_waitcnt vmcnt(0)')
            a(f'v_cmp_le_u32 vcc, {tgt if tgt else sp[2]}, v251')
            a('s_add_u32 s68, s68, 1')
            a('s_cmp_eq_u64 vcc, exec'); a(f's_cbranch_scc1 {ok}')
            a(f's_cmp_gt_u32 s68, {M["spin"]}'); a(f's_cbranch_scc1 {ok}')
            a('s_sleep 1'); a(f's_branch {lp}')
            a.label(ok)
        a('s_mov_b64 exec, -1')
        a(f's_branch {l}')
        a.label(lo)
        if pre:
            if skip_cond: a(skip_cond); a(f's_cbranch_scc1 {l}')
            pre(True)
        a.label(l)
        if specs: a('s_barrier')
        def late():
            if pre:
                l2 = a.newlabel('HL')
                a(f's_cmp_lg_u32 s{S_W}, 0'); a(f's_cbranch_scc1 {l2}')
                if skip_cond: a(skip_cond); a(f's_cbranch_scc1 {l2}')
                pre(False)
                a.label(l2)
        if defer: return late
        late()
    def stamp_w0(self):
        pass

    def wq_dma(self):
        a = self.a; L = LANE
        a.srd(SRD_WQ, 74, 0, 4194304)
        a(f's_cmp_eq_u32 s{S_W}, 0'); a('s_cbranch_scc1 F_NOW')
        a(f'v_lshrrev_b32 v70, 4, v{L}'); a(f'v_and_b32 v71, 15, v{L}'); a('v_lshlrev_b32 v72, 2, v70'); a('v_xor_b32 v72, v71, v72'); a('v_lshlrev_b32 v72, 4, v72')
        a('v_lshlrev_b32 v222, 13, v70'); a('v_add_u32 v222, v222, v72')
        a(f's_sub_u32 s89, s{S_W}, 1'); a('s_lshl_b32 s99, s89, 15'); a('s_lshl_b32 s89, s89, 10'); a(f's_lshl_b32 s{S_T}, s{S_H}, 8'); a(f's_add_u32 s99, s99, s{S_T}')
        for k in range(43):
            if k == 42:
                a(f's_cmp_eq_u32 s{S_W}, 3'); a('s_cbranch_scc1 F_NOW')
            a(f's_add_u32 m0, s89, {k*3072}'); a(f's_add_u32 s{S_T}, s99, {k*3*32768}')
            a(f'buffer_load_dwordx4 v222, s[{SRD_WQ}:{SRD_WQ+3}], s{S_T} offen lds')
        a.label('F_NOW')

    def front(self):
        a = self.a; L = LANE
        a(f's_load_dwordx2 s[4:5], s[0:1], {KA_WS}')
        a(f's_load_dwordx2 s[6:7], s[0:1], {KA_C}'); a(f's_load_dwordx2 s[8:9], s[0:1], {KA_WMOD}'); a(f's_load_dwordx2 s[10:11], s[0:1], {KA_X}')
        a(f's_load_dwordx2 s[74:75], s[0:1], {KA_WQ}'); a(f's_load_dwordx2 s[76:77], s[0:1], {KA_DBG}')
        a(f's_load_dwordx2 s[78:79], s[0:1], {KA_K}'); a(f's_load_dwordx2 s[90:91], s[0:1], {KA_V}')
        a(f'v_mov_b32 v{TID}, v0')
        a('v_lshrrev_b32 v1, 6, v0'); a(f'v_and_b32 v{LANE}, 63, v0'); a('s_nop 0'); a(f'v_readfirstlane_b32 s{S_W}, v1')
        if M['stamp']: a(f'v_mov_b32 v{STV}, 0'); a('v_mov_b32 v254, 0')
        a(f's_and_b32 s{S_H}, s2, 31'); a(f's_lshr_b32 s{S_QB}, s2, 5')
        a(f'v_lshlrev_b32 v3, 4, v{LANE}')
        a(f'v_and_b32 v4, 3, v{TID}'); a('v_lshlrev_b32 v4, 4, v4'); a(f'v_lshrrev_b32 v5, 2, v{TID}')
        a('v_mul_u32_u24 v6, 49152, v5'); a('v_add_u32 v6, v6, v4'); a('v_lshlrev_b32 v7, 4, v5')
        a(f's_and_b32 s82, s{S_H}, 7'); a('s_lshl_b32 s82, s82, 2'); a(f's_lshr_b32 s83, s{S_H}, 3'); a('s_add_u32 s82, s82, s83')
        a('s_and_b32 s83, s2, 7'); a('s_lshl_b32 s83, s83, 5'); a('s_lshr_b32 s85, s2, 3'); a('s_add_u32 s83, s83, s85')
        a('s_lshl_b32 s84, s82, 6')
        a(f'v_mul_u32_u24 v67, 6144, v{TID}'); a('s_lshl_b32 s87, s83, 4'); a('s_add_u32 s87, s87, 2048'); a(f'v_lshlrev_b32 v68, 1, v{TID}')
        a('s_lshl_b32 s80, s2, 3'); a(f's_lshl_b32 s81, s{S_W}, 1'); a('s_add_u32 s80, s80, s81'); a('s_lshl_b32 s80, s80, 10')
        if M['codepf']:
            a('s_getpc_b64 s[92:93]'); a.label('PC_REF')
            a('s_lshr_b32 s94, s2, 3'); a('s_lshl_b32 s94, s94, 2'); a(f's_add_u32 s94, s94, s{S_W}'); a('s_lshl_b32 s94, s94, 10')
            a('s_cmp_ge_u32 s94, CODE_END-PC_REF-1024'); a('s_cbranch_scc1 NO_CPF')
            a('v_add_u32 v164, s94, v3')
            a('global_load_dwordx4 v[168:171], v164, s[92:93]')
            a.label('NO_CPF')
        a('s_waitcnt lgkmcnt(0)')
        self.stamp()
        a.srd(12, 6, 0, 1024); a.srd(16, 8, 0, 3145728); a.srd(28, 10, 0, 2097152)
        a.vmem('buffer_load_dwordx4 v[16:19], v7, s[12:15], 0 offen', 'c1')
        for i in range(8):
            a(f's_add_u32 s86, s84, {i*6144}'); a.vmem(f'buffer_load_dwordx4 v[{20+4*i}:{23+4*i}], v6, s[16:19], s86 offen', 'w1')
        a.vmem('buffer_load_dwordx4 v[8:11], v3, s[28:31], s80 offen', 'x'); a.vmem('buffer_load_dwordx4 v[12:15], v3, s[28:31], s80 offen offset:1024', 'x')
        a.vmem('buffer_load_ushort v52, v68, s[12:15], 0 offen', 'c2'); a.vmem('buffer_load_ushort v53, v68, s[12:15], 0 offen offset:512', 'c2')
        for i in range(2):
            a(f's_add_u32 s86, s87, {i*256*6144}'); a.vmem(f'buffer_load_dwordx4 v[{56+4*i}:{59+4*i}], v67, s[16:19], s86 offen', 'w2')
        if M['w_mode'] == 'early': self.wq_dma(); a.fake = 43
        if M['kvpf']:
            a(f's_lshl_b32 s44, s{S_H}, 19'); a(f's_lshl_b32 s45, s{S_QB}, 13'); a(f's_lshl_b32 s46, s{S_W}, 11'); a('s_add_u32 s45, s45, s46')
            a.srd(20, 78, 's44', 524288)
            a.vmem('buffer_load_dwordx4 v[148:151], v3, s[20:23], s45 offen', 'pf'); a.vmem('buffer_load_dwordx4 v[152:155], v3, s[20:23], s45 offen offset:1024', 'pf')
            a(f's_mul_i32 s45, s{S_QB}, 6144'); a(f's_mul_i32 s46, s{S_W}, 1536'); a('s_add_u32 s45, s45, s46')
            a.srd(20, 90, 's44', 524288)
            a.vmem('buffer_load_dwordx4 v[156:159], v3, s[20:23], s45 offen', 'pf'); a.vmem('buffer_load_dwordx4 v[160:163], v3, s[20:23], s45 offen offset:512', 'pf')
        a.srd(SRD_SY, 4, WS_SYNC, 28672); a.srd(64, 76, 0, 256); a.srd(SRD_XN, 4, WS_XN, 2097152); a.srd(SRD_WQ, 74, 0, 4194304)
        a.srd(SRD_MP, 4, 0, WS_M2 + 8192)
        a('s_cmp_lg_u32 s2, 0'); a('s_cbranch_scc1 F_NOZ')
        for k in range(4): a(f'v_mov_b32 v{72+k}, 0')
        a(f'v_lshlrev_b32 v76, 4, v{TID}')
        for k in range(7):
            a(f's_mov_b32 s{S_T}, {k*4096}'); a(f'buffer_store_dwordx4 v[72:75], v76, s[{SRD_SY}:{SRD_SY+3}], s{S_T} offen sc1')
        a('s_waitcnt vmcnt(0)'); a('s_barrier')
        a(f's_cmp_lg_u32 s{S_W}, 0'); a('s_cbranch_scc1 F_NOZ')
        a('s_mov_b64 exec, 1'); a('v_mov_b32 v72, 1'); a('v_mov_b32 v73, 0'); a('buffer_store_dword v72, v73, s[64:67], 0 offen sc1'); a('s_mov_b64 exec, -1')
        a.label('F_NOZ')
        def silu(vals):
            for i, r in enumerate(vals): a(f'v_mul_f32 v{124+i}, {f2u(-LOG2E)}, v{r}')
            for i, r in enumerate(vals): a(f'v_exp_f32 v{124+i}, v{124+i}')
            a('s_nop 0')
            for i, r in enumerate(vals): a(f'v_add_f32 v{124+i}, 1.0, v{124+i}')
            for i, r in enumerate(vals): a(f'v_rcp_f32 v{124+i}, v{124+i}')
            a('s_nop 0')
            for i, r in enumerate(vals): a(f'v_mul_f32 v{r}, v{r}, v{124+i}')
            for r in vals: round_bf16(a, r, 132)
        a.wait_vm('c1')
        for k in range(4):
            a(f'v_lshlrev_b32 v{100+2*k}, 16, v{16+k}'); a(f'v_and_b32 v{101+2*k}, 0xffff0000, v{16+k}')
        silu(list(range(100, 108)))
        a.wait_vm('w1')
        for i in range(8):
            for j in range(4):
                w = 20+4*i+j
                a(f'v_lshlrev_b32 v108, 16, v{w}'); a(f'v_and_b32 v109, 0xffff0000, v{w}')
                if i == 0: a(f'v_mul_f32 v{110+2*j}, v108, v100'); a(f'v_mul_f32 v{111+2*j}, v109, v100')
                else: a(f'v_fmac_f32 v{110+2*j}, v108, v{100+i}'); a(f'v_fmac_f32 v{111+2*j}, v109, v{100+i}')
        a('v_lshlrev_b32 v108, 7, v5'); a('v_lshlrev_b32 v109, 1, v4'); a('v_add_u32 v108, v108, v109'); a(f'v_add_u32 v108, {SCR}, v108')
        for j in range(4): a(f'ds_write_b64 v108, v[{110+2*j}:{111+2*j}] offset:{8*j}')
        a('s_waitcnt lgkmcnt(0)'); a('s_barrier')
        a(f's_cmp_lg_u32 s{S_W}, 0'); a('s_cbranch_scc1 F_NOT0')
        a(f'v_and_b32 v70, 31, v{L}'); a('v_lshlrev_b32 v70, 2, v70'); a(f'v_lshrrev_b32 v71, 5, v{L}'); a('v_lshlrev_b32 v71, 12, v71'); a('v_add_u32 v71, v71, v70'); a(f'v_add_u32 v71, {SCR}, v71')
        for r in range(32): a(f'ds_read_b32 v{20+r}, v71 offset:{128*r}')
        a('s_waitcnt lgkmcnt(0)')
        n = 32
        while n > 1:
            for r in range(n//2): a(f'v_add_f32 v{20+r}, v{20+r}, v{20+r+n//2}')
            n //= 2
        xhalf_sum(a, 20, 21)
        a(f's_lshl_b32 s44, s{S_QB}, 12'); a('s_lshl_b32 s45, s82, 7'); a('s_add_u32 s44, s44, s45')
        a('s_mov_b64 exec, 0xffffffff'); a(f'buffer_store_dword v20, v70, s[{SRD_MP}:{SRD_MP+3}], s44 offen sc1')
        a('s_mov_b64 exec, 1'); a('v_mov_b32 v252, 0'); a('s_mov_b32 s68, 0')
        a.label('F_ZP')
        a('buffer_load_dword v251, v252, s[64:67], 0 offen sc1'); a('s_waitcnt vmcnt(0)'); a('v_readfirstlane_b32 s69, v251')
        a('s_add_u32 s68, s68, 1'); a('s_cmp_lg_u32 s69, 0'); a('s_cbranch_scc1 F_ZD')
        a(f's_cmp_gt_u32 s68, {M["spin"]}'); a('s_cbranch_scc1 F_ZD'); a('s_sleep 1'); a('s_branch F_ZP')
        a.label('F_ZD')
        a(f's_lshl_b32 s70, s{S_QB}, 8'); a('v_mov_b32 v251, 1'); a('v_mov_b32 v252, s70')
        a(f'buffer_atomic_add v251, v252, s[{SRD_SY}:{SRD_SY+3}], 0 offen sc1')
        a('s_mov_b64 exec, -1')
        a.label('F_NOT0')
        self.stamp()
        a.wait_vm('x')
        for r in range(2):
            src = 8+4*r; X = 100+8*r
            for k in range(4):
                a(f'v_lshlrev_b32 v{X+2*k}, 16, v{src+k}'); a(f'v_and_b32 v{X+2*k+1}, 0xffff0000, v{src+k}')
            m = 116+r
            a(f'v_add_f32 v{m}, v{X}, v{X+1}')
            for k in range(2, 8): a(f'v_add_f32 v{m}, v{m}, v{X+k}')
        allreduce_multi(a, [116, 117], [118, 119])
        for r in range(2):
            X = 100+8*r; m = 116+r; v = 120+r
            a(f'v_mul_f32 v{m}, {f2u(1/512)}, v{m}')
            a(f'v_sub_f32 v118, v{X}, v{m}'); a(f'v_mul_f32 v{v}, v118, v118')
            for k in range(1, 8):
                a(f'v_sub_f32 v118, v{X+k}, v{m}'); a(f'v_fmac_f32 v{v}, v118, v118')
        allreduce_multi(a, [120, 121], [118, 119])
        for r in range(2):
            X = 100+8*r; m = 116+r; v = 120+r
            a(f'v_mul_f32 v{v}, {f2u(1/512)}, v{v}')
            round_bf16(a, v, 118); a(f'v_add_f32 v{v}, {f2u(1e-5)}, v{v}'); round_bf16(a, v, 118)
            a(f'v_sqrt_f32 v{v}, v{v}'); a('s_nop 0'); round_bf16(a, v, 118)
            a(f'v_rcp_f32 v{v}, v{v}'); round_bf16(a, m, 118)
            for k in range(4):
                a(f'v_sub_f32 v118, v{X+2*k}, v{m}'); a(f'v_sub_f32 v119, v{X+2*k+1}, v{m}')
                a('v_cvt_pk_bf16_f32 v122, v118, v119'); a('v_lshlrev_b32 v118, 16, v122'); a('v_and_b32 v119, 0xffff0000, v122')
                a(f'v_mul_f32 v118, v118, v{v}'); a(f'v_mul_f32 v119, v119, v{v}')
                a('v_cvt_pk_bf16_f32 v122, v118, v119'); a(f'v_lshlrev_b32 v{X+2*k}, 16, v122'); a(f'v_and_b32 v{X+2*k+1}, 0xffff0000, v122')
        a.vm = []
        self.stamp()
        a.fake = 0; a.vm = []
        if M['w_mode'] == 'late': self.wq_dma()
        a(f's_lshl_b32 s70, s{S_QB}, 8')
        self.wait([(70, 1, 32)])
        self.stamp()
        a(f'v_lshlrev_b32 v70, 5, v{L}'); a(f's_lshl_b32 s44, s{S_QB}, 12')
        a.vmem(f'buffer_load_dwordx4 v[20:23], v70, s[{SRD_MP}:{SRD_MP+3}], s44 offen sc1', 'g'); a.vmem(f'buffer_load_dwordx4 v[24:27], v70, s[{SRD_MP}:{SRD_MP+3}], s44 offen offset:16 sc1', 'g')
        a.vmem(f'buffer_load_dwordx4 v[28:31], v70, s[{SRD_MP}:{SRD_MP+3}], s44 offen offset:2048 sc1', 'g'); a.vmem(f'buffer_load_dwordx4 v[32:35], v70, s[{SRD_MP}:{SRD_MP+3}], s44 offen offset:2064 sc1', 'g')
        a.wait_vm('g')
        cs = 128**-0.5 * LOG2E
        for k in range(8):
            round_bf16(a, 20+k, 36); round_bf16(a, 28+k, 36)
            a(f'v_add_f32 v{28+k}, 1.0, v{28+k}'); round_bf16(a, 28+k, 36)
        for r in range(2):
            X = 100+8*r
            for k in range(8): a(f'v_fma_f32 v{X+k}, v{X+k}, v{28+k}, v{20+k}')
            for k in range(4): a(f'v_cvt_pk_bf16_f32 v{8+4*r+k}, v{X+2*k}, v{X+2*k+1}')
        a(f'v_lshlrev_b32 v118, 7, v{L}'); a(f's_lshl_b32 s44, s{S_W}, 5'); a(f's_add_u32 s44, s44, {SCR+8192}'); a('v_add_u32 v118, s44, v118')
        a('ds_write_b128 v118, v[8:11]'); a('ds_write_b128 v118, v[12:15] offset:16')
        a('s_waitcnt lgkmcnt(0)'); a('s_barrier')
        a(f'v_lshlrev_b32 v118, 4, v{TID}'); a(f'v_add_u32 v119, {SCR+8192}, v118')
        a('ds_read_b128 v[8:11], v119'); a('ds_read_b128 v[12:15], v119 offset:4096')
        a(f'v_lshrrev_b32 v119, 3, v{TID}'); a('v_lshlrev_b32 v119, 9, v119'); a(f'v_and_b32 v120, 7, v{TID}'); a('v_lshlrev_b32 v120, 4, v120'); a('v_add_u32 v119, v119, v120')
        a('s_lshr_b32 s44, s2, 2'); a('s_lshl_b32 s44, s44, 15'); a('s_and_b32 s45, s2, 3'); a('s_lshl_b32 s45, s45, 7'); a('s_add_u32 s44, s44, s45'); a('s_add_u32 s45, s44, 16384')
        a('s_waitcnt lgkmcnt(0)')
        a(f'buffer_store_dwordx4 v[8:11], v119, s[{SRD_XN}:{SRD_XN+3}], s44 offen sc1'); a(f'buffer_store_dwordx4 v[12:15], v119, s[{SRD_XN}:{SRD_XN+3}], s45 offen sc1')
        a(f's_add_u32 s70, s{S_QB}, {C_FG2}'); a('s_lshl_b32 s70, s70, 8')
        self.signal([70], vm_allow=0); a.vm = []
        a('v_lshlrev_b32 v134, 16, v52'); a('v_lshlrev_b32 v135, 16, v53')
        silu([134, 135])
        for i in range(2):
            for j in range(4):
                w = 56+4*i+j
                a(f'v_lshlrev_b32 v136, 16, v{w}'); a(f'v_and_b32 v137, 0xffff0000, v{w}')
                if i == 0: a(f'v_mul_f32 v{140+2*j}, v136, v134'); a(f'v_mul_f32 v{141+2*j}, v137, v134')
                else: a(f'v_fmac_f32 v{140+2*j}, v136, v135'); a(f'v_fmac_f32 v{141+2*j}, v137, v135')
        a('s_nop 1'); allreduce_multi(a, list(range(140, 148)), list(range(124, 132)))
        a(f's_lshl_b32 s44, s{S_W}, 5'); a(f's_add_u32 s44, s44, {SCR+4096}'); a('v_mov_b32 v136, s44')
        a('s_mov_b64 exec, 1'); a('ds_write_b128 v136, v[140:143]'); a('ds_write_b128 v136, v[144:147] offset:16'); a('s_mov_b64 exec, -1')
        a('s_waitcnt lgkmcnt(0)'); a('s_barrier')
        a(f's_cmp_lg_u32 s{S_W}, 1'); a('s_cbranch_scc1 F_NOT1')
        a(f'v_and_b32 v70, 7, v{L}'); a('v_lshlrev_b32 v70, 2, v70'); a(f'v_add_u32 v71, {SCR+4096}, v70')
        for w in range(4): a(f'ds_read_b32 v{20+w}, v71 offset:{32*w}')
        a('s_waitcnt lgkmcnt(0)')
        a('v_add_f32 v20, v20, v21'); a('v_add_f32 v22, v22, v23'); a('v_add_f32 v20, v20, v22')
        a('s_lshl_b32 s44, s83, 5'); a(f's_add_u32 s44, s44, {WS_M2}')
        a('s_mov_b64 exec, 0xff'); a(f'buffer_store_dword v20, v70, s[{SRD_MP}:{SRD_MP+3}], s44 offen sc1')
        a('s_mov_b64 exec, 1'); a('v_mov_b32 v252, 0'); a('s_mov_b32 s68, 0')
        a.label('F_ZP1')
        a('buffer_load_dword v251, v252, s[64:67], 0 offen sc1'); a('s_waitcnt vmcnt(0)'); a('v_readfirstlane_b32 s69, v251')
        a('s_add_u32 s68, s68, 1'); a('s_cmp_lg_u32 s69, 0'); a('s_cbranch_scc1 F_ZD1')
        a(f's_cmp_gt_u32 s68, {M["spin"]}'); a('s_cbranch_scc1 F_ZD1'); a('s_sleep 1'); a('s_branch F_ZP1')
        a.label('F_ZD1')
        a('s_and_b32 s71, s2, 7'); a(f's_add_u32 s71, s71, {C_M2}'); a('s_lshl_b32 s71, s71, 8'); a('v_mov_b32 v251, 1'); a('v_mov_b32 v252, s71')
        a(f'buffer_atomic_add v251, v252, s[{SRD_SY}:{SRD_SY+3}], 0 offen sc1')
        a('s_mov_b64 exec, -1')
        a.label('F_NOT1')
        self.stamp()

    def attention(self):
        a = self.a; L = LANE
        a(f's_load_dwordx2 s[6:7], s[0:1], {KA_K}'); a(f's_load_dwordx2 s[8:9], s[0:1], {KA_V}')
        a(f's_load_dwordx2 s[56:57], s[0:1], {KA_WO}'); a(f's_load_dwordx2 s[90:91], s[0:1], {KA_WG}'); a(f's_load_dwordx2 s[92:93], s[0:1], {KA_WU}'); a(f's_load_dwordx2 s[94:95], s[0:1], {KA_WD}')
        a(f's_lshl_b32 s{S_RT}, s{S_QB}, 3'); a(f's_lshl_b32 s{S_T}, s{S_W}, 1'); a(f's_add_u32 s{S_RT}, s{S_RT}, s{S_T}')
        a(f's_lshl_b32 s{S_M0}, s{S_W}, 12'); a(f's_mov_b32 s{S_THR}, {f2u(THR)}')
        a('s_mov_b32 s58, 4194304'); a('s_mov_b32 s59, 0x00020000')
        a('s_mov_b32 s96, 1835008'); a('s_mov_b32 s97, 1835008'); a('s_mov_b32 s98, 1835008')
        a(f's_lshl_b32 s{S_PF}, s2, 12'); a(f's_lshl_b32 s{S_PFM}, s{S_W}, 10'); a(f's_add_u32 s{S_PF}, s{S_PF}, s{S_PFM}'); a(f's_add_u32 s{S_PFM}, s{S_PFM}, {SCR}')
        vg, vhf, vch, vrr, vc, vt, vu = 200, 201, 202, 203, 204, 205, 206
        a(f'v_lshrrev_b32 v{vg}, 4, v{L}'); a(f'v_lshrrev_b32 v{vhf}, 5, v{L}'); a(f'v_and_b32 v{vch}, 1, v{vg}'); a(f'v_bfe_u32 v{vrr}, v{L}, 2, 2'); a(f'v_and_b32 v{vc}, 3, v{L}')
        a(f'v_and_b32 v{vt}, 15, v{L}'); a(f'v_lshlrev_b32 v{vu}, 2, v{vg}'); a(f'v_xor_b32 v{vu}, v{vt}, v{vu}'); a(f'v_lshlrev_b32 v{vu}, 4, v{vu}')
        a(f'v_lshlrev_b32 v{VOV}, 8, v{vg}'); a(f'v_add_u32 v{VOV}, v{VOV}, v{vu}')
        for i in range(4):
            a(f'v_add_u32 v{vu}, {4*i}, v{vg}'); a(f'v_xor_b32 v{vu}, v{vt}, v{vu}'); a(f'v_lshlrev_b32 v{vu}, 4, v{vu}')
            a(f'v_lshlrev_b32 v{VOK+i}, 8, v{vg}'); a(f'v_add_u32 v{VOK+i}, v{VOK+i}, v{vu}')
        a(f'v_and_b32 v{vt}, 31, v{L}')
        for s in range(8):
            a(f'v_add_u32 v{vu}, {2*s}, v{vhf}'); a(f'v_and_b32 v{KAD+s}, 15, v{vt}'); a(f'v_xor_b32 v{vu}, v{vu}, v{KAD+s}'); a(f'v_lshlrev_b32 v{vu}, 4, v{vu}')
            a(f'v_lshlrev_b32 v{KAD+s}, 8, v{vt}'); a(f'v_add_u32 v{KAD+s}, v{KAD+s}, v{vu}')
        WAD = 246
        for dt in range(4):
            a(f'v_xor_b32 v{vt}, {dt}, v{vrr}'); a(f'v_lshlrev_b32 v{vt}, 2, v{vt}'); a(f'v_lshlrev_b32 v{vu}, 1, v{vch}'); a(f'v_add_u32 v{vt}, v{vt}, v{vu}')
            a(f'v_lshrrev_b32 v{vu}, 1, v{vc}'); a(f'v_add_u32 v{vu}, v{vt}, v{vu}'); a(f'v_lshlrev_b32 v{vu}, 4, v{vu}')
            a(f'v_and_b32 v207, 1, v{vc}'); a('v_lshlrev_b32 v207, 3, v207'); a(f'v_add_u32 v{vu}, v{vu}, v207')
            a(f'v_lshlrev_b32 v207, 2, v{vhf}'); a(f'v_add_u32 v207, v207, v{vrr}'); a('v_lshlrev_b32 v207, 8, v207'); a(f'v_add_u32 v{vu}, v{vu}, v207')
            a(f'v_add_u32 v{VAD+dt}, {VBASE}, v{vu}')
            a(f'v_and_b32 v{vu}, 1, v{vc}'); a(f'v_add_u32 v{vu}, v{vt}, v{vu}'); a(f'v_lshlrev_b32 v{vu}, 4, v{vu}')
            a(f'v_lshrrev_b32 v207, 1, v{vc}'); a('v_lshlrev_b32 v207, 3, v207'); a(f'v_add_u32 v{vu}, v{vu}, v207')
            a(f'v_lshlrev_b32 v207, 3, v{vhf}'); a(f'v_add_u32 v207, v207, v{vrr}'); a('v_lshlrev_b32 v207, 8, v207'); a(f'v_add_u32 v{WAD+dt}, v{vu}, v207')
        XOFF = 221
        a(f'v_lshlrev_b32 v{XOFF}, 4, v{L}')
        a('s_waitcnt lgkmcnt(0)')
        a(f's_lshl_b32 s{S_T}, s{S_H}, 19')
        a.srd(SRD_K, 6, f's{S_T}', 524288); a.srd(SRD_V, 8, f's{S_T}', 524288); a.srd(SRD_O, 4, WS_O, 16777216)
        a(f's_add_u32 s70, s{S_QB}, {C_FG2}'); a('s_lshl_b32 s70, s70, 8')
        self.wait([(70, 1, 32)])
        self.stamp()
        S_XO = 48
        a(f's_lshl_b32 s{S_XO}, s{S_RT}, 15'); a(f's_add_u32 s{S_XO+1}, s{S_XO}, 32768')
        SLOTS = [8*i for i in range(8)] + [192, 200, 208]
        RING = len(SLOTS)
        def x_ops(s, q):
            r = SLOTS[s % RING] + 4*q
            return ([f's_add_u32 s{S_T}, s{S_XO+q}, {(s//4)*4096}'],
                    f'buffer_load_dwordx4 v[{r}:{r+3}], v{XOFF}, s[{SRD_XN}:{SRD_XN+3}], s{S_T} offen offset:{(s%4)*1024} {M["ldsc"]}')
        def kv_ops(which, tile, i):
            base = (0 if which == 'K' else VBASE) + (tile & 3)*16384
            srd = SRD_K if which == 'K' else SRD_V
            vo = VOK+i if which == 'K' else VOV
            return ([f's_add_u32 m0, s{S_M0}, {base}', f's_add_u32 s{S_T}, s{S_M0}, {tile*16384}'],
                    f'buffer_load_dwordx4 v{vo}, s[{srd}:{srd+3}], s{S_T} offen offset:{1024*i} lds')
        def emit_item(ops, tag):
            for x in ops[0]: a(x)
            a.vmem(ops[1], tag)
        PRE_X = min(M['pre_x'], RING)
        for s in range(PRE_X):
            for q in range(2): emit_item(x_ops(s, q), ('X', s))
        LA = 2; WF = [192, 208, 224]
        def QA(q, dt): return 64 + (q*4+dt)*16
        def w_read_ops(s):
            return [f'ds_read_b64_tr_b16 {ar(WF[s % 3] + dt*4 + 2*u,2)}, v{WAD+dt} offset:{(s%16)*4096 + 1024*u}' for dt in range(4) for u in range(2)]
        for s0 in range(LA):
            for op in w_read_ops(s0): a.lds(op, ('Wf', s0))
        BARS = [7, 15, 23, 31]
        Q = []
        for s in range(PRE_X, 32):
            for q in range(2): Q.append((s-1, s-RING+1, ('X', s), x_ops(s, q)))
        for which, tile, av in (('K',0,7),('K',1,7),('K',2,15),('K',3,15),('V',0,23),('V',1,23),('V',2,31)):
            for i in range(4): Q.append((100, max(av, M['kv_from']), (which, tile), kv_ops(which, tile, i)))
        Q.sort(key=lambda x: x[0])
        def pop_q(s):
            for i, it in enumerate(Q):
                if it[1] <= s: return Q.pop(i)
            return None
        bumped = False
        for s in range(32):
            assert not any(it[2] == ('X', s) for it in Q), s
            if s in BARS: a.wait_vm(('X', s)); a.wait_lg0(); a('s_barrier')
            else: a.wait_vm(('X', s)); a.wait_lg(('Wf', s))
            if s+LA == 16:
                for dt in range(4): a(f'v_add_u32 v{WAD+dt}, 65536, v{WAD+dt}')
            wr = w_read_ops(s+LA) if s+LA < 32 else []
            x = SLOTS[s % RING]
            mfs = [mfma(vr(QA(q,dt),16), ar(WF[s % 3]+dt*4,4), vr(x+4*q,4), '0' if s == 0 else vr(QA(q,dt),16)) for dt in range(4) for q in range(2)]
            ri = 0
            for g in range(8):
                it = pop_q(s) if g in M['qp_slots'] else None
                if it:
                    for t_ in it[3][0]: a(t_)
                a(mfs[g])
                if it: a.vmem(it[3][1], it[2])
                else:
                    for op in wr[ri:ri+2]: a.lds(op, ('Wf', s+LA))
                    ri += 2
            for op in wr[ri:]: a.lds(op, ('Wf', s+LA))
        while Q:
            it = Q.pop(0); emit_item(it[3], it[2])
        a(f's_add_u32 s{S_KOFF}, s{S_M0}, {4*16384}'); a(f's_add_u32 s{S_VOFF}, s{S_M0}, {3*16384}')
        self.stamp()
        a(f'v_mov_b32 v250, {f2u(128**-0.5 * LOG2E)}')
        a.nop(14)
        for q in range(2):
            for dt in range(4):
                for k in range(0, 16, 2):
                    r = QA(q,dt)+k
                    a(f'v_pk_mul_f32 v[{r}:{r+1}], v[{r}:{r+1}], v[250:251] op_sel_hi:[1,0]')
                for t in range(2):
                    b = 4*((2*dt+t) % 4)
                    for k in range(4): a(f'v_cvt_pk_bf16_f32 v{b+k}, v{QA(q,dt)+8*t+2*k}, v{QA(q,dt)+8*t+2*k+1}')
                    for k in range(4): a(f'v_accvgpr_write_b32 a{QF(q,2*dt+t)+k}, v{b+k}')
        a(f'v_mov_b32 v{LR[0]}, 0'); a(f'v_mov_b32 v{LR[1]}, 0')
        a.wait_vm(('V', 1)); a('s_barrier')
        for s in range(8): a(k_read(s, 0))
        a('s_waitcnt lgkmcnt(0)')
        for s in range(8):
            for q in range(2):
                d = vr(S[0]+q*16, 16); a(mfma(d, ar(KF(s),4), ar(QF(q,s),4), '0' if s == 0 else d))
        for s in range(8): a(k_read(s, 1))
        a.nop(16)
        m = TMP+1; t2 = TMP+2
        for q in range(2):
            sc = S[0]+q*16
            a(f'v_max3_f32 v{m}, v{sc}, v{sc+1}, v{sc+2}')
            for r in range(3, 15, 2): a(f'v_max3_f32 v{m}, v{m}, v{sc+r}, v{sc+r+1}')
            a(f'v_max_f32 v{m}, v{m}, v{sc+15}')
            a(f'v_mov_b32 v{t2}, v{m}'); a('s_nop 1'); a(f'v_permlane32_swap_b32 v{t2}, v{m}'); a('s_nop 1'); a(f'v_max_f32 v{m}, v{m}, v{t2}')
            a(f'v_add_f32 v{m}, {f2u(OFFSET)}, v{m}')
            for r in range(16):
                a(f'v_sub_f32 v{NEGM+q*16+r}, 0, v{m}'); a(f'v_sub_f32 v{sc+r}, v{sc+r}, v{m}')
        self.stubs = stubs = []
        self.stamp()
        gen_iter(a, 0, do_pv=False, do_vread=False, barrier=63, dmaK=4, lsum_prev=False, stubs=stubs)
        gen_iter(a, 1, dmaV=3, stubs=stubs, pf=True, pv_zero=True)
        if M.get('fine'): self.stamp()
        a(f's_mov_b32 s{S_CNT}, 7')
        a.raw('.p2align 6')
        a.label('KB_LOOP0')
        for j in range(2, 10):
            T_ = j//2
            if j % 2 == 0: gen_iter(a, j, barrier=18, dmaK=T_+4, stubs=stubs)
            else: gen_iter(a, j, dmaV=T_+3, stubs=stubs, pf=True)
            if j == 8:
                a(f's_sub_u32 s{S_PF}, s{S_PF}, 0x400000')
                a('s_mov_b32 s56, s90'); a('s_mov_b32 s57, s91'); a('s_mov_b32 s90, s92'); a('s_mov_b32 s91, s93'); a('s_mov_b32 s92, s94'); a('s_mov_b32 s93, s95')
                a('s_mov_b32 s58, s96'); a('s_mov_b32 s96, s97'); a('s_mov_b32 s97, s98'); a('s_mov_b32 s98, 0')
        a(f's_sub_u32 s{S_CNT}, s{S_CNT}, 1'); a(f's_cmp_lg_u32 s{S_CNT}, 0'); a('s_cbranch_scc1 KB_LOOP0')
        if M.get('fine'): self.stamp()
        gen_iter(a, 58, barrier=9, stubs=stubs); gen_iter(a, 59, stubs=stubs)
        gen_iter(a, 60, barrier=0, stubs=stubs); gen_iter(a, 61, stubs=stubs); gen_iter(a, 62, do_kread=False, stubs=stubs)
        gen_iter(a, 63, do_qk=False, do_kread=False, stubs=stubs)
        a(f'v_add_f32 v{LR[0]}, v{LR[0]}, v{LT[0]}'); a(f'v_add_f32 v{LR[1]}, v{LR[1]}, v{LT[1]}')
        for t in range(2):
            for dt in range(4):
                for u in range(2): a(v_read(t, dt, u, 63))
        a('s_waitcnt lgkmcnt(0)')
        for t in range(2):
            for dt in range(4):
                for q in range(2):
                    d = ar(OA(q,dt),16); a(mfma(d, ar(VF(t,dt),4), vr(P[1]+q*8+t*4,4), d))
        a('s_barrier')
        a.vm = []; a.lg = []
        self.stamp()
        for q in range(2):
            xhalf_sum(a, LR[q], TMP); a(f'v_rcp_f32 v{LR[q]}, v{LR[q]}')
        a.nop(16)
        S_WS = 45
        a(f's_lshl_b32 s{S_T}, s{S_RT}, 18'); a(f's_lshl_b32 s{S_WS}, s{S_H}, 13'); a(f's_add_u32 s{S_XO}, s{S_T}, s{S_WS}'); a(f's_add_u32 s{S_XO+1}, s{S_XO}, {256*1024}')
        cnt = 0
        for q in range(2):
            a(f'v_mov_b32 v250, v{LR[q]}')
            for dt in range(4):
                for t in range(2):
                    b = 16*(cnt % 4); cnt += 1
                    for k in range(8): a(f'v_accvgpr_read_b32 v{b+k}, a{OA(q,dt)+8*t+k}')
                    for k in range(0, 8, 2): a(f'v_pk_mul_f32 v[{b+k}:{b+k+1}], v[{b+k}:{b+k+1}], v[250:251] op_sel_hi:[1,0]')
                    for k in range(4): a(f'v_cvt_pk_bf16_f32 v{b+8+k}, v{b+2*k}, v{b+2*k+1}')
                    ks = 2*dt+t
                    a(f's_add_u32 s{S_T}, s{S_XO+q}, {(ks//4)*4096}')
                    a.vmem(f'buffer_store_dwordx4 v[{b+8}:{b+11}], v{XOFF}, s[{SRD_O}:{SRD_O+3}], s{S_T} offen offset:{(ks%4)*1024} sc1', 'ost')

    def lane_consts_vstyle(self, WAD, WOFF, rowstride, tmp):
        a = self.a; L = LANE
        vg, vhf, vch, vrr, vc, vt, vu, vw = range(tmp, tmp+8)
        a(f'v_lshrrev_b32 v{vg}, 4, v{L}'); a(f'v_lshrrev_b32 v{vhf}, 5, v{L}'); a(f'v_and_b32 v{vch}, 1, v{vg}')
        a(f'v_bfe_u32 v{vrr}, v{L}, 2, 2'); a(f'v_and_b32 v{vc}, 3, v{L}')
        a(f'v_and_b32 v{vt}, 15, v{L}'); a(f'v_lshlrev_b32 v{vu}, 2, v{vg}'); a(f'v_xor_b32 v{vu}, v{vt}, v{vu}'); a(f'v_lshlrev_b32 v{vu}, 4, v{vu}')
        a(f'v_mul_u32_u24 v{WOFF}, {rowstride}, v{vg}'); a(f'v_add_u32 v{WOFF}, v{WOFF}, v{vu}')
        for dt in range(4):
            a(f'v_xor_b32 v{vt}, {dt}, v{vrr}'); a(f'v_lshlrev_b32 v{vt}, 2, v{vt}'); a(f'v_lshlrev_b32 v{vu}, 1, v{vch}'); a(f'v_add_u32 v{vt}, v{vt}, v{vu}')
            a(f'v_lshrrev_b32 v{vu}, 1, v{vc}'); a(f'v_add_u32 v{vu}, v{vt}, v{vu}'); a(f'v_lshlrev_b32 v{vu}, 4, v{vu}')
            a(f'v_and_b32 v{vw}, 1, v{vc}'); a(f'v_lshlrev_b32 v{vw}, 3, v{vw}'); a(f'v_add_u32 v{vu}, v{vu}, v{vw}')
            a(f'v_lshlrev_b32 v{vw}, 2, v{vhf}'); a(f'v_add_u32 v{vw}, v{vw}, v{vrr}'); a(f'v_lshlrev_b32 v{vw}, 8, v{vw}')
            a(f'v_add_u32 v{WAD[0]+dt}, v{vu}, v{vw}'); a(f'v_add_u32 v{WAD[1]+dt}, 65536, v{WAD[0]+dt}')

    def shared_gemm(self, NK, NM, nmat, CH, w_dma_ops, x_load_ops, XRING, XR, WF, WAD, ACC, pre_x, nv, npre, LA=2):
        a = self.a
        chunk_bytes = nmat*CH*4096; NSLOT = 131072 // chunk_bytes; NCH = NK // CH
        NB = LA+1
        def emit(ops, tag):
            for x in ops[0]: a(x)
            a.vmem(ops[1], tag)
        for s in range(pre_x): emit(x_load_ops(s), ('X', s))
        a.wait_vm(('W', 0)); a('s_barrier')
        Q = []
        for c in range(npre, NCH):
            av = -1 if c < NSLOT else (c-NSLOT+1)*CH - LA
            for o in w_dma_ops(c): Q.append((c*CH-LA-2*CH, av, ('W', c), o))
        for s in range(pre_x, NK): Q.append((s-0.5-4, s-XRING+1, ('X', s), x_load_ops(s)))
        Q.sort(key=lambda x: x[0])
        def pop_q(s):
            for i, it in enumerate(Q):
                if it[1] <= s: return Q.pop(i)
            return None
        def w_read_ops(s):
            ops = []; c = s//CH; slot = c % NSLOT
            for gu in range(nmat):
                for dt in range(4):
                    for u in range(2):
                        off = slot*chunk_bytes + gu*CH*4096 + (s % CH)*4096 + u*2048
                        ops.append(f'ds_read_b64_tr_b16 {ar(WF[s % NB] + (gu*4+dt)*4 + 2*u,2)}, v{WAD[off>>16]+dt} offset:{off & 65535}')
            return ops
        half = NM
        for s0 in range(LA):
            for i, op in enumerate(w_read_ops(s0)): a.lds(op, ('Wf', s0, i//half))
        for s in range(NK):
            bar = ((s+LA) % CH == 0 and s+LA < NK)
            assert not any(it[2] == ('X', s) for it in Q), s
            if bar:
                c = (s+LA)//CH
                assert not any(it[2] == ('W', c) for it in Q), (s, c)
                a.wait_vm([('W', c), ('X', s)]); a.wait_lg0(); a('s_barrier')
            else:
                a.wait_vm(('X', s)); a.wait_lg(('Wf', s, 0))
            wr = w_read_ops(s+LA) if s+LA < NK else []
            x = XR + 4*(s % XRING)
            items = []
            for _ in range(nv):
                it = pop_q(s)
                if it: items.append(it)
            vg = list(range(0, NM, max(1, NM//max(1, nv))))[:len(items)] if items else []
            vg = [NM-1-g for g in vg]
            free = [g for g in range(NM) if g not in vg]
            nper = {g: 0 for g in range(NM)}
            rem = len(wr)
            cap = M['tr_cap']
            for g in free:
                k = min(cap, rem); nper[g] = k; rem -= k
            gi = 0; sv = sorted(vg) + free
            while rem:
                nper[sv[gi % len(sv)]] += 1; rem -= 1; gi += 1
            ri = 0; vi = 0
            for g in range(NM):
                d = ACC(g)
                if g == NM//2 and not bar: a.wait_lg(('Wf', s, 1))
                it = None
                if g in vg:
                    it = items[vi]; vi += 1
                    for t in it[3][0]: a(t)
                a(mfma(d, ar(WF[s % NB]+g*4,4), vr(x,4), '0' if s == 0 else d))
                if it: a.vmem(it[3][1], it[2])
                for _ in range(nper[g]):
                    a.lds(wr[ri], ('Wf', s+LA, ri//half)); ri += 1
        assert not Q, Q

    def mod2_tables(self):
        a = self.a
        a.srd(64, 4, WS_M2, 65536)
        a(f's_mov_b32 s71, {C_M2*256}')
        self.wait([(71, 8, 32)])
        a(f'v_lshlrev_b32 v136, 3, v{TID}'); a('v_add_u32 v137, 4096, v136')
        B0 = 64
        for e in range(8):
            a(f's_mov_b32 s83, {e*8192}')
            for j in range(4):
                vo = 136 if j < 2 else 137
                a.vmem(f'buffer_load_dwordx2 v[{B0+16*j+2*e}:{B0+16*j+2*e+1}], v{vo}, s[64:67], s83 offen offset:{2048*(j%2)} sc1', 'mod')
        a.wait_vm('mod')
        for j in range(4):
            for c_ in range(2):
                b = B0+16*j+c_
                for st_ in (2, 4, 8):
                    for e in range(0, 16, 2*st_): a(f'v_add_f32 v{b+e}, v{b+e}, v{b+e+st_}')
                round_bf16(a, b, 138)
        for c_ in range(2):
            a(f'v_add_f32 v{B0+32+c_}, 1.0, v{B0+32+c_}'); round_bf16(a, B0+32+c_, 138)
        a(f'v_add_u32 v136, {SCR}, v136')
        a(f'ds_write_b64 v136, v[{B0}:{B0+1}]'); a(f'ds_write_b64 v136, v[{B0+32}:{B0+33}] offset:2048')
        a(f'ds_write_b64 v136, v[{B0+16}:{B0+17}] offset:4096'); a(f'ds_write_b64 v136, v[{B0+48}:{B0+49}] offset:6144')
        a('s_waitcnt lgkmcnt(0)')

    def phase_c(self):
        a = self.a
        S_RB=36; S_CB=37; S_KQ=33; S_TT=38; S_RTc=39; S_WO=41; S_M0c=42; S_XO=45
        SRD_W=12; SRD_X=16; SRD_Oc=20
        WAD=[200, 204]; WOFF=208; LOFF=209
        a(f's_load_dwordx2 s[6:7], s[0:1], {KA_WO}')
        a(f's_load_dwordx2 s[86:87], s[0:1], {KA_WD}')
        a(f'v_lshrrev_b32 v213, 3, v{LANE}'); a('v_lshlrev_b32 v213, 10, v213'); a(f'v_bfe_u32 v214, v{LANE}, 4, 1'); a('v_lshlrev_b32 v214, 2, v214')
        a(f'v_and_b32 v215, 7, v{LANE}'); a('v_xor_b32 v214, v214, v215'); a('v_lshlrev_b32 v214, 4, v214'); a('v_add_u32 v213, v213, v214')
        a(f'v_lshlrev_b32 v214, 4, v{LANE}')
        a('s_mul_i32 s88, s2, 7'); a(f's_lshl_b32 s82, s{S_W}, 1'); a('s_add_u32 s88, s88, s82')

        a('s_lshr_b32 s70, s2, 5'); a('s_lshl_b32 s70, s70, 2'); a('s_bfe_u32 s71, s2, 0x20003'); a('s_add_u32 s70, s70, s71'); a(f's_add_u32 s70, s70, {C_CO}'); a('s_lshl_b32 s70, s70, 8')
        a('s_and_b32 s34, s2, 7'); a('s_lshr_b32 s35, s2, 3')
        a(f's_and_b32 s{S_KQ}, s34, 3'); a('s_lshr_b32 s34, s34, 2'); a('s_lshl_b32 s34, s34, 3'); a(f's_and_b32 s{S_RB}, s35, 7'); a(f's_add_u32 s{S_RB}, s{S_RB}, s34')
        a(f's_lshr_b32 s{S_CB}, s35, 3')
        a(f'v_lshlrev_b32 v{LOFF}, 4, v{LANE}')
        self.lane_consts_vstyle(WAD, WOFF, 1024, 128)
        a(f's_lshl_b32 s{S_RTc}, s{S_RB}, 2'); a(f's_add_u32 s{S_RTc}, s{S_RTc}, s{S_W}')
        a(f's_lshl_b32 s{S_WO}, s{S_KQ}, 20'); a(f's_lshl_b32 s{S_TT}, s{S_W}, 12'); a(f's_add_u32 s{S_WO}, s{S_WO}, s{S_TT}')
        a(f's_lshl_b32 s{S_TT}, s{S_CB}, 8'); a(f's_add_u32 s{S_WO}, s{S_WO}, s{S_TT}')
        a(f's_lshl_b32 s{S_M0c}, s{S_W}, 10')
        a(f's_lshl_b32 s{S_XO}, s{S_RTc}, 18'); a(f's_lshl_b32 s{S_TT}, s{S_KQ}, 16'); a(f's_add_u32 s{S_XO}, s{S_XO}, s{S_TT}')
        a(f's_lshr_b32 s71, s{S_RB}, 1'); a('s_lshl_b32 s71, s71, 2'); a(f's_add_u32 s71, s71, s{S_KQ}'); a(f's_add_u32 s71, s71, {C_CO}'); a('s_lshl_b32 s71, s71, 8')
        a('s_waitcnt lgkmcnt(0)')
        a.srd(SRD_W, 6, 0, 4194304); a.srd(SRD_X, 4, WS_O, 16777216); a.srd(SRD_Oc, 4, WS_P, 8388608); a.srd(64, 4, WS_M2, 8192); a.srd(76, 86, 0, 1835008); a.srd(48, 4, WS_WDP, 1835008)
        def w_dma_ops(c):
            slot = c % 8
            return [([f's_add_u32 m0, s{S_M0c}, {slot*16384 + m*4096}', f's_add_u32 s{S_TT}, s{S_WO}, {(c*64 + m*16)*1024}'],
                     f'buffer_load_dwordx4 v{WOFF}, s[{SRD_W}:{SRD_W+3}], s{S_TT} offen lds') for m in range(4)]
        XRING = 32
        def x_load_ops(s):
            r = 4*(s % XRING)
            return ([f's_add_u32 s{S_TT}, s{S_XO}, {(s//4)*4096}'],
                    f'buffer_load_dwordx4 v[{r}:{r+3}], v{LOFF}, s[{SRD_X}:{SRD_X+3}], s{S_TT} offen offset:{(s%4)*1024} {M["ldsc"]}')
        NPRE = M['c_prew']
        def pre(track):
            for c in range(NPRE):
                for o in w_dma_ops(c):
                    for x in o[0]: a(x)
                    if track: a.vmem(o[1], ('W', c))
                    else: a(o[1])
        self.handoff(70, [('multi', 71, 8, C_M2)], pre=pre, npre=4*NPRE)
        self.stamp()
        a(f'v_lshlrev_b32 v210, 3, v{TID}'); a('v_add_u32 v211, 4096, v210')
        a.vmem('buffer_load_dwordx2 v[192:193], v210, s[64:67], 0 offen sc1', 'mod'); a.vmem('buffer_load_dwordx2 v[194:195], v210, s[64:67], 0 offen offset:2048 sc1', 'mod')
        a.vmem('buffer_load_dwordx2 v[196:197], v211, s[64:67], 0 offen sc1', 'mod'); a.vmem('buffer_load_dwordx2 v[198:199], v211, s[64:67], 0 offen offset:2048 sc1', 'mod')
        for i in range(2):
            a(f's_add_u32 s82, s88, {i}'); a('s_lshr_b32 s80, s82, 1'); a('s_mul_i32 s81, s80, 9363'); a('s_lshr_b32 s81, s81, 20')
            a('s_mul_i32 s75, s81, 112'); a('s_sub_u32 s80, s80, s75'); a('s_lshl_b32 s80, s80, 14')
            a('s_and_b32 s82, s82, 1'); a('s_lshl_b32 s82, s82, 13'); a('s_add_u32 s80, s80, s82'); a('s_lshl_b32 s81, s81, 7'); a('s_add_u32 s80, s80, s81')
            a.vmem(f'buffer_load_dwordx4 v[{216+4*i}:{219+4*i}], v213, s[76:79], s80 offen', 'wd')
        ACCB = 128
        self.shared_gemm(64, 4, 1, 4, w_dma_ops, x_load_ops, XRING, 0, [0, 16, 32], WAD, lambda g: vr(ACCB+16*g, 16), pre_x=M['c_prex'], nv=M['c_nv'], npre=NPRE, LA=M['la'])
        for c_ in range(2):
            for r in (192, 194, 196, 198): round_bf16(a, r+c_, 212)
            a(f'v_add_f32 v{196+c_}, 1.0, v{196+c_}'); round_bf16(a, 196+c_, 212)
        a(f'v_add_u32 v210, {T2B}, v210')
        a('ds_write_b64 v210, v[192:193]'); a('ds_write_b64 v210, v[196:197] offset:2048'); a('ds_write_b64 v210, v[194:195] offset:4096'); a('ds_write_b64 v210, v[198:199] offset:6144')
        a('s_waitcnt lgkmcnt(0)')
        a('s_barrier')
        self.stamp()
        a(f's_lshl_b32 s{S_XO}, s{S_KQ}, 21'); a(f's_lshl_b32 s{S_TT}, s{S_RTc}, 15'); a(f's_add_u32 s{S_XO}, s{S_XO}, s{S_TT}')
        a(f's_lshl_b32 s{S_TT}, s{S_CB}, 13'); a(f's_add_u32 s{S_XO}, s{S_XO}, s{S_TT}')
        for mt in range(4):
            if mt % 2 == 0: a(f's_add_u32 s{S_TT}, s{S_XO}, {(mt//2)*4096}')
            for t in range(2):
                b = 4*(2*mt+t)
                for k in range(4):
                    r = ACCB + 16*mt + 8*t + 2*k
                    a(f'v_cvt_pk_bf16_f32 v{b+k}, v{r}, v{r+1}')
                a.vmem(f'buffer_store_dwordx4 v[{b}:{b+3}], v{LOFF}, s[{SRD_Oc}:{SRD_Oc+3}], s{S_TT} offen offset:{1024*((2*mt+t)%4)} sc1', 'pst')
        a('s_lshl_b32 s80, s88, 10')
        a.vmem('buffer_store_dwordx4 v[216:219], v214, s[48:51], s80 offen sc1', 'pst'); a.vmem('buffer_store_dwordx4 v[220:223], v214, s[48:51], s80 offen offset:1024 sc1', 'pst')
        a(f's_add_u32 s74, s{S_RB}, {C_CP}'); a('s_lshl_b32 s74, s74, 8')
        a('s_and_b32 s75, s2, 7'); a(f's_add_u32 s75, s75, {C_WDP}'); a('s_lshl_b32 s75, s75, 8')

    def d_setup(self):
        a = self.a
        d = self.d = dict(S_RB=36, S_FG=37, S_TT=38, S_RT=39, S_GO=41, S_M0=42, S_XO=45, SRD_G=12, SRD_U=16, SRD_X=20, SRD_O=28, WAD=[200, 204], WOFF=208, LOFF=209)
        a(f's_load_dwordx2 s[6:7], s[0:1], {KA_WG}'); a(f's_load_dwordx2 s[8:9], s[0:1], {KA_WU}')
        a('s_and_b32 s33, s2, 7'); a('s_lshr_b32 s34, s2, 3')
        a(f's_and_b32 s36, s34, 3'); a('s_lshr_b32 s35, s33, 1'); a('s_lshl_b32 s35, s35, 2'); a('s_add_u32 s36, s36, s35')
        a(f's_lshr_b32 s37, s34, 2'); a('s_and_b32 s35, s33, 1'); a('s_mul_i32 s35, s35, 7'); a('s_add_u32 s37, s37, s35')
        self.lane_consts_vstyle(d['WAD'], d['WOFF'], 3584, 128)
        a(f's_lshl_b32 s39, s36, 2'); a(f's_add_u32 s39, s39, s{S_W}')
        a(f's_lshl_b32 s41, s37, 8'); a(f's_mul_i32 s38, s{S_W}, {4*3584}'); a('s_add_u32 s41, s41, s38')
        a(f's_lshl_b32 s42, s{S_W}, 10'); a('s_lshl_b32 s45, s39, 15')
        a('s_waitcnt lgkmcnt(0)')
        a.srd(12, 6, 0, 512*3584); a.srd(16, 8, 0, 512*3584)
    def d_w_dma_ops(self, c):
        slot = c % 4; ops = []
        for m in range(4):
            for gu in range(2):
                srd = 12 if gu == 0 else 16
                ops.append(([f's_add_u32 m0, s42, {slot*32768 + gu*16384 + m*4096}', f's_add_u32 s38, s41, {(c*64 + m*16)*3584}'],
                            f'buffer_load_dwordx4 v208, s[{srd}:{srd+3}], s38 offen lds'))
        return ops

    def wait_P(self):
        a = self.a
        l1 = a.newlabel('WP'); l2 = a.newlabel('WP')
        a(f's_cmp_lg_u32 s{S_W}, 0'); a(f's_cbranch_scc1 {l1}'); a('s_cmp_ge_u32 s2, 224'); a(f's_cbranch_scc1 {l1}')
        a('s_waitcnt vmcnt(32)'); a(f's_branch {l2}')
        a.label(l1); a('s_waitcnt vmcnt(0)')
        a.label(l2); a.vm = []
    def phase_r(self):
        a = self.a
        S_TT = 38
        SRD_P=44; SRD_X=48; SRD_MPr=52; SRD_X1=64; SRD_H=76
        TB0 = T2B
        a(f's_load_dwordx2 s[6:7], s[0:1], {KA_X}')
        a(f'v_and_b32 v2, 7, v{TID}'); a(f'v_bfe_u32 v3, v{TID}, 3, 1'); a(f'v_lshrrev_b32 v4, 4, v{TID}')
        a('s_lshr_b32 s80, s2, 2'); a('s_and_b32 s81, s2, 3'); a('s_lshl_b32 s81, s81, 3')
        a('v_lshlrev_b32 v5, 5, v3'); a('v_add_u32 v5, v5, v2'); a('v_add_u32 v5, s81, v5'); a('v_lshlrev_b32 v5, 4, v5')
        a('v_lshlrev_b32 v6, 10, v4'); a('v_add_u32 v6, v6, v5'); a('v_lshlrev_b32 v7, 11, v4'); a('v_add_u32 v7, v7, v5')
        a('v_add_u32 v8, s81, v2'); a('v_lshlrev_b32 v8, 10, v8'); a('v_lshlrev_b32 v9, 5, v4'); a('v_add_u32 v8, v8, v9'); a('v_lshlrev_b32 v9, 3, v3'); a('v_add_u32 v8, v8, v9')
        a(f'v_lshlrev_b32 v10, 3, v{TID}')
        a('s_waitcnt lgkmcnt(0)')
        a.srd(20, 4, WS_P, 8388608); a.srd(24, 6, 0, 2097152); a.srd(28, 4, WS_M2, 65536); a.srd(64, 4, WS_X1, 2097152); a.srd(76, 4, WS_H2, 2097152)
        a('s_lshl_b32 s82, s80, 15')
        for i in range(2):
            a(f's_add_u32 s83, s82, {i*512}')
            a.vmem(f'buffer_load_dwordx2 v[{112+4*i}:{113+4*i}], v8, s[24:27], s83 offen', 'x')
            a.vmem(f'buffer_load_dwordx2 v[{114+4*i}:{115+4*i}], v8, s[24:27], s83 offen offset:16', 'x')
        a('v_lshlrev_b32 v12, 6, v4'); a('v_lshlrev_b32 v13, 4, v3'); a('v_add_u32 v12, v12, v13'); a(f'v_add_u32 v12, {TB0}, v12')
        TB = 120
        for j in range(3):
            for i in range(2):
                for h in range(2):
                    r = TB + 16*j + 8*i + 4*h
                    a(f'ds_read_b128 v[{r}:{r+3}], v12 offset:{2048*j + 1024*i + 32*h}')
        a('s_lshr_b32 s70, s2, 4'); a(f's_add_u32 s70, s70, {C_CP}'); a('s_lshl_b32 s70, s70, 8')
        def pre(track):
            for c in range(4):
                for o in self.d_w_dma_ops(c):
                    for x in o[0]: a(x)
                    if track: a.vmem(o[1], ('W', c))
                    else: a(o[1])
        late = self.handoff(74, [(70, 1, 16)], pre=pre, npre=32, skip_cond='s_cmp_ge_u32 s2, 224', defer=True, vm_allow=4, sig2=75)
        a.vm = []
        self.stamp()
        a('s_lshl_b32 s84, s80, 15')
        for i in range(2):
            for kq in range(4):
                a(f's_add_u32 s83, s84, {kq*2097152 + i*16384}')
                r = 80 + (i*4+kq)*4
                a.vmem(f'buffer_load_dwordx4 v[{r}:{r+3}], v6, s[20:23], s83 offen sc1', 'P')
        late()
        a('s_waitcnt vmcnt(32)') if False else None
        self.wait_P()
        a('s_waitcnt lgkmcnt(0)')
        for i in range(2):
            b = 48 + i*32
            for k in range(4):
                for kq in range(4):
                    r = 80 + (i*4+kq)*4 + k
                    if kq == 0:
                        a(f'v_lshlrev_b32 v{b+2*k}, 16, v{r}'); a(f'v_and_b32 v{b+2*k+1}, 0xffff0000, v{r}')
                    else:
                        a(f'v_lshlrev_b32 v41, 16, v{r}'); a(f'v_and_b32 v42, 0xffff0000, v{r}')
                        a(f'v_add_f32 v{b+2*k}, v{b+2*k}, v41'); a(f'v_add_f32 v{b+2*k+1}, v{b+2*k+1}, v42')
        for i in range(2):
            b = 48 + i*32
            for k in range(4):
                A0, A1 = b+2*k, b+2*k+1
                a(f'v_cvt_pk_bf16_f32 v40, v{A0}, v{A1}'); a(f'v_lshlrev_b32 v{A0}, 16, v40'); a(f'v_and_b32 v{A1}, 0xffff0000, v40')
                a(f'v_mul_f32 v{A0}, v{A0}, v{TB+8*i+2*k}'); a(f'v_mul_f32 v{A1}, v{A1}, v{TB+8*i+2*k+1}')
                a(f'v_cvt_pk_bf16_f32 v40, v{A0}, v{A1}'); a(f'v_lshlrev_b32 v{A0}, 16, v40'); a(f'v_and_b32 v{A1}, 0xffff0000, v40')
                xr = 112+4*i+k
                a(f'v_lshlrev_b32 v41, 16, v{xr}'); a(f'v_and_b32 v42, 0xffff0000, v{xr}')
                a(f'v_add_f32 v{A0}, v{A0}, v41'); a(f'v_add_f32 v{A1}, v{A1}, v42')
                a(f'v_cvt_pk_bf16_f32 v{32+4*i+k}, v{A0}, v{A1}')
                a(f'v_lshlrev_b32 v{16+8*i+2*k}, 16, v{32+4*i+k}'); a(f'v_and_b32 v{17+8*i+2*k}, 0xffff0000, v{32+4*i+k}')
        a('s_lshl_b32 s82, s80, 15'); a('s_add_u32 s83, s82, 16384')
        a.vmem('buffer_store_dwordx4 v[32:35], v6, s[64:67], s82 offen sc1', 'st'); a.vmem('buffer_store_dwordx4 v[36:39], v6, s[64:67], s83 offen sc1', 'st')
        a('v_lshlrev_b32 v45, 3, v2'); a(f'v_add_u32 v45, {SCR+4096}, v45'); a(f's_lshl_b32 s85, s{S_W}, 6'); a('v_add_u32 v44, s85, v45')
        a('v_add_f32 v46, v16, v17'); a('v_mul_f32 v47, v16, v16'); a('v_fmac_f32 v47, v17, v17')
        for k in range(2, 16):
            a(f'v_add_f32 v46, v46, v{16+k}'); a(f'v_fmac_f32 v47, v{16+k}, v{16+k}')
        a('s_nop 1')
        for x in (46, 47): a(f'v_add_f32_dpp v{x}, v{x}, v{x} row_ror:8 row_mask:0xf bank_mask:0xf')
        for op in ('v_permlane16_swap_b32', 'v_permlane32_swap_b32'):
            a('v_mov_b32 v42, v46'); a('v_mov_b32 v43, v47'); a('s_nop 1')
            a(f'{op} v42, v46'); a(f'{op} v43, v47'); a('s_nop 1')
            a('v_add_f32 v46, v46, v42'); a('v_add_f32 v47, v47, v43')
        a('ds_write_b64 v44, v[46:47]'); a('s_waitcnt lgkmcnt(0)'); a('s_barrier')
        for w in range(4): a(f'ds_read_b64 v[{168+2*w}:{169+2*w}], v45 offset:{64*w}')
        a('s_waitcnt lgkmcnt(0)')
        a('v_add_f32 v168, v168, v170'); a('v_add_f32 v172, v172, v174'); a('v_add_f32 v46, v168, v172')
        a('v_add_f32 v169, v169, v171'); a('v_add_f32 v173, v173, v175'); a('v_add_f32 v43, v169, v173')
        a(f'v_mul_f32 v46, {f2u(1/512)}, v46'); a(f'v_mul_f32 v43, {f2u(1/512)}, v43')
        a('v_fma_f32 v43, -v46, v46, v43'); a('v_max_f32 v43, 0, v43')
        round_bf16(a, 43, 47); a(f'v_add_f32 v43, {f2u(1e-5)}, v43'); round_bf16(a, 43, 47)
        a('v_sqrt_f32 v43, v43'); a('s_nop 0'); round_bf16(a, 43, 47); a('v_rcp_f32 v43, v43'); round_bf16(a, 46, 47)
        for i in range(2):
            for k in range(4):
                e0, e1 = 16+8*i+2*k, 17+8*i+2*k
                a(f'v_sub_f32 v41, v{e0}, v46'); a(f'v_sub_f32 v42, v{e1}, v46')
                a('v_mul_f32 v41, v41, v43'); a('v_mul_f32 v42, v42, v43')
                a('v_cvt_pk_bf16_f32 v40, v41, v42'); a('v_lshlrev_b32 v41, 16, v40'); a('v_and_b32 v42, 0xffff0000, v40')
                a(f'v_fma_f32 v41, v41, v{TB+16+8*i+2*k}, v{TB+32+8*i+2*k}'); a(f'v_fma_f32 v42, v42, v{TB+16+8*i+2*k+1}, v{TB+32+8*i+2*k+1}')
                a(f'v_cvt_pk_bf16_f32 v{48+4*i+k}, v41, v42')
        a.vmem('buffer_store_dwordx4 v[48:51], v6, s[76:79], s82 offen sc1', 'st'); a.vmem('buffer_store_dwordx4 v[52:55], v6, s[76:79], s83 offen sc1', 'st')
        a('s_lshr_b32 s70, s2, 4'); a(f's_add_u32 s70, s70, {C_CH}'); a('s_lshl_b32 s70, s70, 8')
        self.signal([70], vm_allow=0); a.vm = []
        self.stamp()

    def phase_d(self):
        a = self.a
        LOFF = 209
        a.srd(20, 4, WS_H2, 2097152); a.srd(28, 4, WS_ACT, 64*112*1024)
        a(f's_add_u32 s70, s36, {C_CH}'); a('s_lshl_b32 s70, s70, 8')
        self.handoff(None, [('multi', 70, 16, C_WDP)], vm_allow=63)
        self.stamp()
        def x_load_ops(s):
            r = 4*(s % 16)
            return ([f's_add_u32 s38, s45, {(s//4)*4096}'],
                    f'buffer_load_dwordx4 v[{r}:{r+3}], v{LOFF}, s[20:23], s38 offen offset:{(s%4)*1024} {M["ldsc"]}')
        AB = 64
        self.shared_gemm(32, 8, 2, 4, self.d_w_dma_ops, x_load_ops, 16, 0, [128, 160, 192], [200, 204], lambda g: vr(AB+16*g, 16), pre_x=M['d_prex'], nv=3, npre=4, LA=M['la'])
        self.stamp()
        a(f's_mul_i32 s45, s39, {112*1024}'); a('s_lshl_b32 s38, s37, 13'); a('s_add_u32 s45, s45, s38')
        a(f'v_mov_b32 v210, {f2u(-LOG2E)}'); a('v_mov_b32 v212, 1.0'); a('v_mov_b32 v213, 1.0')
        a.nop(12)
        cnt = 0
        for mt in range(4):
            for t in range(2):
                b = 16*(cnt % 2); cnt += 1
                G = AB+16*mt+8*t; U = AB+16*(4+mt)+8*t; E = b; O_ = b+8
                for k in range(0, 8, 2): a(f'v_pk_mul_f32 v[{E+k}:{E+k+1}], v[{G+k}:{G+k+1}], v[210:211] op_sel_hi:[1,0]')
                for k in range(8): a(f'v_exp_f32 v{E+k}, v{E+k}')
                for k in range(0, 8, 2): a(f'v_pk_mul_f32 v[{U+k}:{U+k+1}], v[{G+k}:{G+k+1}], v[{U+k}:{U+k+1}]')
                for k in range(0, 8, 2): a(f'v_pk_add_f32 v[{E+k}:{E+k+1}], v[{E+k}:{E+k+1}], v[212:213]')
                for k in range(8): a(f'v_rcp_f32 v{E+k}, v{E+k}')
                a('s_nop 0')
                for k in range(0, 8, 2): a(f'v_pk_mul_f32 v[{U+k}:{U+k+1}], v[{U+k}:{U+k+1}], v[{E+k}:{E+k+1}]')
                for k in range(4): a(f'v_cvt_pk_bf16_f32 v{O_+k}, v{U+2*k}, v{U+2*k+1}')
                ks = 2*mt+t
                a(f's_add_u32 s38, s45, {(ks//4)*4096}')
                a.vmem(f'buffer_store_dwordx4 v[{O_}:{O_+3}], v{LOFF}, s[28:31], s38 offen offset:{(ks%4)*1024} sc1', 'ast')
        a(f's_add_u32 s74, s36, {C_CA}'); a('s_lshl_b32 s74, s74, 8')

    def e_setup(self):
        a = self.a; L = LANE
        NKT = 112; NK = 28
        e = self.e = dict(S_RB=36, S_CB=37, S_T=38, S_AO=39, S_B0=40, S_B1=41, S_M0=42, SRD_W=12, SRD_B=16, SRD_MP=20, SRD_X=24, SRD_O=28,
                          AF=[192, 200], AAD=208, VOA=210, VOB=211, LOFF=212, NK=NK, NKT=NKT)
        a(f's_load_dwordx2 s[6:7], s[0:1], {KA_WD}'); a(f's_load_dwordx2 s[8:9], s[0:1], {KA_OUT}')
        a('s_and_b32 s33, s2, 7'); a('s_lshr_b32 s34, s2, 3'); a('s_and_b32 s36, s34, 3'); a('s_lshl_b32 s33, s33, 2'); a('s_add_u32 s36, s36, s33'); a('s_lshr_b32 s37, s34, 2')
        a(f'v_lshrrev_b32 v2, 3, v{L}'); a('v_lshlrev_b32 v2, 10, v2'); a(f'v_bfe_u32 v3, v{L}, 4, 1'); a('v_lshlrev_b32 v3, 2, v3')
        a(f'v_and_b32 v4, 7, v{L}'); a('v_xor_b32 v3, v3, v4'); a('v_lshlrev_b32 v3, 4, v3')
        a('v_add_u32 v210, v2, v3'); a('v_add_u32 v211, 7168, v210'); a(f'v_lshlrev_b32 v212, 4, v{L}')
        a(f'v_lshrrev_b32 v2, 5, v{L}'); a(f'v_bfe_u32 v3, v{L}, 4, 1'); a(f'v_bfe_u32 v4, v{L}, 2, 2'); a(f'v_and_b32 v5, 3, v{L}')
        a('v_lshlrev_b32 v6, 2, v2'); a('v_add_u32 v6, v6, v4'); a('v_lshlrev_b32 v6, 7, v6'); a('v_and_b32 v7, 1, v5'); a('v_lshlrev_b32 v7, 3, v7'); a('v_add_u32 v6, v6, v7')
        a('v_lshrrev_b32 v7, 1, v5'); a('v_lshlrev_b32 v8, 1, v3'); a('v_add_u32 v7, v7, v8'); a('v_lshrrev_b32 v8, 1, v4')
        a(f's_lshl_b32 s42, s{S_W}, 15')
        for mt in range(2):
            a(f'v_xor_b32 v9, {mt}, v8'); a('v_lshlrev_b32 v9, 2, v9'); a('v_add_u32 v9, v9, v7'); a('v_lshlrev_b32 v9, 4, v9')
            a(f'v_add_u32 v{208+mt}, v6, v9'); a(f'v_add_u32 v{208+mt}, s42, v{208+mt}')
        if M['wdp']:
            a(f's_mul_i32 s39, s{S_W}, {NK*2048}'); a(f's_mul_i32 s38, s37, {NKT*2048}'); a('s_add_u32 s39, s39, s38')
        else:
            a(f's_mul_i32 s39, s{S_W}, {NK*16384}'); a('s_lshl_b32 s38, s37, 7'); a('s_add_u32 s39, s39, s38')
        a(f's_mul_i32 s40, s36, {2*NKT*1024}'); a(f's_mul_i32 s38, s{S_W}, {NK*1024}'); a('s_add_u32 s40, s40, s38'); a(f's_add_u32 s41, s40, {NKT*1024}')
        a('s_waitcnt lgkmcnt(0)')
        (a.srd(12, 4, WS_WDP, 1835008) if M['wdp'] else a.srd(12, 6, 0, NKT*16*1024)); a.srd(16, 4, WS_ACT, 64*NKT*1024); a.srd(20, 4, WS_M2, 65536); a.srd(24, 4, WS_X1, 2097152); a.srd(28, 8, 0, 2097152)
    def e_a_ops(self, k):
        slot = k % 16
        if M['wdp']:
            return [([f's_add_u32 m0, s42, {slot*2048}', f's_add_u32 s38, s39, {k*2048}'], f'buffer_load_dwordx4 v212, s[12:15], s38 offen sc1 lds'),
                    ([], f'buffer_load_dwordx4 v212, s[12:15], s38 offen offset:1024 sc1 lds')]
        return [([f's_add_u32 m0, s42, {slot*2048}', f's_add_u32 s38, s39, {k*16384}'], f'buffer_load_dwordx4 v210, s[12:15], s38 offen lds'),
                ([], f'buffer_load_dwordx4 v211, s[12:15], s38 offen offset:1024 lds')]
    def phase_e(self):
        a = self.a; L = LANE
        NK = 28; DEPTH = M['e_depth']; AF = [192, 200]; ACC = 128; LOFF = 212; GT = SCR
        def b_ops(k):
            r = 8*(k % 16)
            return [([f's_add_u32 s43, s40, {(k//4)*4096}'], f'buffer_load_dwordx4 v[{r}:{r+3}], v{LOFF}, s[16:19], s43 offen offset:{(k%4)*1024} {M["ldsc"]}'),
                    ([f's_add_u32 s43, s41, {(k//4)*4096}'], f'buffer_load_dwordx4 v[{r+4}:{r+7}], v{LOFF}, s[16:19], s43 offen offset:{(k%4)*1024} {M["ldsc"]}')]
        def emit(o, tag):
            for x in o[0]: a(x)
            a.vmem(o[1], tag)
        for k in range(DEPTH):
            for o in b_ops(k): emit(o, ('B', k))
        def aread_ops(k):
            slot = k % 16
            return [f'ds_read_b64_tr_b16 {vr(AF[k&1] + mt*4 + 2*u,2)}, v{208+mt} offset:{slot*2048 + u*1024}' for mt in range(2) for u in range(2)]
        a.wait_vm(('A', 0))
        for op in aread_ops(0): a.lds(op, ('Af', 0))
        NPRE = M['e_prea']
        for k in range(NK):
            a.wait_vm(('B', k)) if k == 0 else None
            if k+1 < NK: a.wait_vm([('B', k+1), ('A', k+1)])
            a.wait_lg(('Af', k))
            r = 8*(k % 16)
            ar_ = aread_ops(k+1) if k+1 < NK else []
            gs = []
            if NPRE == 16:
                if k >= 2 and k+14 < NK: gs += [(o, ('A', k+14)) for o in self.e_a_ops(k+14)]
            elif k+NPRE < NK: gs += [(o, ('A', k+NPRE)) for o in self.e_a_ops(k+NPRE)]
            if k+DEPTH < NK: gs += [(o, ('B', k+DEPTH)) for o in b_ops(k+DEPTH)]
            i = 0
            for mt in range(2):
                for nt in range(2):
                    d = vr(ACC+(mt*2+nt)*16, 16)
                    it = gs[i] if i < len(gs) else None
                    if it:
                        for x in it[0][0]: a(x)
                    a(mfma(d, vr(AF[k&1]+mt*4,4), vr(r+4*nt,4), '0' if k == 0 else d))
                    if it: a.vmem(it[0][1], it[1])
                    if i < 2:
                        for op in ar_[2*i:2*i+2]: a.lds(op, ('Af', k+1))
                    i += 1
        self.stamp()
        a(f's_lshr_b32 s46, s{S_W}, 1'); a(f's_and_b32 s47, s{S_W}, 1')
        a('s_lshl_b32 s48, s36, 1'); a('s_add_u32 s48, s48, s47')
        a('s_lshl_b32 s49, s37, 2'); a('s_lshl_b32 s50, s46, 1'); a('s_add_u32 s49, s49, s50')
        a('s_lshl_b32 s50, s48, 5'); a('s_add_u32 s50, s50, s49'); a('s_lshl_b32 s50, s50, 10')
        a(f'v_and_b32 v2, 31, v{L}'); a('v_lshlrev_b32 v2, 10, v2'); a(f'v_lshrrev_b32 v3, 5, v{L}'); a('v_lshlrev_b32 v4, 4, v3'); a('v_add_u32 v2, v2, v4')
        a('s_lshl_b32 s51, s48, 15'); a('s_lshl_b32 s33, s49, 5'); a('s_add_u32 s51, s51, s33')
        for t in range(2):
            a(f'buffer_load_dwordx4 v[{8+4*t}:{11+4*t}], v{LOFF}, s[24:27], s50 offen offset:{1024*t} sc1')
        a.nop(12)
        a('s_waitcnt lgkmcnt(0)'); a('s_barrier')
        a(f's_lshl_b32 s33, s{S_W}, 14'); a(f'v_add_u32 v5, s33, v{LOFF}')
        for tile in range(4):
            for r4 in range(4):
                r = ACC + tile*16 + r4*4
                a(f'ds_write_b128 v5, v[{r}:{r+3}] offset:{(tile*4+r4)*1024}')
        a('s_waitcnt lgkmcnt(0)'); a('s_barrier')
        a(f's_lshl_b32 s33, s{S_W}, 12'); a(f'v_add_u32 v5, s33, v{LOFF}')
        for wv in range(4):
            for r4 in range(4):
                r = 32 + wv*16 + r4*4
                a(f'ds_read_b128 v[{r}:{r+3}], v5 offset:{wv*16384 + r4*1024}')
        a('v_lshlrev_b32 v6, 4, v3'); a('s_lshl_b32 s33, s46, 7'); a('s_lshl_b32 s34, s37, 8'); a('s_add_u32 s33, s33, s34'); a(f's_add_u32 s33, s33, {T2B+6144}'); a('v_add_u32 v6, s33, v6')
        for g in range(4): a(f'ds_read_b128 v[{16+4*g}:{19+4*g}], v6 offset:{32*g}')
        a('s_waitcnt lgkmcnt(0)')
        for r in range(16):
            a(f'v_add_f32 v{32+r}, v{32+r}, v{48+r}'); a(f'v_add_f32 v{64+r}, v{64+r}, v{80+r}')
        for r in range(16): a(f'v_add_f32 v{32+r}, v{32+r}, v{64+r}')
        for r in range(0, 16, 2):
            a(f'v_cvt_pk_bf16_f32 v100, v{32+r}, v{33+r}'); a(f'v_lshlrev_b32 v{32+r}, 16, v100'); a(f'v_and_b32 v{33+r}, 0xffff0000, v100')
            a(f'v_mul_f32 v{32+r}, v{32+r}, v{16+r}'); a(f'v_mul_f32 v{33+r}, v{33+r}, v{17+r}')
            a(f'v_cvt_pk_bf16_f32 v100, v{32+r}, v{33+r}'); a(f'v_lshlrev_b32 v{32+r}, 16, v100'); a(f'v_and_b32 v{33+r}, 0xffff0000, v100')
        a('s_waitcnt vmcnt(0)')
        for k in range(8):
            a(f'v_lshlrev_b32 v101, 16, v{8+k}'); a(f'v_and_b32 v102, 0xffff0000, v{8+k}')
            a(f'v_add_f32 v{32+2*k}, v{32+2*k}, v101'); a(f'v_add_f32 v{33+2*k}, v{33+2*k}, v102')
            a(f'v_cvt_pk_bf16_f32 v{104+k}, v{32+2*k}, v{33+2*k}')
        a('s_nop 1')
        for gp in range(2):
            b = 104+4*gp
            a(f'v_permlane32_swap_b32 v{b}, v{b+2}'); a(f'v_permlane32_swap_b32 v{b+1}, v{b+3}')
        a('s_nop 1')
        for gp in range(2):
            b = 104+4*gp
            a(f'buffer_store_dwordx4 v[{b}:{b+3}], v2, s[28:31], s51 offen offset:{32*gp} {M["outsc"]}')

    def build(self):
        a = self.a
        a.raw(kernel_head(KN))
        a('s_cmp_ge_u32 s2, 256'); a('s_cbranch_scc1 K_END')
        self.front()
        self.attention()
        self.phase_c()
        self.stamp()
        a('s_cmp_ge_u32 s2, 224'); a('s_cbranch_scc1 NO_DS')
        self.d_setup()
        a.label('NO_DS')
        self.phase_r()
        a('s_cmp_lt_u32 s2, 224'); a('s_cbranch_scc1 DO_D')
        a(f's_mov_b32 s70, {C_WDP*256}')
        self.wait([(70, 8, 32)])
        a('s_branch E_PRE')
        a.label('DO_D')
        a(f'v_lshlrev_b32 v209, 4, v{LANE}')
        self.phase_d()
        a.label('E_PRE')
        self.e_setup()
        a('s_waitcnt lgkmcnt(0)'); a('s_barrier')
        def pre(track):
            for k in range(M['e_prea']):
                for o in self.e_a_ops(k):
                    for x in o[0]: a(x)
                    if track: a.vmem(o[1], ('A', k))
                    else: a(o[1])
        a('s_lshr_b32 s70, s36, 1'); a(f's_add_u32 s70, s70, {C_CA}'); a('s_lshl_b32 s70, s70, 8')
        a(f's_mov_b32 s71, {103*256}'); a('s_cmp_ge_u32 s2, 224'); a('s_cselect_b32 s74, s71, s74')
        self.stamp()
        self.handoff(74, [(70, 1, 14)], pre=pre, npre=2*M['e_prea'])
        self.stamp()
        self.phase_e()
        if M['stamp']:
            a('s_waitcnt vmcnt(0)'); self.stamp()
            a.srd(44, 4, WS_STAMP, 262144)
            a(f'v_lshlrev_b32 v0, 2, v{LANE}'); a('s_lshl_b32 s48, s2, 9'); a(f's_lshl_b32 s49, s{S_W}, 7'); a('s_add_u32 s48, s48, s49')
            a('s_mov_b64 exec, 0xffffffff')
            a(f'buffer_store_dword v{STV}, v0, s[44:47], s48 offen')
            a('s_add_u32 s48, s48, 131072'); a('buffer_store_dword v254, v0, s[44:47], s48 offen')
        a('s_waitcnt vmcnt(0)')
        a.label('K_END'); a('s_endpgm')
        for st, bk, p in self.stubs:
            a.label(st); a(f's_call_b64 s[{S_RET}:{S_RET+1}], RARE_{p}'); a(f's_branch {bk}')
        gen_rare(a, 0); gen_rare(a, 1)
        a.label('CODE_END')
        a('s_endpgm')
        return a.text()

def make(path, **kw):
    M.update({k: v for k, v in kw.items() if k in M or k.startswith('c_') or k == 'fine'})
    B.CFG.update({k: v for k, v in kw.items() if k in B.CFG})
    m = Mega(); text = m.build()
    head = open('adaLN_cond__mha_block_cached__swiglu_ffn__prompt.s.ref').read().split('; Override launch')[0]
    s = head + f'; @launch grid=(256,1,1) block=(256,1,1) lds={M["lds"]}\n.amdgcn_target "amdgcn-amd-amdhsa--gfx950"\n' + text
    s += '.section .rodata,"a"\n' + kernel_desc(KN, 512, 102, 256)
    open(path, 'w').write(s)
    return m.nst
if __name__ == '__main__':
    import sys
    kw = {}
    for kv in sys.argv[2:]:
        k, v = kv.split('=', 1); kw[k] = eval(v)
    print('stamps', make(sys.argv[1], **kw))
```

```python
from asmlib import *
import gen
from gen import f2u, round_bf16, xhalf_sum, wave_allreduce_add, LOG2E, KA_X, KA_K, KA_V, KA_WQ, KA_WO, KA_WG, KA_WU, KA_WD, KA_C, KA_WMOD, KA_OUT, KA_DBG, KA_WS
import gen_b as B
from gen_b import mfma, S, NEGM, P, T, KAD, VAD, VOK, VOV, LT, LR, LANE, TMP, OA, QF, KF, VF, k_read, v_read, gen_iter, gen_rare
from gen_b import S_W, S_H, S_QB, S_RT, S_KOFF, S_VOFF, S_M0, S_CNT, S_T, S_THR, S_RET, S_PF, S_PFM, SRD_K, SRD_V, SRD_WQ, SRD_XN, SRD_O, SRD_MP, VBASE, OFFSET, THR
KN = 'adaLN_cond__mha_block_cached__swiglu_ffn__prompt_kernel'

WS_M1 = 0x0; WS_XN = 0x10000; WS_M2 = 0x220000; WS_SYNC = 0x300000
WS_O = 0x400000; WS_X1 = 0x1400000; WS_H2 = 0x1600000; WS_ACT = 0x1800000; WS_STAMP = 0x2000000; WS_P = 0x3000000
C_FG, C_M2, C_CO, C_CP, C_CH, C_CA, C_FG2 = 0, 8, 16, 48, 64, 80, 96
C_WDP = 104
WS_WDP = 0x2800000
SCR = 131072
GSBASE = SCR + 24576
T2B = SCR + 8192
TID = 255; STV = 253
SRD_SY = 60
M = dict(stamp=False, codepf2=True, codepf=True, w_mode='early', wdp=True, outsc='', lds=147456, e_prea=16, kvpf=True, kv_from=0, ldsc='sc1', w_early=16, la=2, tr_cap=3, c_prew=8, c_nv=2, c_prex=12, d_prex=12, e_depth=10, pre_x=10, qp_slots=(0, 2, 4, 6), spin=200000)

def allreduce_multi(a, xs, ts):
    pad = max(0, 2 - (len(xs)-1))
    for r in (8, 4, 2, 1):
        if pad: a(f's_nop {pad-1}')
        for x in xs: a(f'v_add_f32_dpp v{x}, v{x}, v{x} row_ror:{r} row_mask:0xf bank_mask:0xf')
    for op in ('v_permlane16_swap_b32', 'v_permlane32_swap_b32'):
        for x, t in zip(xs, ts): a(f'v_mov_b32 v{t}, v{x}')
        if pad: a(f's_nop {pad}')
        for x, t in zip(xs, ts): a(f'{op} v{t}, v{x}')
        a('s_nop 1')
        for x, t in zip(xs, ts): a(f'v_add_f32 v{x}, v{x}, v{t}')

class Mega:
    def __init__(self):
        self.a = Asm(); self.nst = 0
    def stamp(self):
        a = self.a
        if M['stamp']:
            a('s_memrealtime s[72:73]'); a('s_memtime s[100:101]'); a('s_waitcnt lgkmcnt(0)')
            a(f'v_writelane_b32 v{STV}, s72, {self.nst}'); a(f'v_writelane_b32 v254, s100, {self.nst}'); self.nst += 1
    def signal(self, idx_list, vm_allow=0):
        a = self.a
        a(f's_waitcnt vmcnt({vm_allow})'); a('s_barrier')
        l = a.newlabel('SIG')
        a(f's_cmp_lg_u32 s{S_W}, 0'); a(f's_cbranch_scc1 {l}')
        a('s_mov_b64 exec, 1')
        a('v_mov_b32 v251, 1')
        for s_ in idx_list:
            a(f'v_mov_b32 v252, s{s_}')
            a(f'buffer_atomic_add v251, v252, s[{SRD_SY}:{SRD_SY+3}], 0 offen sc1')
        a('s_mov_b64 exec, -1')
        a.label(l)
    def wait(self, specs):
        a = self.a
        l = a.newlabel('WDONE')
        a(f's_cmp_lg_u32 s{S_W}, 0'); a(f's_cbranch_scc1 {l}')
        for so, nl, target in specs:
            lp = a.newlabel('POLL'); ok = a.newlabel('POK')
            a(f's_mov_b64 exec, {(1 << nl)-1}')
            a(f'v_and_b32 v252, 63, v{TID}'); a('v_lshlrev_b32 v252, 8, v252'); a(f'v_add_u32 v252, s{so}, v252')
            a('s_mov_b32 s68, 0')
            a.label(lp)
            a(f'buffer_load_dword v251, v252, s[{SRD_SY}:{SRD_SY+3}], 0 offen sc1')
            a('s_waitcnt vmcnt(0)')
            a(f'v_cmp_le_u32 vcc, {target}, v251')
            a('s_add_u32 s68, s68, 1')
            a(f's_cmp_eq_u64 vcc, exec'); a(f's_cbranch_scc1 {ok}')
            a(f's_cmp_gt_u32 s68, {M["spin"]}'); a(f's_cbranch_scc1 {ok}')
            a('s_sleep 1'); a(f's_branch {lp}')
            a.label(ok)
        a('s_mov_b64 exec, -1')
        a.label(l)
        a('s_barrier')

    def wait_front(self, so):
        a = self.a
        l = a.newlabel('WDONE'); lp = a.newlabel('POLL'); ok = a.newlabel('POK')
        a(f's_cmp_lg_u32 s{S_W}, 0'); a(f's_cbranch_scc1 {l}')
        a('s_mov_b64 exec, 0x1ff')
        a(f'v_and_b32 v252, 63, v{TID}'); a(f'v_add_u32 v252, {C_M2-1}, v252'); a('v_lshlrev_b32 v252, 8, v252')
        a(f'v_mov_b32 v251, s{so}'); a(f'v_writelane_b32 v252, s{so}, 0')
        a('s_mov_b32 s68, 0')
        a.label(lp)
        a(f'buffer_load_dword v251, v252, s[{SRD_SY}:{SRD_SY+3}], 0 offen sc1')
        a('s_waitcnt vmcnt(0)')
        a('v_cmp_le_u32 vcc, 32, v251')
        a('s_add_u32 s68, s68, 1')
        a('s_cmp_eq_u64 vcc, exec'); a(f's_cbranch_scc1 {ok}')
        a(f's_cmp_gt_u32 s68, {M["spin"]}'); a(f's_cbranch_scc1 {ok}')
        a('s_sleep 1'); a(f's_branch {lp}')
        a.label(ok)
        a('s_mov_b64 exec, -1')
        a.label(l)
        a('s_barrier')

    def handoff(self, sig, specs, pre=None, npre=0, skip_cond=None, defer=False, vm_allow=0, sig2=None):
        a = self.a
        a(f's_waitcnt vmcnt({vm_allow})'); a('s_barrier'); a.vm = []
        l = a.newlabel('HW'); lo = a.newlabel('HO')
        a(f's_cmp_lg_u32 s{S_W}, 0'); a(f's_cbranch_scc1 {lo}')
        if sig is not None:
            a('s_mov_b64 exec, 1'); a('v_mov_b32 v251, 1'); a(f'v_mov_b32 v252, s{sig}')
            a(f'buffer_atomic_add v251, v252, s[{SRD_SY}:{SRD_SY+3}], 0 offen sc1')
            if sig2:
                a(f'v_mov_b32 v252, s{sig2}'); a(f'buffer_atomic_add v251, v252, s[{SRD_SY}:{SRD_SY+3}], 0 offen sc1')
        self.stamp_w0()
        for sp in specs:
            lp = a.newlabel('POLL'); ok = a.newlabel('POK')
            if sp[0] == 'multi':
                a('s_mov_b64 exec, 0x1ff')
                a(f'v_and_b32 v252, 63, v{TID}'); a(f'v_add_u32 v252, {sp[3]-1}, v252'); a('v_lshlrev_b32 v252, 8, v252'); a(f'v_writelane_b32 v252, s{sp[1]}, 0')
                a('v_mov_b32 v250, 32'); a(f's_mov_b32 s69, {sp[2]}'); a('s_nop 0'); a('v_writelane_b32 v250, s69, 0')
                tgt = 'v250'
            else:
                a('s_mov_b64 exec, 1'); a(f'v_mov_b32 v252, s{sp[0]}'); tgt = None
            a('s_mov_b32 s68, 0')
            a.label(lp)
            a(f'buffer_load_dword v251, v252, s[{SRD_SY}:{SRD_SY+3}], 0 offen sc1')
            a('s_waitcnt vmcnt(0)')
            a(f'v_cmp_le_u32 vcc, {tgt if tgt else sp[2]}, v251')
            a('s_add_u32 s68, s68, 1')
            a('s_cmp_eq_u64 vcc, exec'); a(f's_cbranch_scc1 {ok}')
            a(f's_cmp_gt_u32 s68, {M["spin"]}'); a(f's_cbranch_scc1 {ok}')
            a('s_sleep 1'); a(f's_branch {lp}')
            a.label(ok)
        a('s_mov_b64 exec, -1')
        a(f's_branch {l}')
        a.label(lo)
        if pre:
            if skip_cond: a(skip_cond); a(f's_cbranch_scc1 {l}')
            pre(True)
        a.label(l)
        if specs: a('s_barrier')
        def late():
            if pre:
                l2 = a.newlabel('HL')
                a(f's_cmp_lg_u32 s{S_W}, 0'); a(f's_cbranch_scc1 {l2}')
                if skip_cond: a(skip_cond); a(f's_cbranch_scc1 {l2}')
                pre(False)
                a.label(l2)
        if defer: return late
        late()
    def stamp_w0(self):
        pass

    def wq_dma(self):
        a = self.a; L = LANE
        a.srd(SRD_WQ, 74, 0, 4194304)
        a(f's_cmp_eq_u32 s{S_W}, 0'); a('s_cbranch_scc1 F_NOW')
        a(f'v_lshrrev_b32 v70, 4, v{L}'); a(f'v_and_b32 v71, 15, v{L}'); a('v_lshlrev_b32 v72, 2, v70'); a('v_xor_b32 v72, v71, v72'); a('v_lshlrev_b32 v72, 4, v72')
        a('v_lshlrev_b32 v222, 13, v70'); a('v_add_u32 v222, v222, v72')
        a(f's_sub_u32 s89, s{S_W}, 1'); a('s_lshl_b32 s99, s89, 15'); a('s_lshl_b32 s89, s89, 10'); a(f's_lshl_b32 s{S_T}, s{S_H}, 8'); a(f's_add_u32 s99, s99, s{S_T}')
        for k in range(43):
            if k == 42:
                a(f's_cmp_eq_u32 s{S_W}, 3'); a('s_cbranch_scc1 F_NOW')
            a(f's_add_u32 m0, s89, {k*3072}'); a(f's_add_u32 s{S_T}, s99, {k*3*32768}')
            a(f'buffer_load_dwordx4 v222, s[{SRD_WQ}:{SRD_WQ+3}], s{S_T} offen lds')
        a.label('F_NOW')

    def front(self):
        a = self.a; L = LANE
        a(f's_load_dwordx2 s[4:5], s[0:1], {KA_WS}')
        a(f's_load_dwordx2 s[6:7], s[0:1], {KA_C}'); a(f's_load_dwordx2 s[8:9], s[0:1], {KA_WMOD}'); a(f's_load_dwordx2 s[10:11], s[0:1], {KA_X}')
        a(f's_load_dwordx2 s[74:75], s[0:1], {KA_WQ}'); a(f's_load_dwordx2 s[76:77], s[0:1], {KA_DBG}')
        a(f's_load_dwordx2 s[78:79], s[0:1], {KA_K}'); a(f's_load_dwordx2 s[90:91], s[0:1], {KA_V}')
        a(f'v_mov_b32 v{TID}, v0')
        a('v_lshrrev_b32 v1, 6, v0'); a(f'v_and_b32 v{LANE}, 63, v0'); a('s_nop 0'); a(f'v_readfirstlane_b32 s{S_W}, v1')
        if M['stamp']: a(f'v_mov_b32 v{STV}, 0'); a('v_mov_b32 v254, 0')
        a(f's_and_b32 s{S_H}, s2, 31'); a(f's_lshr_b32 s{S_QB}, s2, 5')
        a(f'v_lshlrev_b32 v3, 4, v{LANE}')
        a(f'v_and_b32 v4, 3, v{TID}'); a('v_lshlrev_b32 v4, 4, v4'); a(f'v_lshrrev_b32 v5, 2, v{TID}')
        a('v_mul_u32_u24 v6, 49152, v5'); a('v_add_u32 v6, v6, v4'); a('v_lshlrev_b32 v7, 4, v5')
        a(f's_and_b32 s82, s{S_H}, 7'); a('s_lshl_b32 s82, s82, 2'); a(f's_lshr_b32 s83, s{S_H}, 3'); a('s_add_u32 s82, s82, s83')
        a('s_and_b32 s83, s2, 7'); a('s_lshl_b32 s83, s83, 5'); a('s_lshr_b32 s85, s2, 3'); a('s_add_u32 s83, s83, s85')
        a('s_lshl_b32 s84, s82, 6')
        a(f'v_mul_u32_u24 v67, 6144, v{TID}'); a('s_lshl_b32 s87, s83, 4'); a('s_add_u32 s87, s87, 2048'); a(f'v_lshlrev_b32 v68, 1, v{TID}')
        a('s_lshl_b32 s80, s2, 3'); a(f's_lshl_b32 s81, s{S_W}, 1'); a('s_add_u32 s80, s80, s81'); a('s_lshl_b32 s80, s80, 10')
        if M['codepf']:
            a('s_getpc_b64 s[92:93]'); a.label('PC_REF')
            a('s_lshr_b32 s94, s2, 3'); a('s_lshl_b32 s94, s94, 2'); a(f's_add_u32 s94, s94, s{S_W}'); a('s_lshl_b32 s94, s94, 10')
            a('s_cmp_ge_u32 s94, CODE_END-PC_REF-1024'); a('s_cbranch_scc1 NO_CPF')
            a('v_add_u32 v164, s94, v3')
            a('global_load_dwordx4 v[168:171], v164, s[92:93]')
            a.label('NO_CPF')
        a('s_waitcnt lgkmcnt(0)')
        self.stamp()
        a.srd(12, 6, 0, 1024); a.srd(16, 8, 0, 3145728); a.srd(28, 10, 0, 2097152)
        a.vmem('buffer_load_dwordx4 v[16:19], v7, s[12:15], 0 offen', 'c1')
        for i in range(8):
            a(f's_add_u32 s86, s84, {i*6144}'); a.vmem(f'buffer_load_dwordx4 v[{20+4*i}:{23+4*i}], v6, s[16:19], s86 offen', 'w1')
        a.vmem('buffer_load_dwordx4 v[8:11], v3, s[28:31], s80 offen', 'x'); a.vmem('buffer_load_dwordx4 v[12:15], v3, s[28:31], s80 offen offset:1024', 'x')
        a.vmem('buffer_load_ushort v52, v68, s[12:15], 0 offen', 'c2'); a.vmem('buffer_load_ushort v53, v68, s[12:15], 0 offen offset:512', 'c2')
        for i in range(2):
            a(f's_add_u32 s86, s87, {i*256*6144}'); a.vmem(f'buffer_load_dwordx4 v[{56+4*i}:{59+4*i}], v67, s[16:19], s86 offen', 'w2')
        if M['w_mode'] == 'early': self.wq_dma(); a.fake = 43
        if M['kvpf']:
            a(f's_lshl_b32 s44, s{S_H}, 19'); a(f's_lshl_b32 s45, s{S_QB}, 13'); a(f's_lshl_b32 s46, s{S_W}, 11'); a('s_add_u32 s45, s45, s46')
            a.srd(20, 78, 's44', 524288)
            a.vmem('buffer_load_dwordx4 v[148:151], v3, s[20:23], s45 offen', 'pf'); a.vmem('buffer_load_dwordx4 v[152:155], v3, s[20:23], s45 offen offset:1024', 'pf')
            a(f's_mul_i32 s45, s{S_QB}, 6144'); a(f's_mul_i32 s46, s{S_W}, 1536'); a('s_add_u32 s45, s45, s46')
            a.srd(20, 90, 's44', 524288)
            a.vmem('buffer_load_dwordx4 v[156:159], v3, s[20:23], s45 offen', 'pf'); a.vmem('buffer_load_dwordx4 v[160:163], v3, s[20:23], s45 offen offset:512', 'pf')
        a.srd(SRD_SY, 4, WS_SYNC, 28672); a.srd(64, 76, 0, 256); a.srd(SRD_XN, 4, WS_XN, 2097152); a.srd(SRD_WQ, 74, 0, 4194304)
        a.srd(SRD_MP, 4, 0, WS_M2 + 8192)
        a('s_cmp_lg_u32 s2, 0'); a('s_cbranch_scc1 F_NOZ')
        for k in range(4): a(f'v_mov_b32 v{72+k}, 0')
        a(f'v_lshlrev_b32 v76, 4, v{TID}')
        for k in range(7):
            a(f's_mov_b32 s{S_T}, {k*4096}'); a(f'buffer_store_dwordx4 v[72:75], v76, s[{SRD_SY}:{SRD_SY+3}], s{S_T} offen sc1')
        a('s_waitcnt vmcnt(0)'); a('s_barrier')
        a(f's_cmp_lg_u32 s{S_W}, 0'); a('s_cbranch_scc1 F_NOZ')
        a('s_mov_b64 exec, 1'); a('v_mov_b32 v72, 1'); a('v_mov_b32 v73, 0'); a('buffer_store_dword v72, v73, s[64:67], 0 offen sc1'); a('s_mov_b64 exec, -1')
        a.label('F_NOZ')
        def silu(vals):
            for i, r in enumerate(vals): a(f'v_mul_f32 v{124+i}, {f2u(-LOG2E)}, v{r}')
            for i, r in enumerate(vals): a(f'v_exp_f32 v{124+i}, v{124+i}')
            a('s_nop 0')
            for i, r in enumerate(vals): a(f'v_add_f32 v{124+i}, 1.0, v{124+i}')
            for i, r in enumerate(vals): a(f'v_rcp_f32 v{124+i}, v{124+i}')
            a('s_nop 0')
            for i, r in enumerate(vals): a(f'v_mul_f32 v{r}, v{r}, v{124+i}')
            for r in vals: round_bf16(a, r, 132)
        a.wait_vm('c1')
        for k in range(4):
            a(f'v_lshlrev_b32 v{100+2*k}, 16, v{16+k}'); a(f'v_and_b32 v{101+2*k}, 0xffff0000, v{16+k}')
        silu(list(range(100, 108)))
        a.wait_vm('w1')
        for i in range(8):
            for j in range(4):
                w = 20+4*i+j
                a(f'v_lshlrev_b32 v108, 16, v{w}'); a(f'v_and_b32 v109, 0xffff0000, v{w}')
                if i == 0: a(f'v_mul_f32 v{110+2*j}, v108, v100'); a(f'v_mul_f32 v{111+2*j}, v109, v100')
                else: a(f'v_fmac_f32 v{110+2*j}, v108, v{100+i}'); a(f'v_fmac_f32 v{111+2*j}, v109, v{100+i}')
        a('v_lshlrev_b32 v108, 7, v5'); a('v_lshlrev_b32 v109, 1, v4'); a('v_add_u32 v108, v108, v109'); a(f'v_add_u32 v108, {SCR}, v108')
        for j in range(4): a(f'ds_write_b64 v108, v[{110+2*j}:{111+2*j}] offset:{8*j}')
        a('s_waitcnt lgkmcnt(0)'); a('s_barrier')
        a(f's_cmp_lg_u32 s{S_W}, 0'); a('s_cbranch_scc1 F_NOT0')
        a(f'v_and_b32 v70, 31, v{L}'); a('v_lshlrev_b32 v70, 2, v70'); a(f'v_lshrrev_b32 v71, 5, v{L}'); a('v_lshlrev_b32 v71, 12, v71'); a('v_add_u32 v71, v71, v70'); a(f'v_add_u32 v71, {SCR}, v71')
        for r in range(32): a(f'ds_read_b32 v{20+r}, v71 offset:{128*r}')
        a('s_waitcnt lgkmcnt(0)')
        n = 32
        while n > 1:
            for r in range(n//2): a(f'v_add_f32 v{20+r}, v{20+r}, v{20+r+n//2}')
            n //= 2
        xhalf_sum(a, 20, 21)
        a(f's_lshl_b32 s44, s{S_QB}, 12'); a('s_lshl_b32 s45, s82, 7'); a('s_add_u32 s44, s44, s45')
        a('s_mov_b64 exec, 0xffffffff'); a(f'buffer_store_dword v20, v70, s[{SRD_MP}:{SRD_MP+3}], s44 offen sc1')
        a('s_mov_b64 exec, 1'); a('v_mov_b32 v252, 0'); a('s_mov_b32 s68, 0')
        a.label('F_ZP')
        a('buffer_load_dword v251, v252, s[64:67], 0 offen sc1'); a('s_waitcnt vmcnt(0)'); a('v_readfirstlane_b32 s69, v251')
        a('s_add_u32 s68, s68, 1'); a('s_cmp_lg_u32 s69, 0'); a('s_cbranch_scc1 F_ZD')
        a(f's_cmp_gt_u32 s68, {M["spin"]}'); a('s_cbranch_scc1 F_ZD'); a('s_sleep 1'); a('s_branch F_ZP')
        a.label('F_ZD')
        a(f's_lshl_b32 s70, s{S_QB}, 8'); a('v_mov_b32 v251, 1'); a('v_mov_b32 v252, s70')
        a(f'buffer_atomic_add v251, v252, s[{SRD_SY}:{SRD_SY+3}], 0 offen sc1')
        a('s_mov_b64 exec, -1')
        a.label('F_NOT0')
        self.stamp()
        a.wait_vm('x')
        for r in range(2):
            src = 8+4*r; X = 100+8*r
            for k in range(4):
                a(f'v_lshlrev_b32 v{X+2*k}, 16, v{src+k}'); a(f'v_and_b32 v{X+2*k+1}, 0xffff0000, v{src+k}')
            m = 116+r
            a(f'v_add_f32 v{m}, v{X}, v{X+1}')
            for k in range(2, 8): a(f'v_add_f32 v{m}, v{m}, v{X+k}')
        allreduce_multi(a, [116, 117], [118, 119])
        for r in range(2):
            X = 100+8*r; m = 116+r; v = 120+r
            a(f'v_mul_f32 v{m}, {f2u(1/512)}, v{m}')
            a(f'v_sub_f32 v118, v{X}, v{m}'); a(f'v_mul_f32 v{v}, v118, v118')
            for k in range(1, 8):
                a(f'v_sub_f32 v118, v{X+k}, v{m}'); a(f'v_fmac_f32 v{v}, v118, v118')
        allreduce_multi(a, [120, 121], [118, 119])
        for r in range(2):
            X = 100+8*r; m = 116+r; v = 120+r
            a(f'v_mul_f32 v{v}, {f2u(1/512)}, v{v}')
            round_bf16(a, v, 118); a(f'v_add_f32 v{v}, {f2u(1e-5)}, v{v}'); round_bf16(a, v, 118)
            a(f'v_sqrt_f32 v{v}, v{v}'); a('s_nop 0'); round_bf16(a, v, 118)
            a(f'v_rcp_f32 v{v}, v{v}'); round_bf16(a, m, 118)
            for k in range(4):
                a(f'v_sub_f32 v118, v{X+2*k}, v{m}'); a(f'v_sub_f32 v119, v{X+2*k+1}, v{m}')
                a('v_cvt_pk_bf16_f32 v122, v118, v119'); a('v_lshlrev_b32 v118, 16, v122'); a('v_and_b32 v119, 0xffff0000, v122')
                a(f'v_mul_f32 v118, v118, v{v}'); a(f'v_mul_f32 v119, v119, v{v}')
                a('v_cvt_pk_bf16_f32 v122, v118, v119'); a(f'v_lshlrev_b32 v{X+2*k}, 16, v122'); a(f'v_and_b32 v{X+2*k+1}, 0xffff0000, v122')
        a.vm = []
        self.stamp()
        a.fake = 0; a.vm = []
        if M['w_mode'] == 'late': self.wq_dma()
        a(f's_lshl_b32 s70, s{S_QB}, 8')
        self.wait([(70, 1, 32)])
        self.stamp()
        a(f'v_lshlrev_b32 v70, 5, v{L}'); a(f's_lshl_b32 s44, s{S_QB}, 12')
        a.vmem(f'buffer_load_dwordx4 v[20:23], v70, s[{SRD_MP}:{SRD_MP+3}], s44 offen sc1', 'g'); a.vmem(f'buffer_load_dwordx4 v[24:27], v70, s[{SRD_MP}:{SRD_MP+3}], s44 offen offset:16 sc1', 'g')
        a.vmem(f'buffer_load_dwordx4 v[28:31], v70, s[{SRD_MP}:{SRD_MP+3}], s44 offen offset:2048 sc1', 'g'); a.vmem(f'buffer_load_dwordx4 v[32:35], v70, s[{SRD_MP}:{SRD_MP+3}], s44 offen offset:2064 sc1', 'g')
        a.wait_vm('g')
        cs = 128**-0.5 * LOG2E
        for k in range(8):
            round_bf16(a, 20+k, 36); round_bf16(a, 28+k, 36)
            a(f'v_add_f32 v{28+k}, 1.0, v{28+k}'); round_bf16(a, 28+k, 36)
        for r in range(2):
            X = 100+8*r
            for k in range(8): a(f'v_fma_f32 v{X+k}, v{X+k}, v{28+k}, v{20+k}')
            for k in range(4): a(f'v_cvt_pk_bf16_f32 v{8+4*r+k}, v{X+2*k}, v{X+2*k+1}')
        a(f'v_lshlrev_b32 v118, 7, v{L}'); a(f's_lshl_b32 s44, s{S_W}, 5'); a(f's_add_u32 s44, s44, {SCR+8192}'); a('v_add_u32 v118, s44, v118')
        a('ds_write_b128 v118, v[8:11]'); a('ds_write_b128 v118, v[12:15] offset:16')
        a('s_waitcnt lgkmcnt(0)'); a('s_barrier')
        a(f'v_lshlrev_b32 v118, 4, v{TID}'); a(f'v_add_u32 v119, {SCR+8192}, v118')
        a('ds_read_b128 v[8:11], v119'); a('ds_read_b128 v[12:15], v119 offset:4096')
        a(f'v_lshrrev_b32 v119, 3, v{TID}'); a('v_lshlrev_b32 v119, 9, v119'); a(f'v_and_b32 v120, 7, v{TID}'); a('v_lshlrev_b32 v120, 4, v120'); a('v_add_u32 v119, v119, v120')
        a('s_lshr_b32 s44, s2, 2'); a('s_lshl_b32 s44, s44, 15'); a('s_and_b32 s45, s2, 3'); a('s_lshl_b32 s45, s45, 7'); a('s_add_u32 s44, s44, s45'); a('s_add_u32 s45, s44, 16384')
        a('s_waitcnt lgkmcnt(0)')
        a(f'buffer_store_dwordx4 v[8:11], v119, s[{SRD_XN}:{SRD_XN+3}], s44 offen sc1'); a(f'buffer_store_dwordx4 v[12:15], v119, s[{SRD_XN}:{SRD_XN+3}], s45 offen sc1')
        a(f's_add_u32 s70, s{S_QB}, {C_FG2}'); a('s_lshl_b32 s70, s70, 8')
        self.signal([70], vm_allow=0); a.vm = []
        a('v_lshlrev_b32 v134, 16, v52'); a('v_lshlrev_b32 v135, 16, v53')
        silu([134, 135])
        for i in range(2):
            for j in range(4):
                w = 56+4*i+j
                a(f'v_lshlrev_b32 v136, 16, v{w}'); a(f'v_and_b32 v137, 0xffff0000, v{w}')
                if i == 0: a(f'v_mul_f32 v{140+2*j}, v136, v134'); a(f'v_mul_f32 v{141+2*j}, v137, v134')
                else: a(f'v_fmac_f32 v{140+2*j}, v136, v135'); a(f'v_fmac_f32 v{141+2*j}, v137, v135')
        a('s_nop 1'); allreduce_multi(a, list(range(140, 148)), list(range(124, 132)))
        a(f's_lshl_b32 s44, s{S_W}, 5'); a(f's_add_u32 s44, s44, {SCR+4096}'); a('v_mov_b32 v136, s44')
        a('s_mov_b64 exec, 1'); a('ds_write_b128 v136, v[140:143]'); a('ds_write_b128 v136, v[144:147] offset:16'); a('s_mov_b64 exec, -1')
        a('s_waitcnt lgkmcnt(0)'); a('s_barrier')
        a(f's_cmp_lg_u32 s{S_W}, 1'); a('s_cbranch_scc1 F_NOT1')
        a(f'v_and_b32 v70, 7, v{L}'); a('v_lshlrev_b32 v70, 2, v70'); a(f'v_add_u32 v71, {SCR+4096}, v70')
        for w in range(4): a(f'ds_read_b32 v{20+w}, v71 offset:{32*w}')
        a('s_waitcnt lgkmcnt(0)')
        a('v_add_f32 v20, v20, v21'); a('v_add_f32 v22, v22, v23'); a('v_add_f32 v20, v20, v22')
        a('s_lshl_b32 s44, s83, 5'); a(f's_add_u32 s44, s44, {WS_M2}')
        a('s_mov_b64 exec, 0xff'); a(f'buffer_store_dword v20, v70, s[{SRD_MP}:{SRD_MP+3}], s44 offen sc1')
        a('s_mov_b64 exec, 1'); a('v_mov_b32 v252, 0'); a('s_mov_b32 s68, 0')
        a.label('F_ZP1')
        a('buffer_load_dword v251, v252, s[64:67], 0 offen sc1'); a('s_waitcnt vmcnt(0)'); a('v_readfirstlane_b32 s69, v251')
        a('s_add_u32 s68, s68, 1'); a('s_cmp_lg_u32 s69, 0'); a('s_cbranch_scc1 F_ZD1')
        a(f's_cmp_gt_u32 s68, {M["spin"]}'); a('s_cbranch_scc1 F_ZD1'); a('s_sleep 1'); a('s_branch F_ZP1')
        a.label('F_ZD1')
        a('s_and_b32 s71, s2, 7'); a(f's_add_u32 s71, s71, {C_M2}'); a('s_lshl_b32 s71, s71, 8'); a('v_mov_b32 v251, 1'); a('v_mov_b32 v252, s71')
        a(f'buffer_atomic_add v251, v252, s[{SRD_SY}:{SRD_SY+3}], 0 offen sc1')
        a('s_mov_b64 exec, -1')
        a.label('F_NOT1')
        self.stamp()

    def attention(self):
        a = self.a; L = LANE
        a(f's_load_dwordx2 s[6:7], s[0:1], {KA_K}'); a(f's_load_dwordx2 s[8:9], s[0:1], {KA_V}')
        a(f's_load_dwordx2 s[56:57], s[0:1], {KA_WO}'); a(f's_load_dwordx2 s[90:91], s[0:1], {KA_WG}'); a(f's_load_dwordx2 s[92:93], s[0:1], {KA_WU}'); a(f's_load_dwordx2 s[94:95], s[0:1], {KA_WD}')
        a(f's_lshl_b32 s{S_RT}, s{S_QB}, 3'); a(f's_lshl_b32 s{S_T}, s{S_W}, 1'); a(f's_add_u32 s{S_RT}, s{S_RT}, s{S_T}')
        a(f's_lshl_b32 s{S_M0}, s{S_W}, 12'); a(f's_mov_b32 s{S_THR}, {f2u(THR)}')
        a('s_mov_b32 s58, 4194304'); a('s_mov_b32 s59, 0x00020000')
        a('s_mov_b32 s96, 1835008'); a('s_mov_b32 s97, 1835008'); a('s_mov_b32 s98, 1835008')
        a(f's_lshl_b32 s{S_PF}, s2, 12'); a(f's_lshl_b32 s{S_PFM}, s{S_W}, 10'); a(f's_add_u32 s{S_PF}, s{S_PF}, s{S_PFM}'); a(f's_add_u32 s{S_PFM}, s{S_PFM}, {SCR}')
        vg, vhf, vch, vrr, vc, vt, vu = 200, 201, 202, 203, 204, 205, 206
        a(f'v_lshrrev_b32 v{vg}, 4, v{L}'); a(f'v_lshrrev_b32 v{vhf}, 5, v{L}'); a(f'v_and_b32 v{vch}, 1, v{vg}'); a(f'v_bfe_u32 v{vrr}, v{L}, 2, 2'); a(f'v_and_b32 v{vc}, 3, v{L}')
        a(f'v_and_b32 v{vt}, 15, v{L}'); a(f'v_lshlrev_b32 v{vu}, 2, v{vg}'); a(f'v_xor_b32 v{vu}, v{vt}, v{vu}'); a(f'v_lshlrev_b32 v{vu}, 4, v{vu}')
        a(f'v_lshlrev_b32 v{VOV}, 8, v{vg}'); a(f'v_add_u32 v{VOV}, v{VOV}, v{vu}')
        for i in range(4):
            a(f'v_add_u32 v{vu}, {4*i}, v{vg}'); a(f'v_xor_b32 v{vu}, v{vt}, v{vu}'); a(f'v_lshlrev_b32 v{vu}, 4, v{vu}')
            a(f'v_lshlrev_b32 v{VOK+i}, 8, v{vg}'); a(f'v_add_u32 v{VOK+i}, v{VOK+i}, v{vu}')
        a(f'v_and_b32 v{vt}, 31, v{L}')
        for s in range(8):
            a(f'v_add_u32 v{vu}, {2*s}, v{vhf}'); a(f'v_and_b32 v{KAD+s}, 15, v{vt}'); a(f'v_xor_b32 v{vu}, v{vu}, v{KAD+s}'); a(f'v_lshlrev_b32 v{vu}, 4, v{vu}')
            a(f'v_lshlrev_b32 v{KAD+s}, 8, v{vt}'); a(f'v_add_u32 v{KAD+s}, v{KAD+s}, v{vu}')
        WAD = 246
        for dt in range(4):
            a(f'v_xor_b32 v{vt}, {dt}, v{vrr}'); a(f'v_lshlrev_b32 v{vt}, 2, v{vt}'); a(f'v_lshlrev_b32 v{vu}, 1, v{vch}'); a(f'v_add_u32 v{vt}, v{vt}, v{vu}')
            a(f'v_lshrrev_b32 v{vu}, 1, v{vc}'); a(f'v_add_u32 v{vu}, v{vt}, v{vu}'); a(f'v_lshlrev_b32 v{vu}, 4, v{vu}')
            a(f'v_and_b32 v207, 1, v{vc}'); a('v_lshlrev_b32 v207, 3, v207'); a(f'v_add_u32 v{vu}, v{vu}, v207')
            a(f'v_lshlrev_b32 v207, 2, v{vhf}'); a(f'v_add_u32 v207, v207, v{vrr}'); a('v_lshlrev_b32 v207, 8, v207'); a(f'v_add_u32 v{vu}, v{vu}, v207')
            a(f'v_add_u32 v{VAD+dt}, {VBASE}, v{vu}')
            a(f'v_and_b32 v{vu}, 1, v{vc}'); a(f'v_add_u32 v{vu}, v{vt}, v{vu}'); a(f'v_lshlrev_b32 v{vu}, 4, v{vu}')
            a(f'v_lshrrev_b32 v207, 1, v{vc}'); a('v_lshlrev_b32 v207, 3, v207'); a(f'v_add_u32 v{vu}, v{vu}, v207')
            a(f'v_lshlrev_b32 v207, 3, v{vhf}'); a(f'v_add_u32 v207, v207, v{vrr}'); a('v_lshlrev_b32 v207, 8, v207'); a(f'v_add_u32 v{WAD+dt}, v{vu}, v207')
        XOFF = 221
        a(f'v_lshlrev_b32 v{XOFF}, 4, v{L}')
        a('s_waitcnt lgkmcnt(0)')
        a(f's_lshl_b32 s{S_T}, s{S_H}, 19')
        a.srd(SRD_K, 6, f's{S_T}', 524288); a.srd(SRD_V, 8, f's{S_T}', 524288); a.srd(SRD_O, 4, WS_O, 16777216)
        a(f's_add_u32 s70, s{S_QB}, {C_FG2}'); a('s_lshl_b32 s70, s70, 8')
        self.wait([(70, 1, 32)])
        self.stamp()
        S_XO = 48
        a(f's_lshl_b32 s{S_XO}, s{S_RT}, 15'); a(f's_add_u32 s{S_XO+1}, s{S_XO}, 32768')
        SLOTS = [8*i for i in range(8)] + [192, 200, 208]
        RING = len(SLOTS)
        def x_ops(s, q):
            r = SLOTS[s % RING] + 4*q
            return ([f's_add_u32 s{S_T}, s{S_XO+q}, {(s//4)*4096}'],
                    f'buffer_load_dwordx4 v[{r}:{r+3}], v{XOFF}, s[{SRD_XN}:{SRD_XN+3}], s{S_T} offen offset:{(s%4)*1024} {M["ldsc"]}')
        def kv_ops(which, tile, i):
            base = (0 if which == 'K' else VBASE) + (tile & 3)*16384
            srd = SRD_K if which == 'K' else SRD_V
            vo = VOK+i if which == 'K' else VOV
            return ([f's_add_u32 m0, s{S_M0}, {base}', f's_add_u32 s{S_T}, s{S_M0}, {tile*16384}'],
                    f'buffer_load_dwordx4 v{vo}, s[{srd}:{srd+3}], s{S_T} offen offset:{1024*i} lds')
        def emit_item(ops, tag):
            for x in ops[0]: a(x)
            a.vmem(ops[1], tag)
        PRE_X = min(M['pre_x'], RING)
        for s in range(PRE_X):
            for q in range(2): emit_item(x_ops(s, q), ('X', s))
        LA = 2; WF = [192, 208, 224]
        def QA(q, dt): return 64 + (q*4+dt)*16
        def w_read_ops(s):
            return [f'ds_read_b64_tr_b16 {ar(WF[s % 3] + dt*4 + 2*u,2)}, v{WAD+dt} offset:{(s%16)*4096 + 1024*u}' for dt in range(4) for u in range(2)]
        for s0 in range(LA):
            for op in w_read_ops(s0): a.lds(op, ('Wf', s0))
        BARS = [7, 15, 23, 31]
        Q = []
        for s in range(PRE_X, 32):
            for q in range(2): Q.append((s-1, s-RING+1, ('X', s), x_ops(s, q)))
        for which, tile, av in (('K',0,7),('K',1,7),('K',2,15),('K',3,15),('V',0,23),('V',1,23),('V',2,31)):
            for i in range(4): Q.append((100, max(av, M['kv_from']), (which, tile), kv_ops(which, tile, i)))
        Q.sort(key=lambda x: x[0])
        def pop_q(s):
            for i, it in enumerate(Q):
                if it[1] <= s: return Q.pop(i)
            return None
        bumped = False
        for s in range(32):
            assert not any(it[2] == ('X', s) for it in Q), s
            if s in BARS: a.wait_vm(('X', s)); a.wait_lg0(); a('s_barrier')
            else: a.wait_vm(('X', s)); a.wait_lg(('Wf', s))
            if s+LA == 16:
                for dt in range(4): a(f'v_add_u32 v{WAD+dt}, 65536, v{WAD+dt}')
            wr = w_read_ops(s+LA) if s+LA < 32 else []
            x = SLOTS[s % RING]
            mfs = [mfma(vr(QA(q,dt),16), ar(WF[s % 3]+dt*4,4), vr(x+4*q,4), '0' if s == 0 else vr(QA(q,dt),16)) for dt in range(4) for q in range(2)]
            ri = 0
            for g in range(8):
                it = pop_q(s) if g in M['qp_slots'] else None
                if it:
                    for t_ in it[3][0]: a(t_)
                a(mfs[g])
                if it: a.vmem(it[3][1], it[2])
                else:
                    for op in wr[ri:ri+2]: a.lds(op, ('Wf', s+LA))
                    ri += 2
            for op in wr[ri:]: a.lds(op, ('Wf', s+LA))
        while Q:
            it = Q.pop(0); emit_item(it[3], it[2])
        a(f's_add_u32 s{S_KOFF}, s{S_M0}, {4*16384}'); a(f's_add_u32 s{S_VOFF}, s{S_M0}, {3*16384}')
        self.stamp()
        a(f'v_mov_b32 v250, {f2u(128**-0.5 * LOG2E)}')
        a.nop(14)
        for q in range(2):
            for dt in range(4):
                for k in range(0, 16, 2):
                    r = QA(q,dt)+k
                    a(f'v_pk_mul_f32 v[{r}:{r+1}], v[{r}:{r+1}], v[250:251] op_sel_hi:[1,0]')
                for t in range(2):
                    b = 4*((2*dt+t) % 4)
                    for k in range(4): a(f'v_cvt_pk_bf16_f32 v{b+k}, v{QA(q,dt)+8*t+2*k}, v{QA(q,dt)+8*t+2*k+1}')
                    for k in range(4): a(f'v_accvgpr_write_b32 a{QF(q,2*dt+t)+k}, v{b+k}')
        a(f'v_mov_b32 v{LR[0]}, 0'); a(f'v_mov_b32 v{LR[1]}, 0')
        a.wait_vm(('V', 1)); a('s_barrier')
        for s in range(8): a(k_read(s, 0))
        a('s_waitcnt lgkmcnt(0)')
        for s in range(8):
            for q in range(2):
                d = vr(S[0]+q*16, 16); a(mfma(d, ar(KF(s),4), ar(QF(q,s),4), '0' if s == 0 else d))
        for s in range(8): a(k_read(s, 1))
        a.nop(16)
        m = TMP+1; t2 = TMP+2
        for q in range(2):
            sc = S[0]+q*16
            a(f'v_max3_f32 v{m}, v{sc}, v{sc+1}, v{sc+2}')
            for r in range(3, 15, 2): a(f'v_max3_f32 v{m}, v{m}, v{sc+r}, v{sc+r+1}')
            a(f'v_max_f32 v{m}, v{m}, v{sc+15}')
            a(f'v_mov_b32 v{t2}, v{m}'); a('s_nop 1'); a(f'v_permlane32_swap_b32 v{t2}, v{m}'); a('s_nop 1'); a(f'v_max_f32 v{m}, v{m}, v{t2}')
            a(f'v_add_f32 v{m}, {f2u(OFFSET)}, v{m}')
            for r in range(16):
                a(f'v_sub_f32 v{NEGM+q*16+r}, 0, v{m}'); a(f'v_sub_f32 v{sc+r}, v{sc+r}, v{m}')
        self.stubs = stubs = []
        self.stamp()
        gen_iter(a, 0, do_pv=False, do_vread=False, barrier=63, dmaK=4, lsum_prev=False, stubs=stubs)
        gen_iter(a, 1, dmaV=3, stubs=stubs, pf=True, pv_zero=True)
        if M.get('fine'): self.stamp()
        a(f's_mov_b32 s{S_CNT}, 7')
        a.raw('.p2align 6')
        a.label('KB_LOOP0')
        for j in range(2, 10):
            T_ = j//2
            if j % 2 == 0: gen_iter(a, j, barrier=18, dmaK=T_+4, stubs=stubs)
            else: gen_iter(a, j, dmaV=T_+3, stubs=stubs, pf=True)
            if j == 8:
                a(f's_sub_u32 s{S_PF}, s{S_PF}, 0x400000')
                a('s_mov_b32 s56, s90'); a('s_mov_b32 s57, s91'); a('s_mov_b32 s90, s92'); a('s_mov_b32 s91, s93'); a('s_mov_b32 s92, s94'); a('s_mov_b32 s93, s95')
                a('s_mov_b32 s58, s96'); a('s_mov_b32 s96, s97'); a('s_mov_b32 s97, s98'); a('s_mov_b32 s98, 0')
        a(f's_sub_u32 s{S_CNT}, s{S_CNT}, 1'); a(f's_cmp_lg_u32 s{S_CNT}, 0'); a('s_cbranch_scc1 KB_LOOP0')
        if M.get('fine'): self.stamp()
        gen_iter(a, 58, barrier=9, stubs=stubs)
        if M['codepf2']:
            a('s_getpc_b64 s[92:93]'); a.label('PC_REF2')
            a('s_lshr_b32 s94, s2, 3'); a('s_lshl_b32 s94, s94, 2'); a(f's_add_u32 s94, s94, s{S_W}'); a('s_lshl_b32 s94, s94, 10')
            a('s_cmp_ge_u32 s94, CODE_END-PC_REF2-1024'); a('s_cbranch_scc1 NO_CPF2')
            a('v_add_u32 v140, s94, v221')
            a('global_load_dwordx4 v[144:147], v140, s[92:93]')
            a.label('NO_CPF2')
        gen_iter(a, 59, stubs=stubs)
        gen_iter(a, 60, barrier=0, stubs=stubs); gen_iter(a, 61, stubs=stubs); gen_iter(a, 62, do_kread=False, stubs=stubs)
        gen_iter(a, 63, do_qk=False, do_kread=False, stubs=stubs)
        a(f'v_add_f32 v{LR[0]}, v{LR[0]}, v{LT[0]}'); a(f'v_add_f32 v{LR[1]}, v{LR[1]}, v{LT[1]}')
        for t in range(2):
            for dt in range(4):
                for u in range(2): a(v_read(t, dt, u, 63))
        a('s_waitcnt lgkmcnt(0)')
        for t in range(2):
            for dt in range(4):
                for q in range(2):
                    d = ar(OA(q,dt),16); a(mfma(d, ar(VF(t,dt),4), vr(P[1]+q*8+t*4,4), d))
        a('s_barrier')
        a.vm = []; a.lg = []
        self.stamp()
        for q in range(2):
            xhalf_sum(a, LR[q], TMP); a(f'v_rcp_f32 v{LR[q]}, v{LR[q]}')
        a.nop(16)
        S_WS = 45
        a(f's_lshl_b32 s{S_T}, s{S_RT}, 18'); a(f's_lshl_b32 s{S_WS}, s{S_H}, 13'); a(f's_add_u32 s{S_XO}, s{S_T}, s{S_WS}'); a(f's_add_u32 s{S_XO+1}, s{S_XO}, {256*1024}')
        cnt = 0
        for q in range(2):
            a(f'v_mov_b32 v250, v{LR[q]}')
            for dt in range(4):
                for t in range(2):
                    b = 16*(cnt % 4); cnt += 1
                    for k in range(8): a(f'v_accvgpr_read_b32 v{b+k}, a{OA(q,dt)+8*t+k}')
                    for k in range(0, 8, 2): a(f'v_pk_mul_f32 v[{b+k}:{b+k+1}], v[{b+k}:{b+k+1}], v[250:251] op_sel_hi:[1,0]')
                    for k in range(4): a(f'v_cvt_pk_bf16_f32 v{b+8+k}, v{b+2*k}, v{b+2*k+1}')
                    ks = 2*dt+t
                    a(f's_add_u32 s{S_T}, s{S_XO+q}, {(ks//4)*4096}')
                    a.vmem(f'buffer_store_dwordx4 v[{b+8}:{b+11}], v{XOFF}, s[{SRD_O}:{SRD_O+3}], s{S_T} offen offset:{(ks%4)*1024} sc1', 'ost')

    def lane_consts_vstyle(self, WAD, WOFF, rowstride, tmp):
        a = self.a; L = LANE
        vg, vhf, vch, vrr, vc, vt, vu, vw = range(tmp, tmp+8)
        a(f'v_lshrrev_b32 v{vg}, 4, v{L}'); a(f'v_lshrrev_b32 v{vhf}, 5, v{L}'); a(f'v_and_b32 v{vch}, 1, v{vg}')
        a(f'v_bfe_u32 v{vrr}, v{L}, 2, 2'); a(f'v_and_b32 v{vc}, 3, v{L}')
        a(f'v_and_b32 v{vt}, 15, v{L}'); a(f'v_lshlrev_b32 v{vu}, 2, v{vg}'); a(f'v_xor_b32 v{vu}, v{vt}, v{vu}'); a(f'v_lshlrev_b32 v{vu}, 4, v{vu}')
        a(f'v_mul_u32_u24 v{WOFF}, {rowstride}, v{vg}'); a(f'v_add_u32 v{WOFF}, v{WOFF}, v{vu}')
        for dt in range(4):
            a(f'v_xor_b32 v{vt}, {dt}, v{vrr}'); a(f'v_lshlrev_b32 v{vt}, 2, v{vt}'); a(f'v_lshlrev_b32 v{vu}, 1, v{vch}'); a(f'v_add_u32 v{vt}, v{vt}, v{vu}')
            a(f'v_lshrrev_b32 v{vu}, 1, v{vc}'); a(f'v_add_u32 v{vu}, v{vt}, v{vu}'); a(f'v_lshlrev_b32 v{vu}, 4, v{vu}')
            a(f'v_and_b32 v{vw}, 1, v{vc}'); a(f'v_lshlrev_b32 v{vw}, 3, v{vw}'); a(f'v_add_u32 v{vu}, v{vu}, v{vw}')
            a(f'v_lshlrev_b32 v{vw}, 2, v{vhf}'); a(f'v_add_u32 v{vw}, v{vw}, v{vrr}'); a(f'v_lshlrev_b32 v{vw}, 8, v{vw}')
            a(f'v_add_u32 v{WAD[0]+dt}, v{vu}, v{vw}'); a(f'v_add_u32 v{WAD[1]+dt}, 65536, v{WAD[0]+dt}')

    def shared_gemm(self, NK, NM, nmat, CH, w_dma_ops, x_load_ops, XRING, XR, WF, WAD, ACC, pre_x, nv, npre, LA=2):
        a = self.a
        chunk_bytes = nmat*CH*4096; NSLOT = 131072 // chunk_bytes; NCH = NK // CH
        NB = LA+1
        def emit(ops, tag):
            for x in ops[0]: a(x)
            a.vmem(ops[1], tag)
        for s in range(pre_x): emit(x_load_ops(s), ('X', s))
        a.wait_vm(('W', 0)); a('s_barrier')
        Q = []
        for c in range(npre, NCH):
            av = -1 if c < NSLOT else (c-NSLOT+1)*CH - LA
            for o in w_dma_ops(c): Q.append((c*CH-LA-2*CH, av, ('W', c), o))
        for s in range(pre_x, NK): Q.append((s-0.5-4, s-XRING+1, ('X', s), x_load_ops(s)))
        Q.sort(key=lambda x: x[0])
        def pop_q(s):
            for i, it in enumerate(Q):
                if it[1] <= s: return Q.pop(i)
            return None
        def w_read_ops(s):
            ops = []; c = s//CH; slot = c % NSLOT
            for gu in range(nmat):
                for dt in range(4):
                    for u in range(2):
                        off = slot*chunk_bytes + gu*CH*4096 + (s % CH)*4096 + u*2048
                        ops.append(f'ds_read_b64_tr_b16 {ar(WF[s % NB] + (gu*4+dt)*4 + 2*u,2)}, v{WAD[off>>16]+dt} offset:{off & 65535}')
            return ops
        half = NM
        for s0 in range(LA):
            for i, op in enumerate(w_read_ops(s0)): a.lds(op, ('Wf', s0, i//half))
        for s in range(NK):
            bar = ((s+LA) % CH == 0 and s+LA < NK)
            assert not any(it[2] == ('X', s) for it in Q), s
            if bar:
                c = (s+LA)//CH
                assert not any(it[2] == ('W', c) for it in Q), (s, c)
                a.wait_vm([('W', c), ('X', s)]); a.wait_lg0(); a('s_barrier')
            else:
                a.wait_vm(('X', s)); a.wait_lg(('Wf', s, 0))
            wr = w_read_ops(s+LA) if s+LA < NK else []
            x = XR + 4*(s % XRING)
            items = []
            for _ in range(nv):
                it = pop_q(s)
                if it: items.append(it)
            vg = list(range(0, NM, max(1, NM//max(1, nv))))[:len(items)] if items else []
            vg = [NM-1-g for g in vg]
            free = [g for g in range(NM) if g not in vg]
            nper = {g: 0 for g in range(NM)}
            rem = len(wr)
            cap = M['tr_cap']
            for g in free:
                k = min(cap, rem); nper[g] = k; rem -= k
            gi = 0; sv = sorted(vg) + free
            while rem:
                nper[sv[gi % len(sv)]] += 1; rem -= 1; gi += 1
            ri = 0; vi = 0
            for g in range(NM):
                d = ACC(g)
                if g == NM//2 and not bar: a.wait_lg(('Wf', s, 1))
                it = None
                if g in vg:
                    it = items[vi]; vi += 1
                    for t in it[3][0]: a(t)
                a(mfma(d, ar(WF[s % NB]+g*4,4), vr(x,4), '0' if s == 0 else d))
                if it: a.vmem(it[3][1], it[2])
                for _ in range(nper[g]):
                    a.lds(wr[ri], ('Wf', s+LA, ri//half)); ri += 1
        assert not Q, Q

    def mod2_tables(self):
        a = self.a
        a.srd(64, 4, WS_M2, 65536)
        a(f's_mov_b32 s71, {C_M2*256}')
        self.wait([(71, 8, 32)])
        a(f'v_lshlrev_b32 v136, 3, v{TID}'); a('v_add_u32 v137, 4096, v136')
        B0 = 64
        for e in range(8):
            a(f's_mov_b32 s83, {e*8192}')
            for j in range(4):
                vo = 136 if j < 2 else 137
                a.vmem(f'buffer_load_dwordx2 v[{B0+16*j+2*e}:{B0+16*j+2*e+1}], v{vo}, s[64:67], s83 offen offset:{2048*(j%2)} sc1', 'mod')
        a.wait_vm('mod')
        for j in range(4):
            for c_ in range(2):
                b = B0+16*j+c_
                for st_ in (2, 4, 8):
                    for e in range(0, 16, 2*st_): a(f'v_add_f32 v{b+e}, v{b+e}, v{b+e+st_}')
                round_bf16(a, b, 138)
        for c_ in range(2):
            a(f'v_add_f32 v{B0+32+c_}, 1.0, v{B0+32+c_}'); round_bf16(a, B0+32+c_, 138)
        a(f'v_add_u32 v136, {SCR}, v136')
        a(f'ds_write_b64 v136, v[{B0}:{B0+1}]'); a(f'ds_write_b64 v136, v[{B0+32}:{B0+33}] offset:2048')
        a(f'ds_write_b64 v136, v[{B0+16}:{B0+17}] offset:4096'); a(f'ds_write_b64 v136, v[{B0+48}:{B0+49}] offset:6144')
        a('s_waitcnt lgkmcnt(0)')

    def phase_c(self):
        a = self.a
        S_RB=36; S_CB=37; S_KQ=33; S_TT=38; S_RTc=39; S_WO=41; S_M0c=42; S_XO=45
        SRD_W=12; SRD_X=16; SRD_Oc=20
        WAD=[200, 204]; WOFF=208; LOFF=209
        a(f's_load_dwordx2 s[6:7], s[0:1], {KA_WO}')
        a(f's_load_dwordx2 s[86:87], s[0:1], {KA_WD}')
        a(f'v_lshrrev_b32 v213, 3, v{LANE}'); a('v_lshlrev_b32 v213, 10, v213'); a(f'v_bfe_u32 v214, v{LANE}, 4, 1'); a('v_lshlrev_b32 v214, 2, v214')
        a(f'v_and_b32 v215, 7, v{LANE}'); a('v_xor_b32 v214, v214, v215'); a('v_lshlrev_b32 v214, 4, v214'); a('v_add_u32 v213, v213, v214')
        a(f'v_lshlrev_b32 v214, 4, v{LANE}')
        a('s_mul_i32 s88, s2, 7'); a(f's_lshl_b32 s82, s{S_W}, 1'); a('s_add_u32 s88, s88, s82')

        a('s_lshr_b32 s70, s2, 5'); a('s_lshl_b32 s70, s70, 2'); a('s_bfe_u32 s71, s2, 0x20003'); a('s_add_u32 s70, s70, s71'); a(f's_add_u32 s70, s70, {C_CO}'); a('s_lshl_b32 s70, s70, 8')
        a('s_and_b32 s34, s2, 7'); a('s_lshr_b32 s35, s2, 3')
        a(f's_and_b32 s{S_KQ}, s34, 3'); a('s_lshr_b32 s34, s34, 2'); a('s_lshl_b32 s34, s34, 3'); a(f's_and_b32 s{S_RB}, s35, 7'); a(f's_add_u32 s{S_RB}, s{S_RB}, s34')
        a(f's_lshr_b32 s{S_CB}, s35, 3')
        a(f'v_lshlrev_b32 v{LOFF}, 4, v{LANE}')
        self.lane_consts_vstyle(WAD, WOFF, 1024, 128)
        a(f's_lshl_b32 s{S_RTc}, s{S_RB}, 2'); a(f's_add_u32 s{S_RTc}, s{S_RTc}, s{S_W}')
        a(f's_lshl_b32 s{S_WO}, s{S_KQ}, 20'); a(f's_lshl_b32 s{S_TT}, s{S_W}, 12'); a(f's_add_u32 s{S_WO}, s{S_WO}, s{S_TT}')
        a(f's_lshl_b32 s{S_TT}, s{S_CB}, 8'); a(f's_add_u32 s{S_WO}, s{S_WO}, s{S_TT}')
        a(f's_lshl_b32 s{S_M0c}, s{S_W}, 10')
        a(f's_lshl_b32 s{S_XO}, s{S_RTc}, 18'); a(f's_lshl_b32 s{S_TT}, s{S_KQ}, 16'); a(f's_add_u32 s{S_XO}, s{S_XO}, s{S_TT}')
        a(f's_lshr_b32 s71, s{S_RB}, 1'); a('s_lshl_b32 s71, s71, 2'); a(f's_add_u32 s71, s71, s{S_KQ}'); a(f's_add_u32 s71, s71, {C_CO}'); a('s_lshl_b32 s71, s71, 8')
        a('s_waitcnt lgkmcnt(0)')
        a.srd(SRD_W, 6, 0, 4194304); a.srd(SRD_X, 4, WS_O, 16777216); a.srd(SRD_Oc, 4, WS_P, 8388608); a.srd(64, 4, WS_M2, 8192); a.srd(76, 86, 0, 1835008); a.srd(48, 4, WS_WDP, 1835008)
        def w_dma_ops(c):
            slot = c % 8
            return [([f's_add_u32 m0, s{S_M0c}, {slot*16384 + m*4096}', f's_add_u32 s{S_TT}, s{S_WO}, {(c*64 + m*16)*1024}'],
                     f'buffer_load_dwordx4 v{WOFF}, s[{SRD_W}:{SRD_W+3}], s{S_TT} offen lds') for m in range(4)]
        XRING = 32
        def x_load_ops(s):
            r = 4*(s % XRING)
            return ([f's_add_u32 s{S_TT}, s{S_XO}, {(s//4)*4096}'],
                    f'buffer_load_dwordx4 v[{r}:{r+3}], v{LOFF}, s[{SRD_X}:{SRD_X+3}], s{S_TT} offen offset:{(s%4)*1024} {M["ldsc"]}')
        NPRE = M['c_prew']
        def pre(track):
            for c in range(NPRE):
                for o in w_dma_ops(c):
                    for x in o[0]: a(x)
                    if track: a.vmem(o[1], ('W', c))
                    else: a(o[1])
        self.handoff(70, [('multi', 71, 8, C_M2)], pre=pre, npre=4*NPRE)
        self.stamp()
        a(f'v_lshlrev_b32 v210, 3, v{TID}'); a('v_add_u32 v211, 4096, v210')
        a.vmem('buffer_load_dwordx2 v[192:193], v210, s[64:67], 0 offen sc1', 'mod'); a.vmem('buffer_load_dwordx2 v[194:195], v210, s[64:67], 0 offen offset:2048 sc1', 'mod')
        a.vmem('buffer_load_dwordx2 v[196:197], v211, s[64:67], 0 offen sc1', 'mod'); a.vmem('buffer_load_dwordx2 v[198:199], v211, s[64:67], 0 offen offset:2048 sc1', 'mod')
        for i in range(2):
            a(f's_add_u32 s82, s88, {i}'); a('s_lshr_b32 s80, s82, 1'); a('s_mul_i32 s81, s80, 9363'); a('s_lshr_b32 s81, s81, 20')
            a('s_mul_i32 s75, s81, 112'); a('s_sub_u32 s80, s80, s75'); a('s_lshl_b32 s80, s80, 14')
            a('s_and_b32 s82, s82, 1'); a('s_lshl_b32 s82, s82, 13'); a('s_add_u32 s80, s80, s82'); a('s_lshl_b32 s81, s81, 7'); a('s_add_u32 s80, s80, s81')
            a.vmem(f'buffer_load_dwordx4 v[{216+4*i}:{219+4*i}], v213, s[76:79], s80 offen', 'wd')
        ACCB = 128
        self.shared_gemm(64, 4, 1, 4, w_dma_ops, x_load_ops, XRING, 0, [0, 16, 32], WAD, lambda g: vr(ACCB+16*g, 16), pre_x=M['c_prex'], nv=M['c_nv'], npre=NPRE, LA=M['la'])
        for c_ in range(2):
            for r in (192, 194, 196, 198): round_bf16(a, r+c_, 212)
            a(f'v_add_f32 v{196+c_}, 1.0, v{196+c_}'); round_bf16(a, 196+c_, 212)
        a(f'v_add_u32 v210, {T2B}, v210')
        a('ds_write_b64 v210, v[192:193]'); a('ds_write_b64 v210, v[196:197] offset:2048'); a('ds_write_b64 v210, v[194:195] offset:4096'); a('ds_write_b64 v210, v[198:199] offset:6144')
        a('s_waitcnt lgkmcnt(0)')
        a('s_barrier')
        self.stamp()
        a(f's_lshl_b32 s{S_XO}, s{S_KQ}, 21'); a(f's_lshl_b32 s{S_TT}, s{S_RTc}, 15'); a(f's_add_u32 s{S_XO}, s{S_XO}, s{S_TT}')
        a(f's_lshl_b32 s{S_TT}, s{S_CB}, 13'); a(f's_add_u32 s{S_XO}, s{S_XO}, s{S_TT}')
        for mt in range(4):
            if mt % 2 == 0: a(f's_add_u32 s{S_TT}, s{S_XO}, {(mt//2)*4096}')
            for t in range(2):
                b = 4*(2*mt+t)
                for k in range(4):
                    r = ACCB + 16*mt + 8*t + 2*k
                    a(f'v_cvt_pk_bf16_f32 v{b+k}, v{r}, v{r+1}')
                a.vmem(f'buffer_store_dwordx4 v[{b}:{b+3}], v{LOFF}, s[{SRD_Oc}:{SRD_Oc+3}], s{S_TT} offen offset:{1024*((2*mt+t)%4)} sc1', 'pst')
        a('s_lshl_b32 s80, s88, 10')
        a.vmem('buffer_store_dwordx4 v[216:219], v214, s[48:51], s80 offen sc1', 'pst'); a.vmem('buffer_store_dwordx4 v[220:223], v214, s[48:51], s80 offen offset:1024 sc1', 'pst')
        a(f's_add_u32 s74, s{S_RB}, {C_CP}'); a('s_lshl_b32 s74, s74, 8')
        a('s_and_b32 s75, s2, 7'); a(f's_add_u32 s75, s75, {C_WDP}'); a('s_lshl_b32 s75, s75, 8')

    def d_setup(self):
        a = self.a
        d = self.d = dict(S_RB=36, S_FG=37, S_TT=38, S_RT=39, S_GO=41, S_M0=42, S_XO=45, SRD_G=12, SRD_U=16, SRD_X=20, SRD_O=28, WAD=[200, 204], WOFF=208, LOFF=209)
        a(f's_load_dwordx2 s[6:7], s[0:1], {KA_WG}'); a(f's_load_dwordx2 s[8:9], s[0:1], {KA_WU}')
        a('s_and_b32 s33, s2, 7'); a('s_lshr_b32 s34, s2, 3')
        a(f's_and_b32 s36, s34, 3'); a('s_lshr_b32 s35, s33, 1'); a('s_lshl_b32 s35, s35, 2'); a('s_add_u32 s36, s36, s35')
        a(f's_lshr_b32 s37, s34, 2'); a('s_and_b32 s35, s33, 1'); a('s_mul_i32 s35, s35, 7'); a('s_add_u32 s37, s37, s35')
        self.lane_consts_vstyle(d['WAD'], d['WOFF'], 3584, 128)
        a(f's_lshl_b32 s39, s36, 2'); a(f's_add_u32 s39, s39, s{S_W}')
        a(f's_lshl_b32 s41, s37, 8'); a(f's_mul_i32 s38, s{S_W}, {4*3584}'); a('s_add_u32 s41, s41, s38')
        a(f's_lshl_b32 s42, s{S_W}, 10'); a('s_lshl_b32 s45, s39, 15')
        a('s_waitcnt lgkmcnt(0)')
        a.srd(12, 6, 0, 512*3584); a.srd(16, 8, 0, 512*3584)
    def d_w_dma_ops(self, c):
        slot = c % 4; ops = []
        for m in range(4):
            for gu in range(2):
                srd = 12 if gu == 0 else 16
                ops.append(([f's_add_u32 m0, s42, {slot*32768 + gu*16384 + m*4096}', f's_add_u32 s38, s41, {(c*64 + m*16)*3584}'],
                            f'buffer_load_dwordx4 v208, s[{srd}:{srd+3}], s38 offen lds'))
        return ops

    def wait_P(self):
        a = self.a
        l1 = a.newlabel('WP'); l2 = a.newlabel('WP')
        a(f's_cmp_lg_u32 s{S_W}, 0'); a(f's_cbranch_scc1 {l1}'); a('s_cmp_ge_u32 s2, 224'); a(f's_cbranch_scc1 {l1}')
        a('s_waitcnt vmcnt(32)'); a(f's_branch {l2}')
        a.label(l1); a('s_waitcnt vmcnt(0)')
        a.label(l2); a.vm = []
    def phase_r(self):
        a = self.a
        S_TT = 38
        SRD_P=44; SRD_X=48; SRD_MPr=52; SRD_X1=64; SRD_H=76
        TB0 = T2B
        a(f's_load_dwordx2 s[6:7], s[0:1], {KA_X}')
        a(f'v_and_b32 v2, 7, v{TID}'); a(f'v_bfe_u32 v3, v{TID}, 3, 1'); a(f'v_lshrrev_b32 v4, 4, v{TID}')
        a('s_lshr_b32 s80, s2, 2'); a('s_and_b32 s81, s2, 3'); a('s_lshl_b32 s81, s81, 3')
        a('v_lshlrev_b32 v5, 5, v3'); a('v_add_u32 v5, v5, v2'); a('v_add_u32 v5, s81, v5'); a('v_lshlrev_b32 v5, 4, v5')
        a('v_lshlrev_b32 v6, 10, v4'); a('v_add_u32 v6, v6, v5'); a('v_lshlrev_b32 v7, 11, v4'); a('v_add_u32 v7, v7, v5')
        a('v_add_u32 v8, s81, v2'); a('v_lshlrev_b32 v8, 10, v8'); a('v_lshlrev_b32 v9, 5, v4'); a('v_add_u32 v8, v8, v9'); a('v_lshlrev_b32 v9, 3, v3'); a('v_add_u32 v8, v8, v9')
        a(f'v_lshlrev_b32 v10, 3, v{TID}')
        a('s_waitcnt lgkmcnt(0)')
        a.srd(20, 4, WS_P, 8388608); a.srd(24, 6, 0, 2097152); a.srd(28, 4, WS_M2, 65536); a.srd(64, 4, WS_X1, 2097152); a.srd(76, 4, WS_H2, 2097152)
        a('s_lshl_b32 s82, s80, 15')
        for i in range(2):
            a(f's_add_u32 s83, s82, {i*512}')
            a.vmem(f'buffer_load_dwordx2 v[{112+4*i}:{113+4*i}], v8, s[24:27], s83 offen', 'x')
            a.vmem(f'buffer_load_dwordx2 v[{114+4*i}:{115+4*i}], v8, s[24:27], s83 offen offset:16', 'x')
        a('v_lshlrev_b32 v12, 6, v4'); a('v_lshlrev_b32 v13, 4, v3'); a('v_add_u32 v12, v12, v13'); a(f'v_add_u32 v12, {TB0}, v12')
        TB = 120
        for j in range(3):
            for i in range(2):
                for h in range(2):
                    r = TB + 16*j + 8*i + 4*h
                    a(f'ds_read_b128 v[{r}:{r+3}], v12 offset:{2048*j + 1024*i + 32*h}')
        a('s_lshr_b32 s70, s2, 4'); a(f's_add_u32 s70, s70, {C_CP}'); a('s_lshl_b32 s70, s70, 8')
        def pre(track):
            for c in range(4):
                for o in self.d_w_dma_ops(c):
                    for x in o[0]: a(x)
                    if track: a.vmem(o[1], ('W', c))
                    else: a(o[1])
        late = self.handoff(74, [(70, 1, 16)], pre=pre, npre=32, skip_cond='s_cmp_ge_u32 s2, 224', defer=True, vm_allow=4, sig2=75)
        a.vm = []
        self.stamp()
        a('s_lshl_b32 s84, s80, 15')
        for i in range(2):
            for kq in range(4):
                a(f's_add_u32 s83, s84, {kq*2097152 + i*16384}')
                r = 80 + (i*4+kq)*4
                a.vmem(f'buffer_load_dwordx4 v[{r}:{r+3}], v6, s[20:23], s83 offen sc1', 'P')
        late()
        a('s_waitcnt vmcnt(32)') if False else None
        self.wait_P()
        a('s_waitcnt lgkmcnt(0)')
        for i in range(2):
            b = 48 + i*32
            for k in range(4):
                for kq in range(4):
                    r = 80 + (i*4+kq)*4 + k
                    if kq == 0:
                        a(f'v_lshlrev_b32 v{b+2*k}, 16, v{r}'); a(f'v_and_b32 v{b+2*k+1}, 0xffff0000, v{r}')
                    else:
                        a(f'v_lshlrev_b32 v41, 16, v{r}'); a(f'v_and_b32 v42, 0xffff0000, v{r}')
                        a(f'v_add_f32 v{b+2*k}, v{b+2*k}, v41'); a(f'v_add_f32 v{b+2*k+1}, v{b+2*k+1}, v42')
        for i in range(2):
            b = 48 + i*32
            for k in range(4):
                A0, A1 = b+2*k, b+2*k+1
                a(f'v_cvt_pk_bf16_f32 v40, v{A0}, v{A1}'); a(f'v_lshlrev_b32 v{A0}, 16, v40'); a(f'v_and_b32 v{A1}, 0xffff0000, v40')
                a(f'v_mul_f32 v{A0}, v{A0}, v{TB+8*i+2*k}'); a(f'v_mul_f32 v{A1}, v{A1}, v{TB+8*i+2*k+1}')
                a(f'v_cvt_pk_bf16_f32 v40, v{A0}, v{A1}'); a(f'v_lshlrev_b32 v{A0}, 16, v40'); a(f'v_and_b32 v{A1}, 0xffff0000, v40')
                xr = 112+4*i+k
                a(f'v_lshlrev_b32 v41, 16, v{xr}'); a(f'v_and_b32 v42, 0xffff0000, v{xr}')
                a(f'v_add_f32 v{A0}, v{A0}, v41'); a(f'v_add_f32 v{A1}, v{A1}, v42')
                a(f'v_cvt_pk_bf16_f32 v{32+4*i+k}, v{A0}, v{A1}')
                a(f'v_lshlrev_b32 v{16+8*i+2*k}, 16, v{32+4*i+k}'); a(f'v_and_b32 v{17+8*i+2*k}, 0xffff0000, v{32+4*i+k}')
        a('s_lshl_b32 s82, s80, 15'); a('s_add_u32 s83, s82, 16384')
        a.vmem('buffer_store_dwordx4 v[32:35], v6, s[64:67], s82 offen sc1', 'st'); a.vmem('buffer_store_dwordx4 v[36:39], v6, s[64:67], s83 offen sc1', 'st')
        a('v_lshlrev_b32 v45, 3, v2'); a(f'v_add_u32 v45, {SCR+4096}, v45'); a(f's_lshl_b32 s85, s{S_W}, 6'); a('v_add_u32 v44, s85, v45')
        a('v_add_f32 v46, v16, v17'); a('v_mul_f32 v47, v16, v16'); a('v_fmac_f32 v47, v17, v17')
        for k in range(2, 16):
            a(f'v_add_f32 v46, v46, v{16+k}'); a(f'v_fmac_f32 v47, v{16+k}, v{16+k}')
        a('s_nop 1')
        for x in (46, 47): a(f'v_add_f32_dpp v{x}, v{x}, v{x} row_ror:8 row_mask:0xf bank_mask:0xf')
        for op in ('v_permlane16_swap_b32', 'v_permlane32_swap_b32'):
            a('v_mov_b32 v42, v46'); a('v_mov_b32 v43, v47'); a('s_nop 1')
            a(f'{op} v42, v46'); a(f'{op} v43, v47'); a('s_nop 1')
            a('v_add_f32 v46, v46, v42'); a('v_add_f32 v47, v47, v43')
        a('ds_write_b64 v44, v[46:47]'); a('s_waitcnt lgkmcnt(0)'); a('s_barrier')
        for w in range(4): a(f'ds_read_b64 v[{168+2*w}:{169+2*w}], v45 offset:{64*w}')
        a('s_waitcnt lgkmcnt(0)')
        a('v_add_f32 v168, v168, v170'); a('v_add_f32 v172, v172, v174'); a('v_add_f32 v46, v168, v172')
        a('v_add_f32 v169, v169, v171'); a('v_add_f32 v173, v173, v175'); a('v_add_f32 v43, v169, v173')
        a(f'v_mul_f32 v46, {f2u(1/512)}, v46'); a(f'v_mul_f32 v43, {f2u(1/512)}, v43')
        a('v_fma_f32 v43, -v46, v46, v43'); a('v_max_f32 v43, 0, v43')
        round_bf16(a, 43, 47); a(f'v_add_f32 v43, {f2u(1e-5)}, v43'); round_bf16(a, 43, 47)
        a('v_sqrt_f32 v43, v43'); a('s_nop 0'); round_bf16(a, 43, 47); a('v_rcp_f32 v43, v43'); round_bf16(a, 46, 47)
        for i in range(2):
            for k in range(4):
                e0, e1 = 16+8*i+2*k, 17+8*i+2*k
                a(f'v_sub_f32 v41, v{e0}, v46'); a(f'v_sub_f32 v42, v{e1}, v46')
                a('v_mul_f32 v41, v41, v43'); a('v_mul_f32 v42, v42, v43')
                a('v_cvt_pk_bf16_f32 v40, v41, v42'); a('v_lshlrev_b32 v41, 16, v40'); a('v_and_b32 v42, 0xffff0000, v40')
                a(f'v_fma_f32 v41, v41, v{TB+16+8*i+2*k}, v{TB+32+8*i+2*k}'); a(f'v_fma_f32 v42, v42, v{TB+16+8*i+2*k+1}, v{TB+32+8*i+2*k+1}')
                a(f'v_cvt_pk_bf16_f32 v{48+4*i+k}, v41, v42')
        a.vmem('buffer_store_dwordx4 v[48:51], v6, s[76:79], s82 offen sc1', 'st'); a.vmem('buffer_store_dwordx4 v[52:55], v6, s[76:79], s83 offen sc1', 'st')
        a('s_lshr_b32 s70, s2, 4'); a(f's_add_u32 s70, s70, {C_CH}'); a('s_lshl_b32 s70, s70, 8')
        self.signal([70], vm_allow=0); a.vm = []
        self.stamp()

    def phase_d(self):
        a = self.a
        LOFF = 209
        a.srd(20, 4, WS_H2, 2097152); a.srd(28, 4, WS_ACT, 64*112*1024)
        a(f's_add_u32 s70, s36, {C_CH}'); a('s_lshl_b32 s70, s70, 8')
        self.handoff(None, [('multi', 70, 16, C_WDP)], vm_allow=63)
        self.stamp()
        def x_load_ops(s):
            r = 4*(s % 16)
            return ([f's_add_u32 s38, s45, {(s//4)*4096}'],
                    f'buffer_load_dwordx4 v[{r}:{r+3}], v{LOFF}, s[20:23], s38 offen offset:{(s%4)*1024} {M["ldsc"]}')
        AB = 64
        self.shared_gemm(32, 8, 2, 4, self.d_w_dma_ops, x_load_ops, 16, 0, [128, 160, 192], [200, 204], lambda g: vr(AB+16*g, 16), pre_x=M['d_prex'], nv=3, npre=4, LA=M['la'])
        self.stamp()
        a(f's_mul_i32 s45, s39, {112*1024}'); a('s_lshl_b32 s38, s37, 13'); a('s_add_u32 s45, s45, s38')
        a(f'v_mov_b32 v210, {f2u(-LOG2E)}'); a('v_mov_b32 v212, 1.0'); a('v_mov_b32 v213, 1.0')
        a.nop(12)
        cnt = 0
        for mt in range(4):
            for t in range(2):
                b = 16*(cnt % 2); cnt += 1
                G = AB+16*mt+8*t; U = AB+16*(4+mt)+8*t; E = b; O_ = b+8
                for k in range(0, 8, 2): a(f'v_pk_mul_f32 v[{E+k}:{E+k+1}], v[{G+k}:{G+k+1}], v[210:211] op_sel_hi:[1,0]')
                for k in range(8): a(f'v_exp_f32 v{E+k}, v{E+k}')
                for k in range(0, 8, 2): a(f'v_pk_mul_f32 v[{U+k}:{U+k+1}], v[{G+k}:{G+k+1}], v[{U+k}:{U+k+1}]')
                for k in range(0, 8, 2): a(f'v_pk_add_f32 v[{E+k}:{E+k+1}], v[{E+k}:{E+k+1}], v[212:213]')
                for k in range(8): a(f'v_rcp_f32 v{E+k}, v{E+k}')
                a('s_nop 0')
                for k in range(0, 8, 2): a(f'v_pk_mul_f32 v[{U+k}:{U+k+1}], v[{U+k}:{U+k+1}], v[{E+k}:{E+k+1}]')
                for k in range(4): a(f'v_cvt_pk_bf16_f32 v{O_+k}, v{U+2*k}, v{U+2*k+1}')
                ks = 2*mt+t
                a(f's_add_u32 s38, s45, {(ks//4)*4096}')
                a.vmem(f'buffer_store_dwordx4 v[{O_}:{O_+3}], v{LOFF}, s[28:31], s38 offen offset:{(ks%4)*1024} sc1', 'ast')
        a(f's_add_u32 s74, s36, {C_CA}'); a('s_lshl_b32 s74, s74, 8')

    def e_setup(self):
        a = self.a; L = LANE
        NKT = 112; NK = 28
        e = self.e = dict(S_RB=36, S_CB=37, S_T=38, S_AO=39, S_B0=40, S_B1=41, S_M0=42, SRD_W=12, SRD_B=16, SRD_MP=20, SRD_X=24, SRD_O=28,
                          AF=[192, 200], AAD=208, VOA=210, VOB=211, LOFF=212, NK=NK, NKT=NKT)
        a(f's_load_dwordx2 s[6:7], s[0:1], {KA_WD}'); a(f's_load_dwordx2 s[8:9], s[0:1], {KA_OUT}')
        a('s_and_b32 s33, s2, 7'); a('s_lshr_b32 s34, s2, 3'); a('s_and_b32 s36, s34, 3'); a('s_lshl_b32 s33, s33, 2'); a('s_add_u32 s36, s36, s33'); a('s_lshr_b32 s37, s34, 2')
        a(f'v_lshrrev_b32 v2, 3, v{L}'); a('v_lshlrev_b32 v2, 10, v2'); a(f'v_bfe_u32 v3, v{L}, 4, 1'); a('v_lshlrev_b32 v3, 2, v3')
        a(f'v_and_b32 v4, 7, v{L}'); a('v_xor_b32 v3, v3, v4'); a('v_lshlrev_b32 v3, 4, v3')
        a('v_add_u32 v210, v2, v3'); a('v_add_u32 v211, 7168, v210'); a(f'v_lshlrev_b32 v212, 4, v{L}')
        a(f'v_lshrrev_b32 v2, 5, v{L}'); a(f'v_bfe_u32 v3, v{L}, 4, 1'); a(f'v_bfe_u32 v4, v{L}, 2, 2'); a(f'v_and_b32 v5, 3, v{L}')
        a('v_lshlrev_b32 v6, 2, v2'); a('v_add_u32 v6, v6, v4'); a('v_lshlrev_b32 v6, 7, v6'); a('v_and_b32 v7, 1, v5'); a('v_lshlrev_b32 v7, 3, v7'); a('v_add_u32 v6, v6, v7')
        a('v_lshrrev_b32 v7, 1, v5'); a('v_lshlrev_b32 v8, 1, v3'); a('v_add_u32 v7, v7, v8'); a('v_lshrrev_b32 v8, 1, v4')
        a(f's_lshl_b32 s42, s{S_W}, 15')
        for mt in range(2):
            a(f'v_xor_b32 v9, {mt}, v8'); a('v_lshlrev_b32 v9, 2, v9'); a('v_add_u32 v9, v9, v7'); a('v_lshlrev_b32 v9, 4, v9')
            a(f'v_add_u32 v{208+mt}, v6, v9'); a(f'v_add_u32 v{208+mt}, s42, v{208+mt}')
        if M['wdp']:
            a(f's_mul_i32 s39, s{S_W}, {NK*2048}'); a(f's_mul_i32 s38, s37, {NKT*2048}'); a('s_add_u32 s39, s39, s38')
        else:
            a(f's_mul_i32 s39, s{S_W}, {NK*16384}'); a('s_lshl_b32 s38, s37, 7'); a('s_add_u32 s39, s39, s38')
        a(f's_mul_i32 s40, s36, {2*NKT*1024}'); a(f's_mul_i32 s38, s{S_W}, {NK*1024}'); a('s_add_u32 s40, s40, s38'); a(f's_add_u32 s41, s40, {NKT*1024}')
        a('s_waitcnt lgkmcnt(0)')
        (a.srd(12, 4, WS_WDP, 1835008) if M['wdp'] else a.srd(12, 6, 0, NKT*16*1024)); a.srd(16, 4, WS_ACT, 64*NKT*1024); a.srd(20, 4, WS_M2, 65536); a.srd(24, 4, WS_X1, 2097152); a.srd(28, 8, 0, 2097152)
    def e_a_ops(self, k):
        slot = k % 16
        if M['wdp']:
            return [([f's_add_u32 m0, s42, {slot*2048}', f's_add_u32 s38, s39, {k*2048}'], f'buffer_load_dwordx4 v212, s[12:15], s38 offen sc1 lds'),
                    ([], f'buffer_load_dwordx4 v212, s[12:15], s38 offen offset:1024 sc1 lds')]
        return [([f's_add_u32 m0, s42, {slot*2048}', f's_add_u32 s38, s39, {k*16384}'], f'buffer_load_dwordx4 v210, s[12:15], s38 offen lds'),
                ([], f'buffer_load_dwordx4 v211, s[12:15], s38 offen offset:1024 lds')]
    def phase_e(self):
        a = self.a; L = LANE
        NK = 28; DEPTH = M['e_depth']; AF = [192, 200]; ACC = 128; LOFF = 212; GT = SCR
        def b_ops(k):
            r = 8*(k % 16)
            return [([f's_add_u32 s43, s40, {(k//4)*4096}'], f'buffer_load_dwordx4 v[{r}:{r+3}], v{LOFF}, s[16:19], s43 offen offset:{(k%4)*1024} {M["ldsc"]}'),
                    ([f's_add_u32 s43, s41, {(k//4)*4096}'], f'buffer_load_dwordx4 v[{r+4}:{r+7}], v{LOFF}, s[16:19], s43 offen offset:{(k%4)*1024} {M["ldsc"]}')]
        def emit(o, tag):
            for x in o[0]: a(x)
            a.vmem(o[1], tag)
        for k in range(DEPTH):
            for o in b_ops(k): emit(o, ('B', k))
        def aread_ops(k):
            slot = k % 16
            return [f'ds_read_b64_tr_b16 {vr(AF[k&1] + mt*4 + 2*u,2)}, v{208+mt} offset:{slot*2048 + u*1024}' for mt in range(2) for u in range(2)]
        a.wait_vm(('A', 0))
        for op in aread_ops(0): a.lds(op, ('Af', 0))
        NPRE = M['e_prea']
        for k in range(NK):
            a.wait_vm(('B', k)) if k == 0 else None
            if k+1 < NK: a.wait_vm([('B', k+1), ('A', k+1)])
            a.wait_lg(('Af', k))
            r = 8*(k % 16)
            ar_ = aread_ops(k+1) if k+1 < NK else []
            gs = []
            if NPRE == 16:
                if k >= 2 and k+14 < NK: gs += [(o, ('A', k+14)) for o in self.e_a_ops(k+14)]
            elif k+NPRE < NK: gs += [(o, ('A', k+NPRE)) for o in self.e_a_ops(k+NPRE)]
            if k+DEPTH < NK: gs += [(o, ('B', k+DEPTH)) for o in b_ops(k+DEPTH)]
            i = 0
            for mt in range(2):
                for nt in range(2):
                    d = vr(ACC+(mt*2+nt)*16, 16)
                    it = gs[i] if i < len(gs) else None
                    if it:
                        for x in it[0][0]: a(x)
                    a(mfma(d, vr(AF[k&1]+mt*4,4), vr(r+4*nt,4), '0' if k == 0 else d))
                    if it: a.vmem(it[0][1], it[1])
                    if i < 2:
                        for op in ar_[2*i:2*i+2]: a.lds(op, ('Af', k+1))
                    i += 1
        self.stamp()
        a(f's_lshr_b32 s46, s{S_W}, 1'); a(f's_and_b32 s47, s{S_W}, 1')
        a('s_lshl_b32 s48, s36, 1'); a('s_add_u32 s48, s48, s47')
        a('s_lshl_b32 s49, s37, 2'); a('s_lshl_b32 s50, s46, 1'); a('s_add_u32 s49, s49, s50')
        a('s_lshl_b32 s50, s48, 5'); a('s_add_u32 s50, s50, s49'); a('s_lshl_b32 s50, s50, 10')
        a(f'v_and_b32 v2, 31, v{L}'); a('v_lshlrev_b32 v2, 10, v2'); a(f'v_lshrrev_b32 v3, 5, v{L}'); a('v_lshlrev_b32 v4, 4, v3'); a('v_add_u32 v2, v2, v4')
        a('s_lshl_b32 s51, s48, 15'); a('s_lshl_b32 s33, s49, 5'); a('s_add_u32 s51, s51, s33')
        for t in range(2):
            a(f'buffer_load_dwordx4 v[{8+4*t}:{11+4*t}], v{LOFF}, s[24:27], s50 offen offset:{1024*t} sc1')
        a.nop(12)
        a('s_waitcnt lgkmcnt(0)'); a('s_barrier')
        a(f's_lshl_b32 s33, s{S_W}, 14'); a(f'v_add_u32 v5, s33, v{LOFF}')
        for tile in range(4):
            for r4 in range(4):
                r = ACC + tile*16 + r4*4
                a(f'ds_write_b128 v5, v[{r}:{r+3}] offset:{(tile*4+r4)*1024}')
        a('s_waitcnt lgkmcnt(0)'); a('s_barrier')
        a(f's_lshl_b32 s33, s{S_W}, 12'); a(f'v_add_u32 v5, s33, v{LOFF}')
        for wv in range(4):
            for r4 in range(4):
                r = 32 + wv*16 + r4*4
                a(f'ds_read_b128 v[{r}:{r+3}], v5 offset:{wv*16384 + r4*1024}')
        a('v_lshlrev_b32 v6, 4, v3'); a('s_lshl_b32 s33, s46, 7'); a('s_lshl_b32 s34, s37, 8'); a('s_add_u32 s33, s33, s34'); a(f's_add_u32 s33, s33, {T2B+6144}'); a('v_add_u32 v6, s33, v6')
        for g in range(4): a(f'ds_read_b128 v[{16+4*g}:{19+4*g}], v6 offset:{32*g}')
        a('s_waitcnt lgkmcnt(0)')
        for r in range(16):
            a(f'v_add_f32 v{32+r}, v{32+r}, v{48+r}'); a(f'v_add_f32 v{64+r}, v{64+r}, v{80+r}')
        for r in range(16): a(f'v_add_f32 v{32+r}, v{32+r}, v{64+r}')
        for r in range(0, 16, 2):
            a(f'v_cvt_pk_bf16_f32 v100, v{32+r}, v{33+r}'); a(f'v_lshlrev_b32 v{32+r}, 16, v100'); a(f'v_and_b32 v{33+r}, 0xffff0000, v100')
            a(f'v_mul_f32 v{32+r}, v{32+r}, v{16+r}'); a(f'v_mul_f32 v{33+r}, v{33+r}, v{17+r}')
            a(f'v_cvt_pk_bf16_f32 v100, v{32+r}, v{33+r}'); a(f'v_lshlrev_b32 v{32+r}, 16, v100'); a(f'v_and_b32 v{33+r}, 0xffff0000, v100')
        a('s_waitcnt vmcnt(0)')
        for k in range(8):
            a(f'v_lshlrev_b32 v101, 16, v{8+k}'); a(f'v_and_b32 v102, 0xffff0000, v{8+k}')
            a(f'v_add_f32 v{32+2*k}, v{32+2*k}, v101'); a(f'v_add_f32 v{33+2*k}, v{33+2*k}, v102')
            a(f'v_cvt_pk_bf16_f32 v{104+k}, v{32+2*k}, v{33+2*k}')
        a('s_nop 1')
        for gp in range(2):
            b = 104+4*gp
            a(f'v_permlane32_swap_b32 v{b}, v{b+2}'); a(f'v_permlane32_swap_b32 v{b+1}, v{b+3}')
        a('s_nop 1')
        for gp in range(2):
            b = 104+4*gp
            a(f'buffer_store_dwordx4 v[{b}:{b+3}], v2, s[28:31], s51 offen offset:{32*gp} {M["outsc"]}')

    def build(self):
        a = self.a
        a.raw(kernel_head(KN))
        a('s_cmp_ge_u32 s2, 256'); a('s_cbranch_scc1 K_END')
        self.front()
        self.attention()
        self.phase_c()
        self.stamp()
        a('s_cmp_ge_u32 s2, 224'); a('s_cbranch_scc1 NO_DS')
        self.d_setup()
        a.label('NO_DS')
        self.phase_r()
        a('s_cmp_lt_u32 s2, 224'); a('s_cbranch_scc1 DO_D')
        a(f's_mov_b32 s70, {C_WDP*256}')
        self.wait([(70, 8, 32)])
        a('s_branch E_PRE')
        a.label('DO_D')
        a(f'v_lshlrev_b32 v209, 4, v{LANE}')
        self.phase_d()
        a.label('E_PRE')
        self.e_setup()
        a('s_waitcnt lgkmcnt(0)'); a('s_barrier')
        def pre(track):
            for k in range(M['e_prea']):
                for o in self.e_a_ops(k):
                    for x in o[0]: a(x)
                    if track: a.vmem(o[1], ('A', k))
                    else: a(o[1])
        a('s_lshr_b32 s70, s36, 1'); a(f's_add_u32 s70, s70, {C_CA}'); a('s_lshl_b32 s70, s70, 8')
        a(f's_mov_b32 s71, {103*256}'); a('s_cmp_ge_u32 s2, 224'); a('s_cselect_b32 s74, s71, s74')
        self.stamp()
        self.handoff(74, [(70, 1, 14)], pre=pre, npre=2*M['e_prea'])
        self.stamp()
        self.phase_e()
        if M['stamp']:
            a('s_waitcnt vmcnt(0)'); self.stamp()
            a.srd(44, 4, WS_STAMP, 262144)
            a(f'v_lshlrev_b32 v0, 2, v{LANE}'); a('s_lshl_b32 s48, s2, 9'); a(f's_lshl_b32 s49, s{S_W}, 7'); a('s_add_u32 s48, s48, s49')
            a('s_mov_b64 exec, 0xffffffff')
            a(f'buffer_store_dword v{STV}, v0, s[44:47], s48 offen')
            a('s_add_u32 s48, s48, 131072'); a('buffer_store_dword v254, v0, s[44:47], s48 offen')
        a('s_waitcnt vmcnt(0)')
        a.label('K_END'); a('s_endpgm')
        for st, bk, p in self.stubs:
            a.label(st); a(f's_call_b64 s[{S_RET}:{S_RET+1}], RARE_{p}'); a(f's_branch {bk}')
        gen_rare(a, 0); gen_rare(a, 1)
        a.label('CODE_END')
        a('s_endpgm')
        return a.text()

def make(path, **kw):
    M.update({k: v for k, v in kw.items() if k in M or k.startswith('c_') or k == 'fine'})
    B.CFG.update({k: v for k, v in kw.items() if k in B.CFG})
    m = Mega(); text = m.build()
    head = open('adaLN_cond__mha_block_cached__swiglu_ffn__prompt.s.ref').read().split('; Override launch')[0]
    s = head + f'; @launch grid=(256,1,1) block=(256,1,1) lds={M["lds"]}\n.amdgcn_target "amdgcn-amd-amdhsa--gfx950"\n' + text
    s += '.section .rodata,"a"\n' + kernel_desc(KN, 512, 102, 256)
    open(path, 'w').write(s)
    return m.nst
if __name__ == '__main__':
    import sys
    kw = {}
    for kv in sys.argv[2:]:
        k, v = kv.split('=', 1); kw[k] = eval(v)
    print('stamps', make(sys.argv[1], **kw))
```
